```python
import torch

def _softmax(x, axis=-1):
    return torch.softmax(x, dim=axis)
def _gelu(x):
    return torch.nn.functional.gelu(x, approximate="tanh")
def _silu(x):
    return torch.nn.functional.silu(x)
def _sigmoid(x):
    return torch.sigmoid(x)
def _layernorm(x, axis=-1, eps=1e-5):
    m = x.mean(dim=axis, keepdim=True)
    v = x.var(dim=axis, keepdim=True, unbiased=False)
    return (x - m) / torch.sqrt(v + eps)
def _scatter_add(tgt, idx, src, axis=0):
    return tgt.clone().index_add_(axis, idx, src)
def _segment_sum(src, seg, n):
    out = torch.zeros((n,) + src.shape[1:], dtype=src.dtype)
    return out.index_add_(0, seg, src)
def _pad(x, pw):
    flat = tuple(v for pair in reversed(pw) for v in pair)
    return torch.nn.functional.pad(x, flat)

kernel_name = 'concat_heads__mha_block_cached__gqa_block_cached__near_ridge'

def setup_inputs():

    _w = (lambda a: (lambda t: t.to(torch.bfloat16) if t.is_floating_point() else t)(torch.as_tensor(a)))
    def _A_setup():
        B, Sq, D = 8, 192, 448
        H, Sk, Dh = 16, 512, 256
        return {
            "x": _w((lambda *s: torch.randn(*s, dtype=torch.bfloat16) * 0.8)(B, Sq, D)),
            "k_cache": _w((lambda *s: torch.randn(*s, dtype=torch.bfloat16) * 0.8)(B, H, Sk, Dh)),
            "v_cache": _w((lambda *s: torch.randn(*s, dtype=torch.bfloat16) * 0.05)(B, H, Sk, Dh)),
            "wq": _w((lambda *s: torch.randn(*s, dtype=torch.bfloat16) * 0.8)(D, H * Dh) * (D ** -0.5)),
            "wo": _w((lambda *s: torch.randn(*s, dtype=torch.bfloat16) * 0.05)(H * Dh, D) * ((H * Dh) ** -0.5)),
        }
    _A_in = _A_setup()

    def _B_setup():
        B, Sq, D = 8, 192, 448
        Hq, Hkv, Sk, Dh = 16, 16, 512, 256
        assert Hq % Hkv == 0, (Hq, Hkv)
        return {
            "x": _w((lambda *s: torch.randn(*s, dtype=torch.bfloat16) * 0.8)(B, Sq, D)),
            "k_cache": _w((lambda *s: torch.randn(*s, dtype=torch.bfloat16) * 0.8)(B, Hkv, Sk, Dh)),
            "v_cache": _w((lambda *s: torch.randn(*s, dtype=torch.bfloat16) * 0.05)(B, Hkv, Sk, Dh)),
            "wq": _w((lambda *s: torch.randn(*s, dtype=torch.bfloat16) * 0.8)(D, Hq * Dh) * (D ** -0.5)),
            "wo": _w((lambda *s: torch.randn(*s, dtype=torch.bfloat16) * 0.05)(Hq * Dh, D) * ((Hq * Dh) ** -0.5)),
        }
    _B_in = _B_setup()

    return {
        "A_x": _A_in["x"],
        "A_k_cache": _A_in["k_cache"],
        "A_v_cache": _A_in["v_cache"],
        "A_wq": _A_in["wq"],
        "A_wo": _A_in["wo"],
        "B_x": _B_in["x"],
        "B_k_cache": _B_in["k_cache"],
        "B_v_cache": _B_in["v_cache"],
        "B_wq": _B_in["wq"],
        "B_wo": _B_in["wo"],
    }

def reference(A_x, A_k_cache, A_v_cache, A_wq, A_wo, B_x, B_k_cache, B_v_cache, B_wq, B_wo):
    def _A_ref(x, k_cache, v_cache, wq, wo):
        B, Sq, D = x.shape
        H, Dh = 16, 256
        q = (lambda x, *d: x.permute(*d))((x @ wq).reshape(B, Sq, H, Dh), 0, 2, 1, 3)
        scores = torch.einsum("bhqd,bhkd->bhqk", q, k_cache) * (Dh ** -0.5)
        p = _softmax(scores, axis=-1)
        o = torch.einsum("bhqk,bhkd->bhqd", p, v_cache)
        return (lambda x, *d: x.permute(*d))(o, 0, 2, 1, 3).reshape(B, Sq, H * Dh) @ wo

    def _B_ref(x, k_cache, v_cache, wq, wo):
        B, Sq, D = x.shape
        Hq, Dh = 16, 256
        Hkv = k_cache.shape[1]
        rep = Hq // Hkv
        q = (lambda x, *d: x.permute(*d))((x @ wq).reshape(B, Sq, Hq, Dh), 0, 2, 1, 3)
        k = (lambda x, n, axis: torch.repeat_interleave(x, n, dim=axis))(k_cache, rep, axis=1)
        v = (lambda x, n, axis: torch.repeat_interleave(x, n, dim=axis))(v_cache, rep, axis=1)
        scores = torch.einsum("bhqd,bhkd->bhqk", q, k) * (Dh ** -0.5)
        p = _softmax(scores, axis=-1)
        o = torch.einsum("bhqk,bhkd->bhqd", p, v)
        return (lambda x, *d: x.permute(*d))(o, 0, 2, 1, 3).reshape(B, Sq, Hq * Dh) @ wo

    a = _A_ref(A_x, A_k_cache, A_v_cache, A_wq, A_wo)
    b = _B_ref(B_x, B_k_cache, B_v_cache, B_wq, B_wo)
    return torch.concatenate([a, b], axis=-1)
```

```python
import re

class Ins:
    __slots__ = ("text", "cost", "tag", "meta")
    def __init__(self, text, cost=1, tag=None, meta=None):
        self.text, self.cost, self.tag, self.meta = text, cost, tag, meta

def vr(a, n=1, f="v"):
    return f"{f}{a}" if n == 1 else f"{f}[{a}:{a+n-1}]"
def ar(a, n=1):
    return vr(a, n, "a")

class Timeline:
    CAP = 2
    def __init__(self):
        self.mf = []
        self.gaps = {-1: []}
        self.tail = {}
    def add_mfma(self, text, meta=None):
        self.mf.append(Ins(text, 2, "mfma", meta))
        i = len(self.mf) - 1
        self.gaps[i] = []
        return i
    def load(self, i):
        return sum(x.cost for x in self.gaps[i]) + sum(x.cost for x in self.tail.get(i, []))
    def put(self, i, ins):
        self.gaps[i].append(ins)
        return i
    def put_last(self, i, ins):
        self.tail.setdefault(i, []).append(ins)
        return i
    def place(self, ins, lo, hi):
        hi = min(hi, len(self.mf) - 1)
        lo = min(lo, hi)
        for i in range(lo, hi + 1):
            if self.load(i) + ins.cost <= self.CAP:
                return self.put(i, ins)
        return None
    def chain(self, items, lo, hi):
        hi = min(hi, len(self.mf) - 1)
        norm = [(x, lo) if isinstance(x, Ins) else x for x in items]
        cap = self.CAP
        while True:
            pos, cur, extra, ok = [], lo, {}, True
            for ins, e in norm:
                cur = min(max(cur, e), hi)
                while cur <= hi and self.load(cur) + extra.get(cur, 0) + ins.cost > cap:
                    cur += 1
                if cur > hi:
                    ok = False
                    break
                extra[cur] = extra.get(cur, 0) + ins.cost
                pos.append(cur)
            if ok:
                break
            cap += 1
        for (ins, _), p in zip(norm, pos):
            self.put(p, ins)
        return pos
    def linear(self):
        out = list(self.gaps[-1]) + list(self.tail.get(-1, []))
        for i, m in enumerate(self.mf):
            out.append(m)
            out += self.gaps[i]
            out += self.tail.get(i, [])
        return out

def resolve_waits(lin):
    lq, vq = [], []
    for ins in lin:
        if ins.tag == "ds":
            lq.append(ins.meta)
        elif ins.tag == "vm":
            vq.append(ins.meta)
        elif ins.text == "s_waitcnt lgkmcnt(0)" and ins.tag is None:
            lq.clear()
        elif ins.tag in ("waitl", "waitv"):
            q = lq if ins.tag == "waitl" else vq
            last = -1
            for k, tok in enumerate(q):
                if tok in ins.meta:
                    last = k
            n = len(q) - 1 - last
            if ins.tag == "waitl":
                n = min(n, 15)
                ins.text = f"s_waitcnt lgkmcnt({n})"
            else:
                n = min(n, 63)
                ins.text = f"s_waitcnt vmcnt({n})"
            del q[:len(q) - n]
    return lin

_REG = re.compile(r"\b([va])(?:(\d+)|\[(\d+):(\d+)\])")
def regs(op):
    out = []
    for m in _REG.finditer(op):
        if m.group(2) is not None:
            out.append((m.group(1), int(m.group(2))))
        else:
            out += [(m.group(1), k) for k in range(int(m.group(3)), int(m.group(4)) + 1)]
    return out

TRANS = ("v_exp_f32", "v_rcp_f32", "v_log_f32")
def rw(text):
    parts = text.split(None, 1)
    op = parts[0]
    ops = [x.strip() for x in parts[1].split(",")] if len(parts) > 1 else []
    if op.startswith("v_mfma"):
        return "mfma", regs(ops[0]), regs(ops[1]) + regs(ops[2]), regs(ops[3])
    if op.startswith("v_permlane"):
        r = regs(ops[0]) + regs(ops[1])
        return "perm", r, r, []
    if op.startswith("v_cmp") or op.startswith("v_readfirstlane"):
        return "valu", [], [x for o in ops[1:] for x in regs(o)], []
    if op.startswith("v_"):
        rd = [x for o in ops[1:] for x in regs(o)]
        if op.startswith("v_fmac"):
            rd += regs(ops[0])
        return ("trans" if op in TRANS else "valu"), regs(ops[0]), rd, []
    if op.startswith("ds_read"):
        return "ds", regs(ops[0]), regs(ops[1]), []
    if op.startswith("ds_write"):
        return "ds", [], regs(ops[0]) + regs(ops[1]), []
    if op.startswith("buffer_store") or op.startswith("buffer_atomic"):
        return "store", [], regs(ops[0]) + regs(ops[1]), []
    if op.startswith("buffer_load") or op.startswith("global_load"):
        if text.rstrip().endswith("lds"):
            return "dma", [], regs(ops[0]), []
        return "load", regs(ops[0]), regs(ops[1]), []
    return "salu", [], [], []

def states(text):
    if text.startswith("s_nop"):
        return int(text.split()[1]) + 1
    if text.endswith(":") or text.startswith("."):
        return 0
    return 1

def check_hazards(texts, fix=False):
    out, pos = [], 0
    w_mfma, w_valu, w_trans, r_c, r_store = {}, {}, {}, {}, {}
    d_of = {}
    m0_w = -99
    problems = []
    for t in texts:
        if t.endswith(":") or t.startswith(".") or t.startswith(";"):
            out.append(t)
            continue
        kind, wr, rd, c = rw(t)
        need = 0
        def req(tab, rs, n):
            nonlocal need
            for r in rs:
                if r in tab:
                    need = max(need, n - (pos - tab[r] - 1))
        if kind == "mfma":
            req(w_valu, rd + c, 2)
            req(w_mfma, rd, 8)
            for r in c:
                if r in w_mfma and d_of[r] != tuple(c):
                    req(w_mfma, [r], 6)
        elif kind in ("valu", "trans", "perm"):
            req(w_mfma, rd + wr, 8)
            req(r_c, wr, 3)
            req(r_store, wr, 2)
            if kind != "trans":
                req(w_trans, rd, 1)
            if kind == "perm":
                req(w_valu, rd, 2)
            if t.startswith("v_readfirstlane"):
                req(w_valu, rd, 1)
        elif kind in ("ds", "store", "load", "dma"):
            req(w_mfma, rd + wr, 8)
            req(r_store, wr, 1)
            if kind == "dma":
                need = max(need, 1 - (pos - m0_w - 1))
        if need > 0:
            if fix:
                out.append(f"s_nop {need-1}")
                pos += need
            problems.append((t, need))
        out.append(t)
        if kind == "mfma":
            for r in wr:
                w_mfma[r] = pos
                d_of[r] = tuple(wr)
                w_valu.pop(r, None)
            for r in c:
                r_c[r] = pos
        elif kind in ("valu", "trans", "perm"):
            for r in wr:
                w_valu[r] = pos
                w_mfma.pop(r, None)
                if kind == "trans":
                    w_trans[r] = pos
                else:
                    w_trans.pop(r, None)
        elif kind == "store":
            for r in rd:
                r_store[r] = pos
        if re.match(r"s_\w+ m0,", t):
            m0_w = pos
        pos += states(t)
    return out, problems
```

```python
import sys
from core import *

NAME = "concat_heads__mha_block_cached__gqa_block_cached__near_ridge"
BLK, SLOT = 8448, 16896
KPOS = [0, 1040, 2112, 3152]
MF = "v_mfma_f32_16x16x32_bf16"

class Cfg:
    D = 4
    NF = 8
    WP = 2
    pol_x = ""
    pol_wq = ""
    pol_kv = "nt"
    pol_wo = ""
    pol_st = ""
    rot = True
    stamps = False
    code_pf = True
    TH = 0x4B800000
    ws_off = 0
    kv_early = [4, 5, 7, 8, 10, 12, 13]
    kv_last_step = 42

S_X, S_WQ, S_K, S_V, S_WO, S_WS = 8, 12, 16, 20, 24, 28
S_W, S_LDSW, S_LDSX = 32, 33, 35
S_WQOFF, S_XOFF, S_WOOFF, S_STOFF = 36, 43, 56, 63
S_T0, S_T1, S_C, S_TH, S_RET = 50, 51, 52, 53, 54
S_STAMP = 72
V_S, V_NEGM, V_L, V_E = 192, 216, 228, 120
V_P = 96
V_DKV, V_DWQ, V_DX, V_DWO = 240, 241, 242, 243
V_RK, V_RT, V_RO, V_RX, V_ST = 244, 247, 250, 253, 255
V_RINV = 236
A_ONE, A_FR = 192, 208

def steps_list():
    st = [("W", k) for k in range(14)] + [("K", 0)]
    for j in range(1, 16):
        st += [("K", j), ("V", j - 1)]
    st += [("V", 15)]
    st += [("O", k) for k in range(14)]
    return st

def srd(d, lo, hi, nbytes):
    return [f"s_mov_b32 s{d}, s{lo}", f"s_and_b32 s{d+1}, s{hi}, 0xffff", f"s_mov_b32 s{d+2}, {nbytes}",
            f"s_mov_b32 s{d+3}, 0x00020000"]

def prologue(c):
    o = ["s_cmp_ge_u32 s2, 256", "s_cbranch_scc1 L_end"]
    if c.stamps:
        o += [f"s_memrealtime s[{S_STAMP}:{S_STAMP+1}]"]
    o += ["s_load_dwordx8 s[76:83], s[0:1], 0", "s_load_dwordx2 s[84:85], s[0:1], 32",
          "s_load_dwordx2 s[86:87], s[0:1], 40", "s_load_dwordx8 s[88:95], s[0:1], 48",
          "s_load_dwordx2 s[96:97], s[0:1], 96",
          "v_lshrrev_b32 v1, 6, v0", "v_and_b32 v2, 63, v0", f"v_readfirstlane_b32 s{S_W}, v1",
          "s_and_b32 s6, s2, 7", "s_lshr_b32 s7, s2, 3", "s_lshr_b32 s3, s6, 2", "s_and_b32 s5, s6, 3",
          "s_lshl_b32 s5, s5, 2", "s_and_b32 s6, s7, 3", "s_add_u32 s5, s5, s6", "s_lshr_b32 s4, s7, 2"]
    if c.rot:
        o += ["s_lshl_b32 s98, s6, 1", "s_add_u32 s98, s98, s4", "s_cmp_ge_u32 s98, 7", "s_cselect_b32 s99, 7, 0",
              "s_sub_u32 s98, s98, s99", "s_cmp_ge_u32 s98, 7", "s_cselect_b32 s99, 7, 0", "s_sub_u32 s98, s98, s99"]
    else:
        o += ["s_mov_b32 s98, 0"]
    for k in range(7):
        o += [f"s_lshl_b32 s{S_WQOFF+k}, s98, 19", f"s_lshl_b32 s{S_XOFF+k}, s98, 7"]
        if k < 6:
            o += ["s_add_u32 s98, s98, 1", "s_cmp_eq_u32 s98, 7", "s_cselect_b32 s98, 0, s98"]
    o += ["v_lshrrev_b32 v3, 5, v2", "v_and_b32 v4, 31, v2", "v_lshlrev_b32 v4, 4, v4",
          f"s_lshr_b32 s98, s{S_W}, 1", f"s_and_b32 s99, s{S_W}, 1",
          "v_lshrrev_b32 v5, 3, v2", "v_lshrrev_b32 v6, 4, v2", "v_lshlrev_b32 v7, 1, v6", "v_and_b32 v8, 7, v2",
          "v_xor_b32 v7, v7, v8", "v_lshlrev_b32 v7, 4, v7", f"s_mul_i32 s{S_T0}, s{S_W}, 43008",
          "v_mul_u32_u24 v9, 896, v5", f"v_add3_u32 v{V_DX}, v9, v7, s{S_T0}",
          f"s_lshl_b32 s{S_T0}, s99, 16", f"s_lshl_b32 s{S_T1}, s98, 15", f"s_add_u32 s{S_T0}, s{S_T0}, s{S_T1}",
          "v_lshlrev_b32 v9, 17, v3", f"v_add3_u32 v{V_DWQ}, v9, v4, s{S_T0}",
          f"s_mul_i32 s{S_LDSW}, s98, {BLK}", f"s_mul_i32 s{S_T0}, s99, 4224", f"s_add_u32 s{S_LDSW}, s{S_LDSW}, s{S_T0}",
          f"s_mul_i32 s{S_LDSX}, s{S_W}, 6144",
          "s_waitcnt lgkmcnt(0)",
          "s_cmp_eq_u32 s3, 0"]
    for k in range(10):
        o += [f"s_cselect_b32 s{76+k}, s{76+k}, s{86+k}"]
    o += [f"s_mul_i32 s{S_T0}, s4, 172032", f"s_add_u32 s76, s76, s{S_T0}", "s_addc_u32 s77, s77, 0"]
    o += srd(S_X, 76, 77, 172032)
    o += [f"s_lshl_b32 s{S_T0}, s5, 9", f"s_add_u32 s82, s82, s{S_T0}", "s_addc_u32 s83, s83, 0"]
    o += srd(S_WQ, 82, 83, 447 * 8192 + 512)
    return o

def prologue2(c):
    o = ["s_lshl_b32 s7, s4, 4", "s_add_u32 s7, s7, s5", f"s_lshl_b32 s{S_T0}, s7, 18",
         f"s_add_u32 s78, s78, s{S_T0}", "s_addc_u32 s79, s79, 0",
         f"s_add_u32 s80, s80, s{S_T0}", "s_addc_u32 s81, s81, 0"]
    o += srd(S_K, 78, 79, 262144) + srd(S_V, 80, 81, 262144)
    o += [f"s_mul_i32 s{S_T0}, s5, 229376", f"s_add_u32 s84, s84, s{S_T0}", "s_addc_u32 s85, s85, 0"]
    o += srd(S_WO, 84, 85, 229376)
    o += [f"s_lshl_b32 s{S_T0}, s3, 7", f"s_add_u32 s7, s7, s{S_T0}", f"s_mul_i32 s{S_T0}, s7, 172032",
          f"s_add_u32 s{S_T0}, s{S_T0}, {c.ws_off}",
          f"s_add_u32 s100, s96, s{S_T0}", "s_addc_u32 s101, s97, 0"]
    o += srd(S_WS, 100, 101, 172032)
    if c.rot:
        o += ["s_cmp_eq_u32 s4, 7", f"s_cselect_b32 s{S_T0}, 0, s4"]
    else:
        o += [f"s_mov_b32 s{S_T0}, 0"]
    for k in range(7):
        o += [f"s_lshl_b32 s{S_WOOFF+k}, s{S_T0}, 7", f"s_mul_i32 s{S_STOFF+k}, s{S_T0}, 24576"]
        if k < 6:
            o += [f"s_add_u32 s{S_T0}, s{S_T0}, 1", f"s_cmp_eq_u32 s{S_T0}, 7", f"s_cselect_b32 s{S_T0}, 0, s{S_T0}"]
    o += [f"s_mov_b32 s{S_C}, 0x3db8aa3b", f"s_mov_b32 s{S_TH}, {c.TH}",
          f"s_lshl_b32 s{S_T0}, s98, 13", f"s_lshl_b32 s{S_T1}, s99, 11", f"s_add_u32 s{S_T0}, s{S_T0}, s{S_T1}",
          "v_lshlrev_b32 v9, 12, v3", f"v_add3_u32 v{V_DKV}, v9, v4, s{S_T0}",
          f"s_mul_i32 s{S_T0}, s98, {64*896}", f"s_mul_i32 s{S_T1}, s99, {4*896}", f"s_add_u32 s{S_T0}, s{S_T0}, s{S_T1}",
          "v_mul_u32_u24 v9, 7168, v5", "v_lshlrev_b32 v10, 4, v8", f"v_add3_u32 v{V_DWO}, v9, v10, s{S_T0}",
          "v_lshlrev_b32 v9, 4, v2", f"v_add_u32 v{V_ST}, s{S_LDSX}, v9",
          "v_lshrrev_b32 v9, 2, v2", "v_and_b32 v9, 7, v9", "v_mul_u32_u24 v9, 1056, v9",
          "v_and_b32 v10, 3, v2", "v_lshlrev_b32 v11, 3, v10", "v_add_u32 v9, v9, v11",
          f"v_lshl_add_u32 v{V_RT}, v3, 9, v9", f"v_lshl_add_u32 v{V_RO}, v3, 7, v9",
          "v_lshlrev_b32 v9, 10, v8", "v_and_b32 v11, 1, v2", "v_lshl_add_u32 v9, v11, 4, v9",
          "v_lshrrev_b32 v11, 1, v8", "v_lshl_add_u32 v9, v11, 6, v9",
          "v_and_b32 v11, 1, v5", "v_lshl_add_u32 v9, v11, 9, v9",
          "v_and_b32 v11, 1, v6", "v_lshl_add_u32 v9, v11, 5, v9", f"v_lshl_add_u32 v{V_RK}, v3, 4, v9",
          "v_and_b32 v9, 15, v2", "v_lshlrev_b32 v9, 7, v9", "v_and_b32 v11, 6, v2", "v_xor_b32 v11, v11, v6",
          "v_lshl_add_u32 v9, v11, 4, v9", f"s_add_u32 s{S_T0}, s{S_LDSX}, {10*BLK}",
          f"v_add_u32 v{V_RX}, s{S_T0}, v9", "v_xor_b32 v9, 64, v9", f"v_add_u32 v{V_RX+1}, s{S_T0}, v9"]
    for base in (V_RK, V_RT, V_RO):
        o += [f"v_add_u32 v{base+1}, {3*SLOT}, v{base}", f"v_add_u32 v{base+2}, {6*SLOT}, v{base}"]
    o += ["v_mov_b32 v11, 0x3f803f80"]
    for t in range(3):
        o += [f"v_cmp_eq_u32 vcc, {t}, v10", "s_nop 1", "v_cndmask_b32 v9, 0, v11, vcc"]
        o += [f"v_accvgpr_write_b32 a{A_ONE+4*t+r}, v9" for r in range(4)]
    o += [f"v_mov_b32 v{V_L+4+r}, 0" for r in range(4)]
    return o

def qacc(t, q):
    return ((t >> 1) * 3 + q) * 8 + (t & 1) * 4
def sreg(kt, q):
    return V_S + (kt * 3 + q) * 4
def preg(j, q):
    return V_P + (j & 1) * 12 + q * 4
def lreg(j):
    return V_L + (j & 1) * 4
def oacc(ch, nt, q):
    return (144 if ch % 2 == 0 else 96) + (q * 4 + nt) * 4

def softmax_items(j, kt, tmp):
    out, pend = [], None
    for q in range(3):
        for hf in range(2):
            e = V_E + 2 * (tmp[0] % 4)
            tmp[0] += 1
            out.append(Ins(f"v_exp_f32 v{e}, v{sreg(kt,q)+2*hf}", 2, meta=q))
            if pend:
                out.append(pend)
            out.append(Ins(f"v_exp_f32 v{e+1}, v{sreg(kt,q)+2*hf+1}", 2, meta=q))
            pend = Ins(f"v_cvt_pk_bf16_f32 v{preg(j,q)+2*kt+hf}, v{e}, v{e+1}", 1, meta=q)
    return out, pend

def rowmax(dst, t):
    o = []
    for q in range(3):
        a, b = sreg(0, q), sreg(1, q)
        o += [f"v_max3_f32 v{dst+q}, v{a}, v{a+1}, v{a+2}", f"v_max3_f32 v{dst+q}, v{dst+q}, v{a+3}, v{b}",
              f"v_max3_f32 v{dst+q}, v{dst+q}, v{b+1}, v{b+2}", f"v_max_f32 v{dst+q}, v{dst+q}, v{b+3}"]
    for op in ("v_permlane32_swap_b32", "v_permlane16_swap_b32"):
        o += [f"v_mov_b32 v{t+q}, v{dst+q}" for q in range(3)]
        o += ["s_nop 0"]
        o += [f"{op} v{t+q}, v{dst+q}" for q in range(3)]
        o += [f"v_max_f32 v{dst+q}, v{dst+q}, v{t+q}" for q in range(3)]
    return o

def ones_mfma(j):
    o = []
    for q in range(3):
        cin = vr(lreg(j - 1), 4) if q == 0 else vr(lreg(j), 4)
        o.append(f"{MF} {vr(lreg(j),4)}, {ar(A_ONE+4*q,4)}, {vr(preg(j,q),4)}, {cin}")
    return o

def rare_path(par):
    j = par
    D, F, T = 128, 132, 136
    o = [f"L_rare{par}:", "s_nop 7", "s_nop 7"]
    o += rowmax(D, T)
    o += [f"v_max_f32 v{D+q}, 0, v{D+q}" for q in range(3)]
    o += [f"v_exp_f32 v{F+q}, -v{D+q}" for q in range(3)]
    for q in range(3):
        o += [f"v_sub_f32 v{V_NEGM+4*q+r}, v{V_NEGM+4*q+r}, v{D+q}" for r in range(4)]
        for kt in range(2):
            o += [f"v_sub_f32 v{sreg(kt,q)+r}, v{sreg(kt,q)+r}, v{D+q}" for r in range(4)]
        o += [f"v_mul_f32 v{lreg(j-1)+q}, v{lreg(j-1)+q}, v{F+q}"]
    tmp = [0]
    for kt in range(2):
        it, pend = softmax_items(j, kt, tmp)
        o += [x.text for x in it] + ["s_nop 0", pend.text]
    for t in range(16):
        for q in range(3):
            a = (t * 3 + q) * 4
            o += [f"v_accvgpr_read_b32 v{T+r}, a{a+r}" for r in range(4)]
            o += [f"v_mul_f32 v{T+r}, v{T+r}, v{F+q}" for r in range(4)]
            o += [f"v_accvgpr_write_b32 a{a+r}, v{T+r}" for r in range(4)]
    o += ["s_nop 1"] + ones_mfma(j) + ["s_nop 7", "s_nop 7", f"s_setpc_b64 s[{S_RET}:{S_RET+1}]"]
    return o

def build_main(c):
    steps = steps_list()
    idx = {s: n for n, s in enumerate(steps)}
    tl = Timeline()
    G = {}
    ONES = {}
    fb = lambda F: A_FR + 4 * (F % c.NF)
    for n, (ty, k) in enumerate(steps):
        for f in range(16):
            A = ar(fb(16 * n + f), 4)
            for q in range(3):
                if ty == "W":
                    d = vr(qacc(f, q), 4)
                    t = f"{MF} {d}, {A}, {ar((k*3+q)*4,4)}, {d if k else 0}"
                elif ty == "K":
                    kt, s = f >> 3, f & 7
                    d = vr(sreg(kt, q), 4)
                    cin = d if s else (vr(V_NEGM + 4 * q, 4) if k else 0)
                    t = f"{MF} {d}, {A}, {vr((s*3+q)*4,4)}, {cin}"
                elif ty == "V":
                    d = ar((f * 3 + q) * 4, 4)
                    t = f"{MF} {d}, {A}, {vr(preg(k,q),4)}, {d if k else 0}"
                else:
                    ch, s, nt = k >> 1, (k & 1) * 4 + (f >> 2), f & 3
                    d = vr(oacc(ch, nt, q), 4)
                    t = f"{MF} {d}, {A}, {vr((s*3+q)*4,4)}, {d if s else 0}"
                i = tl.add_mfma(t)
                if q == 0:
                    G[(n, f)] = i
            if ty == "V" and k < 15 and f == 12:
                for t in ones_mfma(k + 1):
                    ONES[k + 1] = tl.add_mfma(t)
        if (ty, k) == ("K", 1):
            pass
    NM = len(tl.mf)
    gF = lambda F: G[(F // 16, F % 16)]
    end_of = lambda n: (G[(n + 1, 0)] - 1) if n + 1 < len(steps) else NM - 1

    slot_of, xreg = {}, lambda kc: [16, 13, 10][kc % 3] * BLK
    x_issue = {0: -1, 1: -1, 2: 0, 3: 0, 4: 1, 5: 2, 6: 3}
    x_read = {0: -1, 1: 0, 2: 1, 3: 2, 4: 3, 5: 4, 6: 5}
    slot_free_at = {0: -1, 1: -1, 2: -1, 3: -1, 4: -1, 7: x_read[4] + 2, 5: x_read[5] + 2, 6: x_read[5] + 2, 8: x_read[6] + 2}
    plan = []
    def add(kind, i, pos0, pos1, npieces):
        for p in range(npieces):
            plan.append((pos0 + (pos1 - pos0) * (p + 0.5) / npieces, kind, i, p))
    per_step = {}
    for m in range(2, 14):
        per_step.setdefault(m - 2, []).append(("S", m, 4))
    for kc in range(2, 7):
        per_step.setdefault(x_issue[kc], []).append(("X", kc, 6))
    for m, n in zip(range(14, 14 + len(c.kv_early)), c.kv_early):
        per_step.setdefault(n, []).append(("S", m, 4))
    L = c.kv_last_step
    wo_steps = [L+1, L+2, L+2, L+3, L+3, L+4, L+4, L+5, L+5, L+6, L+7, L+8, L+9, L+10]
    for m, n in zip(range(46, 60), wo_steps):
        per_step.setdefault(n, []).append(("S", m, 4))
    for n, items in per_step.items():
        tot = sum(x[2] for x in items)
        at = 0
        for kind, i, npc in items:
            add(kind, i, n + at / tot, n + (at + npc) / tot, npc)
            at += npc
    m0 = 14 + len(c.kv_early)
    for m in range(m0, 46):
        w = (L + 1 - 14) / (46 - m0)
        add("S", m, 14 + (m - m0) * w, 14 + (m - m0 + 1) * w, 4)
    plan.sort(key=lambda x: x[0])
    pro = [("X", 0, p) for p in range(6)] + [("S", 0, p) for p in range(4)] + [("S", 1, p) for p in range(4)] + \
          [("X", 1, p) for p in range(6)]
    def alloc(m, n):
        cand = sorted((v, s) for s, v in slot_free_at.items() if v <= n)
        assert cand, f"no free slot for stage {m} at step {n}"
        s = cand[0][1]
        slot_of[m] = s
        slot_free_at[s] = m + 2
    def dma(kind, i, p):
        if kind == "X":
            return [Ins(f"s_add_u32 m0, s{S_LDSX}, {xreg(i) + 1024*p}"),
                    Ins(f"s_add_u32 s{S_T0}, s{S_XOFF+i}, {7168*p}"),
                    Ins(f"buffer_load_dwordx4 v{V_DX}, s[{S_X}:{S_X+3}], s{S_T0} offen {c.pol_x} lds", 1, "vm", ("X", i))]
        ty, k = steps[i]
        base = slot_of[i] * SLOT
        if ty == "W":
            return [Ins(f"s_add_u32 m0, s{S_LDSW}, {base + 1056*p}"),
                    Ins(f"s_add_u32 s{S_T0}, s{S_WQOFF+(k>>1)}, {((k&1)*32 + p)*8192}"),
                    Ins(f"buffer_load_dwordx4 v{V_DWQ}, s[{S_WQ}:{S_WQ+3}], s{S_T0} offen {c.pol_wq} lds", 1, "vm", ("S", i))]
        o = []
        if ty in "KV":
            pos, g, sr, v, pol = (KPOS[p] if ty == "K" else 1056 * p), 512 * p, (S_K if ty == "K" else S_V), V_DKV, c.pol_kv
            if p == 0:
                o.append(Ins(f"s_mov_b32 s{S_T1}, {k*16384}"))
        else:
            pos, g, sr, v, pol = 1056 * p, 896 * p, S_WO, V_DWO, c.pol_wo
            if p == 0:
                o.append(Ins(f"s_add_u32 s{S_T1}, s{S_WOOFF+(k>>1)}, {(k&1)*128*896}"))
        o.append(Ins(f"s_add_u32 m0, s{S_LDSW}, {base + pos - g}"))
        off = f" offset:{g}" if g else ""
        o.append(Ins(f"buffer_load_dwordx4 v{v}, s[{sr}:{sr+3}], s{S_T1} offen{off} {pol} lds", 1, "vm", ("S", i)))
        return o
    alloc(0, -1); alloc(1, -1)
    for pos, kind, i, p in plan:
        if kind == "S" and p == 0:
            alloc(i, int(pos))

    def reads(F):
        n, f = F // 16, F % 16
        ty, k = steps[n]
        s = slot_of[n]
        win, base, r = s // 3, (s % 3) * SLOT, fb(F)
        if ty == "K":
            return [Ins(f"ds_read_b128 {ar(r,4)}, v{V_RK+win} offset:{base + (f>>3)*BLK + (f&7)*64}", 1, "ds", F)]
        if ty in "WV":
            o0, o1 = base + f * 32, base + BLK + f * 32
            v = V_RT + win
        else:
            s4, nt = f >> 2, f & 3
            o0 = base + (s4 >> 1) * BLK + (s4 & 1) * 512 + nt * 32
            o1, v = o0 + 256, V_RO + win
        return [Ins(f"ds_read_b64_tr_b16 {ar(r,2)}, v{v} offset:{o0}", 1, "ds", F),
                Ins(f"ds_read_b64_tr_b16 {ar(r+2,2)}, v{v} offset:{o1}", 1, "ds", F)]
    def xreads(kc):
        o = []
        for s in range(2):
            for q in range(3):
                o.append(Ins(f"ds_read_b128 {ar(((2*kc+s)*3+q)*4,4)}, v{V_RX+s} offset:{xreg(kc) - 10*BLK + q*2048}", 1, "ds", ("X", kc)))
        return o

    for t in prologue(c):
        tl.put(-1, Ins(t))
    for kind, i, p in pro[:14]:
        for x in dma(kind, i, p):
            tl.put(-1, x)
    if c.code_pf:
        for t in ["s_getpc_b64 s[70:71]", f"s_lshr_b32 s{S_T0}, s2, 3", f"s_lshl_b32 s{S_T0}, s{S_T0}, 11",
                  f"s_add_u32 s70, s70, s{S_T0}", "s_addc_u32 s71, s71, 0", "v_and_b32 v12, 15, v2", "v_lshlrev_b32 v12, 7, v12"]:
            tl.put(-1, Ins(t))
        tl.put(-1, Ins("global_load_dword v239, v12, s[70:71]", 1, "vm", "pf"))
    for t in prologue2(c):
        tl.put(-1, Ins(t))
    for kind, i, p in pro[14:]:
        for x in dma(kind, i, p):
            tl.put(-1, x)
    tl.put(-1, Ins("", 1, "waitv", {("X", 0), ("S", 0)}))
    tl.put(-1, Ins("s_barrier"))
    for x in xreads(0):
        tl.put(-1, x)
    for F in range(c.D):
        for x in reads(F):
            tl.put(-1, x)

    NFR = 16 * len(steps)
    for F in range(c.D, NFR):
        for x in reads(F):
            tl.put(gF(F - c.D), x)
    for F in range(0, NFR, c.WP):
        need = set(range(F, F + c.WP))
        n = F // 16
        if F % 16 == 0 and steps[n][0] == "W" and n % 2 == 0:
            need.add(("X", n // 2))
        tl.put_last(gF(F) - 1, Ins("", 1, "waitl", need))
    for n in range(len(steps) - 1):
        g = gF(16 * (n + 1) - c.D - 1)
        need = {("S", n + 1)}
        for kc, r in x_read.items():
            if r == n:
                need.add(("X", kc))
        tl.put(g + 1, Ins("", 1, "waitv", need))
        tl.put(g + 2, Ins("s_barrier"))
        for kc, r in x_read.items():
            if r == n:
                tl.chain(xreads(kc), g + 3, end_of(n) - 1)

    nW, nK0 = idx[("W", 13)], idx[("K", 0)]
    cur = G[(nW, 1)] + 6
    for s in range(8):
        it = []
        ready = G[(nW, 2 * s + 1)] + 7
        for q in range(3):
            src, dst = (s * 3 + q) * 8, (s * 3 + q) * 4
            it += [Ins(f"v_mul_f32 v{src+r}, s{S_C}, v{src+r}") for r in range(8)]
            it += [Ins(f"v_cvt_pk_bf16_f32 v{dst+r}, v{src+2*r}, v{src+2*r+1}") for r in range(4)]
        for q in range(3):
            dst = (s * 3 + q) * 4
            it += [Ins(f"v_permlane16_swap_b32 v{dst}, v{dst+2}"), Ins(f"v_permlane16_swap_b32 v{dst+1}, v{dst+3}")]
        lo = max(cur, ready)
        hi = max(lo, G[(nK0, s)] - 2)
        assert lo <= G[(nK0, s)] - 2, (s, lo)
        span_hi = min(hi, lo + 8)
        cur = tl.chain(it, lo, span_hi)[-1]

    e0 = end_of(nK0)
    o = ["s_nop 7"] + rowmax(128, 132)
    for q in range(3):
        o += [f"v_sub_f32 v{V_NEGM+4*q+r}, 0, v{128+q}" for r in range(4)]
        for kt in range(2):
            o += [f"v_sub_f32 v{sreg(kt,q)+r}, v{sreg(kt,q)+r}, v{128+q}" for r in range(4)]
    tmp = [0]
    for kt in range(2):
        it, pend = softmax_items(0, kt, tmp)
        o += [x.text for x in it] + ["s_nop 0", pend.text]
    o += ["s_nop 1"] + ones_mfma(0)
    for t in o:
        tl.put(e0, Ins(t))

    for j in range(1, 16):
        nK, nV = idx[("K", j)], idx[("V", j - 1)]
        i0, p0 = softmax_items(j, 0, tmp)
        i1, p1 = softmax_items(j, 1, tmp)
        r0, r1 = G[(nK, 7)] + 5, G[(nK, 15)] + 5
        it = [(x, r0 + x.meta) for x in i0]
        it += [(i1[0], r1), (p0, r1)] + [(x, r1 + x.meta) for x in i1[1:]] + [(p1, r1)]
        tl.chain(it, r0, ONES[j] - 5)
        l = lreg(j)
        tl.chain([Ins(f"v_max3_f32 v{V_RINV}, v{l}, v{l+1}, v{l+2}"), Ins(f"v_cmp_nge_f32 vcc, s{S_TH}, v{V_RINV}")],
                 ONES[j] + 5, end_of(nV) - 1)
        tl.put(end_of(nV), Ins(f"s_cbranch_vccnz L_stub{j}"))
        tl.put(end_of(nV), Ins(f"L_back{j}:", 0))

    nV15, nO0 = idx[("V", 15)], idx[("O", 0)]
    tl.chain([Ins(f"v_rcp_f32 v{V_RINV+q}, v{lreg(15)+q}", 2) for q in range(3)], G[(nV15, 0)], G[(nV15, 2)])
    cur = G[(nV15, 1)] + 7
    for s in range(8):
        it = []
        for q in range(3):
            for tp in range(2):
                a = ((2 * s + tp) * 3 + q) * 4
                T = 216 + 4 * tp
                it += [Ins(f"v_accvgpr_read_b32 v{T+r}, a{a+r}") for r in range(4)]
                it += [Ins(f"v_cvt_pk_bf16_f32 v{(s*3+q)*4+2*tp+h}, v{T+2*h}, v{T+2*h+1}") for h in range(2)]
        ready = G[(nV15, 2 * s + 1)] + 7
        lo = max(cur, ready)
        dead = G[(nO0 + (s >> 2), (s & 3) * 4)] - 2
        assert lo <= dead
        hi = min(dead, lo + (dead - lo if s == 7 else 17))
        cur = tl.chain(it, lo, hi)[-1]

    tail = []
    for ch in range(7):
        it = []
        for q in range(3):
            for p in range(2):
                a = oacc(ch, 2 * p, q)
                T = 192 + 4 * ((q * 2 + p) % 6)
                it += [Ins(f"v_mul_f32 v{a+r}, v{a+r}, v{V_RINV+q}") for r in range(8)]
                it += [Ins(f"v_cvt_pk_bf16_f32 v{T+r}, v{a+2*r}, v{a+2*r+1}") for r in range(4)]
                pc = q * 2 + p
                if pc < 4:
                    it += [Ins(f"buffer_store_dwordx4 {vr(T,4)}, v{V_ST}, s[{S_WS}:{S_WS+3}], s{S_STOFF+ch} offen offset:{pc*1024} {c.pol_st}", 1, "vm", ("st", ch))]
                else:
                    if pc == 4:
                        it += [Ins(f"s_add_u32 s{S_STOFF+ch}, s{S_STOFF+ch}, 4096")]
                    it += [Ins(f"buffer_store_dwordx4 {vr(T,4)}, v{V_ST}, s[{S_WS}:{S_WS+3}], s{S_STOFF+ch} offen offset:{(pc-4)*1024} {c.pol_st}", 1, "vm", ("st", ch))]
        if ch < 6:
            n = nO0 + 2 * ch + 2
            tl.chain(it, G[(n, 0)] + 5, end_of(n + 1) - 2)
        else:
            tail = it

    cur = 0
    for pos, kind, i, p in plan:
        n = int(pos)
        lo = G[(n, 0)] + int((pos - n) * (end_of(n) - G[(n, 0)] - 2))
        if kind == "X":
            lo = max(lo, G[(n, min(15, c.D + c.WP))])
        lo = max(lo, cur)
        ins = dma(kind, i, p)
        ps = tl.chain(ins[:-1], lo, lo + 8)
        cur = tl.chain(ins[-1:], ps[-1] + 1, ps[-1] + 6)[-1]

    if c.stamps:
        for k, n in enumerate([0, nK0, nO0]):
            tl.gaps[G[(n, 0)]].insert(0, Ins(f"s_memrealtime s[{S_STAMP+2+2*k}:{S_STAMP+3+2*k}]", 1, "stamp"))
    lin = tl.linear()
    lin += [Ins("s_nop 7")] + tail
    if c.stamps:
        l2 = []
        for x in lin:
            l2.append(x)
            if x.tag == "stamp":
                l2.append(Ins("s_waitcnt lgkmcnt(0)"))
        lin = l2
    resolve_waits(lin)
    verify(lin, steps, slot_of, c)
    texts = [x.text for x in lin]
    if c.stamps:
        texts += [f"s_memrealtime s[80:81]", "s_waitcnt vmcnt(0)", "s_memrealtime s[82:83]", "s_waitcnt lgkmcnt(0)"]
        texts += srd(4, 96, 97, 0x10000000)
        texts += [f"v_mov_b32 v{r}, s{S_STAMP+2*r}" for r in range(6)]
        texts += ["v_mov_b32 v8, 0", "s_lshl_b32 s3, s2, 5", "s_add_u32 s3, s3, 0x8000000",
                  f"s_cmp_lg_u32 s{S_W}, 0", "s_cbranch_scc1 L_end", "s_mov_b64 exec, 1",
                  "buffer_store_dwordx4 v[0:3], v8, s[4:7], s3 offen", "buffer_store_dwordx2 v[4:5], v8, s[4:7], s3 offen offset:16"]
    texts, probs = check_hazards(texts, fix=True)
    stats = dict(n=len(texts), nops=len(probs), nopstates=sum(p[1] for p in probs),
                 over=[sum(max(0, tl.load(i) - 2) for i in range(G[(n, 0)], end_of(n) + 1)) for n in range(len(steps))])
    texts += ["L_end:", "s_endpgm"]
    for j in range(1, 16):
        texts += [f"L_stub{j}:", f"s_call_b64 s[{S_RET}:{S_RET+1}], L_rare{j&1}", f"s_branch L_back{j}"]
    for par in range(2):
        t, _ = check_hazards(rare_path(par + 2), fix=True)
        t[0] = f"L_rare{par}:"
        texts += t
    return texts, stats, probs

def verify(lin, steps, slot_of, c):
    pending, lq = {}, []
    landed, visible, vq = set(), set(), []
    last_read_epoch, epoch, cur_stage_in_slot = {}, 0, {}
    cnt = {}
    for ins in lin:
        t = ins.text
        if ins.tag == "vm":
            vq.append(ins.meta)
            if isinstance(ins.meta, tuple) and ins.meta[0] == "X" and ins.meta[1] >= 3:
                assert cnt.get(("X", ins.meta[1] - 3), 0) == 6, ("x region reused early", ins.meta)
            if isinstance(ins.meta, tuple) and ins.meta[0] == "S":
                m = ins.meta[1]
                s = slot_of[m]
                old = cur_stage_in_slot.get(s)
                if old is not None and old != m:
                    assert cnt.get(old, 0) == (16 if steps[old][0] == "K" else 32), ("slot reused early", m, old)
                    assert last_read_epoch[old] < epoch, ("slot reuse without barrier", m, old)
                cur_stage_in_slot[s] = m
        elif t.startswith("s_waitcnt"):
            mv = re.search(r"vmcnt\((\d+)\)", t)
            if mv:
                n = int(mv.group(1))
                done, vq = vq[:max(0, len(vq) - n)], vq[max(0, len(vq) - n):]
                for d in done:
                    if d not in vq:
                        landed.add(d)
            ml = re.search(r"lgkmcnt\((\d+)\)", t)
            if ml:
                n = int(ml.group(1))
                done, lq = lq[:max(0, len(lq) - n)], lq[max(0, len(lq) - n):]
                for rs, tok in done:
                    for r in rs:
                        pending.pop(r, None)
                    if isinstance(tok, int):
                        cnt[tok // 16] = cnt.get(tok // 16, 0) + 1
                        last_read_epoch[tok // 16] = epoch
                    else:
                        cnt[tok] = cnt.get(tok, 0) + 1
        elif t == "s_barrier":
            visible |= landed
            epoch += 1
        elif ins.tag == "ds":
            kind, wr, rd, _ = rw(t)
            tok = ins.meta
            if isinstance(tok, int):
                assert ("S", tok // 16) in visible, ("read before visible", tok)
            else:
                assert tok in landed, ("x read before landed", tok)
            lq.append((wr, tok))
            for r in wr:
                pending[r] = tok
        elif t.startswith("v_mfma"):
            kind, wr, rd, cc = rw(t)
            for r in rd:
                assert r not in pending, ("mfma reads in-flight fragment", t)

def build_reduce(c):
    o = ["s_cmp_ge_u32 s2, 672", "s_cbranch_scc1 L_rend",
         "s_load_dwordx2 s[4:5], s[0:1], 80", "s_load_dwordx2 s[6:7], s[0:1], 96",
         "v_lshrrev_b32 v1, 6, v0", "v_and_b32 v2, 63, v0", "v_readfirstlane_b32 s16, v1",
         "s_mul_i32 s17, s2, 1561", "s_lshr_b32 s17, s17, 16", "s_mul_i32 s18, s17, 42", "s_sub_u32 s18, s2, s18",
         "s_lshl_b32 s18, s18, 2", "s_add_u32 s18, s18, s16",
         "s_mul_i32 s19, s17, 2752512", "s_lshl_b32 s20, s18, 10", "s_add_u32 s19, s19, s20",
         f"s_add_u32 s19, s19, {c.ws_off}",
         "v_lshlrev_b32 v3, 4, v2", "s_waitcnt lgkmcnt(0)"]
    o += srd(8, 6, 7, 0x10000000) + srd(12, 4, 5, 8 * 192 * 896 * 2)
    for h in range(16):
        o += [f"buffer_load_dwordx4 v[{16+4*h}:{19+4*h}], v3, s[8:11], s19 offen {c.pol_rd}", "s_add_u32 s19, s19, 172032"]
    o += ["s_mul_i32 s20, s18, 2731", "s_lshr_b32 s20, s20, 16", "s_mul_i32 s21, s20, 24", "s_sub_u32 s21, s18, s21",
          "s_and_b32 s22, s21, 1", "s_lshr_b32 s21, s21, 1",
          "s_and_b32 s23, s17, 7", "s_lshr_b32 s24, s17, 3",
          "s_mul_i32 s23, s23, 344064", "s_mul_i32 s24, s24, 896", "s_add_u32 s23, s23, s24",
          "s_mul_i32 s21, s21, 28672", "s_add_u32 s23, s23, s21", "s_lshl_b32 s20, s20, 7", "s_add_u32 s23, s23, s20",
          "s_lshl_b32 s22, s22, 6", "s_add_u32 s23, s23, s22",
          "v_and_b32 v4, 15, v2", "v_mul_u32_u24 v4, 1792, v4", "v_lshrrev_b32 v5, 4, v2", "v_and_b32 v5, 1, v5",
          "v_lshl_add_u32 v4, v5, 5, v4", "v_lshrrev_b32 v5, 5, v2", "v_lshl_add_u32 v4, v5, 4, v4",
          "s_mov_b32 s25, 0xffff0000"]
    for h in range(16):
        o += [f"s_waitcnt vmcnt({15-h})"]
        for r in range(4):
            s = 16 + 4 * h + r
            if h == 0:
                o += [f"v_lshlrev_b32 v{8+2*r}, 16, v{s}", f"v_and_b32 v{9+2*r}, s25, v{s}"]
            else:
                o += [f"v_lshlrev_b32 v6, 16, v{s}", f"v_and_b32 v7, s25, v{s}",
                      f"v_add_f32 v{8+2*r}, v{8+2*r}, v6", f"v_add_f32 v{9+2*r}, v{9+2*r}, v7"]
    o += [f"v_cvt_pk_bf16_f32 v{16+r}, v{8+2*r}, v{9+2*r}" for r in range(4)]
    o += ["s_nop 1", "v_permlane16_swap_b32 v16, v18", "v_permlane16_swap_b32 v17, v19",
          "buffer_store_dwordx4 v[16:19], v4, s[12:15], s23 offen", "L_rend:", "s_endpgm"]
    return check_hazards(o, fix=True)[0]
Cfg.pol_rd = ""

def desc(label, vgpr, accum, sgpr):
    return f""".amdhsa_kernel {label}
  .amdhsa_next_free_vgpr {vgpr}
  .amdhsa_next_free_sgpr {sgpr}
  .amdhsa_accum_offset {accum}
  .amdhsa_group_segment_fixed_size 0
  .amdhsa_kernarg_size 104
  .amdhsa_user_sgpr_count 2
  .amdhsa_user_sgpr_kernarg_segment_ptr 1
  .amdhsa_system_sgpr_workgroup_id_x 1
  .amdhsa_float_denorm_mode_32 3
.end_amdhsa_kernel
"""

def emit(c, path):
    main, stats, probs = build_main(c)
    red = build_reduce(c)
    K1, K2 = NAME + "_kernel", "head_reduce_kernel"
    s = f"; @launch kernel={K1} grid=(256,1,1) block=(256,1,1) lds=163840\n"
    s += f"; @launch kernel={K2} grid=(672,1,1) block=(256,1,1) lds=0\n"
    s += '.amdgcn_target "amdgcn-amd-amdhsa--gfx950"\n.text\n'
    for label, body in ((K2, red), (K1, main)):
        s += f".globl {label}\n.p2align 8\n.type {label},@function\n{label}:\n"
        s += "\n".join(x if x.endswith(":") else "    " + " ".join(x.split()) for x in body) + "\n"
    if c.code_pf:
        s += ".fill 4096, 4, 0xbf810000\n"
    s += '.section .rodata,"a"\n.p2align 6\n' + desc(K1, 512, 256, 102) + ".p2align 6\n" + desc(K2, 80, 80, 32)
    open(path, "w").write(s)
    return stats, probs

if __name__ == "__main__":
    c = Cfg()
    out = sys.argv[1]
    for kv in sys.argv[2:]:
        k, v = kv.split("=", 1)
        setattr(c, k, eval(v))
    stats, probs = emit(c, out)
    print(stats)
    for p in probs[:40]:
        print("  nop", p)
```

```python
from core import Ins, vr, ar, resolve_waits, rw, check_hazards
import re

def cls(ins):
    t = ins.text
    if ins.tag in ("waitl", "waitv") or t.startswith("s_"):
        return "s"
    if t.endswith(":"):
        return "l"
    if t.startswith("ds_"):
        return "d"
    if t.startswith("buffer_") or t.startswith("global_"):
        return "m"
    if t.startswith("v_mfma"):
        return "x"
    if t.startswith(("v_exp", "v_rcp", "v_permlane")):
        return "e"
    return "v"

def gap_cost(seq):
    t, ready, prev = 4, 16, None
    for ins in seq:
        k = cls(ins)
        if k == "l":
            continue
        if k == "s":
            t += 4
        elif k in "ve":
            t = max(t, 8) + (4 if prev == "m" else 0) + (4 if k == "v" else 8)
        elif k == "d":
            st = max(t, 8) + (4 if prev in ("v", "e") else 0)
            t, ready = st + 4, max(ready, st + 8)
        elif k == "m":
            t = max(t, 8) + (8 if prev else 0) + 8
        else:
            t = max(t, 16) + 16
        prev = k
    return max(t, ready) - 16

class Gap:
    __slots__ = ("lead", "mem", "rest")
    def __init__(self):
        self.lead, self.mem, self.rest = [], [], []
    def seq(self):
        return self.lead + self.mem + self.rest
    def section(self, ins, minsec):
        k = cls(ins)
        if k == "s" and not self.lead and minsec <= 0:
            return 0
        if k in "dm" and minsec <= 1:
            return 1
        return 2
    def added(self, ins, sec):
        parts = [list(self.lead), list(self.mem), list(self.rest)]
        before = gap_cost(parts[0] + parts[1] + parts[2])
        parts[sec].append(ins)
        return gap_cost(parts[0] + parts[1] + parts[2]) - before
    def add(self, ins, sec):
        (self.lead, self.mem, self.rest)[sec].append(ins)
    def remove(self, ins, sec):
        (self.lead, self.mem, self.rest)[sec].remove(ins)

class Timeline:
    def __init__(self):
        self.mf, self.gaps, self.pre = [], [], []
    def add_mfma(self, text):
        self.mf.append(Ins(text, 2, "mfma"))
        self.gaps.append(Gap())
        return len(self.mf) - 1
    def put(self, i, ins, minsec=0):
        if i < 0:
            self.pre.append(ins)
            return
        g = self.gaps[i]
        g.add(ins, g.section(ins, minsec))
    def chain(self, items, lo, hi, lo_sec=0):
        hi = min(hi, len(self.mf) - 1)
        assert lo <= hi, (lo, hi, items[0])
        norm = [(x, lo) if isinstance(x, Ins) else x for x in items]
        allow = 0
        while True:
            done, cur, sec0, ok = [], lo, lo_sec, True
            for ins, e in norm:
                e = min(e, hi)
                if e > cur:
                    cur, sec0 = e, 0
                while True:
                    g = self.gaps[cur]
                    sec = g.section(ins, sec0)
                    add = g.added(ins, sec)
                    if add <= 0 or gap_cost(g.seq()) + add <= allow:
                        break
                    if cur == hi:
                        ok = False
                        break
                    cur, sec0 = cur + 1, 0
                if not ok:
                    break
                g.add(ins, sec)
                done.append((ins, cur, sec))
                sec0 = max(sec, 1) if sec == 0 else sec
            if ok:
                return [(c, s) for _, c, s in done]
            for ins, c, s in done:
                self.gaps[c].remove(ins, s)
            allow += 4
    def back(self, ins, hi, lo):
        for i in range(hi, lo - 1, -1):
            g = self.gaps[i]
            sec = g.section(ins, 0)
            if g.added(ins, sec) <= 0:
                g.add(ins, sec)
                return i
        self.put(hi, ins)
        return hi
    def cost(self, a, b):
        return sum(gap_cost(self.gaps[i].seq()) for i in range(a, b + 1))
    def linear(self):
        out = list(self.pre)
        for m, g in zip(self.mf, self.gaps):
            out.append(m)
            out += g.seq()
        return out
```

```python
import sys
from core2 import *

NAME = "concat_heads__mha_block_cached__gqa_block_cached__near_ridge"
BLK, SLOT = 8448, 16896
WPOS = [0, 1032, 2112, 3144]
MF = "v_mfma_f32_16x16x32_bf16"
FLB = 0x3000000
OOB = 0x10000000

class Cfg:
    D = 6
    NF = 12
    pol_x = ""
    pol_wq = ""
    pol_kv = "nt"
    pol_wo = ""
    pol_touch = ""
    rot = True
    stamps = False
    code_pf = True
    chain = True
    TH = 0x4B800000
    TL = 0x33800000
    kv_early = [3, 5, 6.5, 8, 9.5, 12, 13]
    kv_last = 42.0
    wo_la = 6
    bar_q = 1
    bar_a = 2
    bar_o = 2
    ones_at = 12
    touch = []
    touch_wo = []
    spin_max = 40000
    sleep = 0
    cnt_site = 16
    flags = (1, 3, 4, 5)
    flag_delay = 75
    early = (4.2, 6.0)
    poll_wait = 0.65
    load_gap = 4
    slack = 12

S_X, S_WQ, S_K, S_V, S_WO, S_WS = 8, 12, 16, 20, 24, 28
S_W, S_LDSW, S_TL, S_LDSX = 32, 33, 34, 35
S_WQOFF, S_XOFF, S_WOOFF, S_STOFF = 36, 43, 56, 63
S_T0, S_T1, S_C, S_TH, S_RET = 50, 51, 52, 53, 54
S_T2, S_SPIN, S_STAMP, S_SITE = 70, 71, 72, 7
S_OUT, S_ALL, S_DBG = 76, 80, 84
S_SRC, S_DST, S_NEED, S_FLR, S_OK, S_GRP = 88, 91, 94, 97, 100, 6
V_P, V_E, V_L, V_CHK, V_OV = 96, 120, 128, 136, 144
V_S, V_NEGM, V_SALT = 192, 216, 228
V_DWQ, V_DWU, V_DX, V_RW, V_RU, V_RX, V_TCH, V_TCO, V_DUM = 192, 193, 194, 195, 196, 197, 199, 200, 203
V_DKV, V_RK, V_RT, V_DWO, V_RO, V_ST, V_FLW, V_FLR, V_OUT, V_STAMP = 240, 241, 244, 247, 248, 251, 252, 253, 254, 255
V_RINV, V_FV, V_POLL = 228, 231, 232
A_ONE, A_FR = 192, 208

def steps_list():
    st = [("W", 0), ("W", 1)] + [("U", k) for k in range(12)] + [("K", 0)]
    for j in range(1, 16):
        st += [("K", j), ("V", j - 1)]
    return st + [("V", 15)] + [("O", k) for k in range(14)]

def srd(d, lo, hi, nbytes):
    return [f"s_mov_b32 s{d}, s{lo}", f"s_and_b32 s{d+1}, s{hi}, 0xffff", f"s_mov_b32 s{d+2}, {nbytes}",
            f"s_mov_b32 s{d+3}, 0x00020000"]
def sq(d):
    return f"s[{d}:{d+3}]"

def stamp(k):
    return [f"s_memrealtime s[{S_STAMP}:{S_STAMP+1}]", f"s_memtime s[{S_STAMP+2}:{S_STAMP+3}]", "s_waitcnt lgkmcnt(0)",
            f"v_writelane_b32 v{V_STAMP}, s{S_STAMP}, {k}", f"v_writelane_b32 v{V_STAMP}, s{S_STAMP+2}, {32+k}"]

def prologue1(c):
    o = ["s_cmp_ge_u32 s2, 256", "s_cbranch_scc1 L_end"]
    if c.stamps:
        o += [f"v_mov_b32 v{V_STAMP}, 0"] + stamp(0)
    o += ["s_load_dwordx8 s[76:83], s[0:1], 0", "s_load_dwordx2 s[84:85], s[0:1], 32",
          "s_load_dwordx2 s[86:87], s[0:1], 40", "s_load_dwordx8 s[88:95], s[0:1], 48",
          "s_load_dwordx2 s[96:97], s[0:1], 96",
          "v_lshrrev_b32 v1, 6, v0", "v_and_b32 v2, 63, v0", f"v_readfirstlane_b32 s{S_W}, v1",
          "s_and_b32 s6, s2, 7", "s_lshr_b32 s7, s2, 3", "s_lshr_b32 s3, s6, 2", "s_and_b32 s5, s6, 3",
          "s_lshl_b32 s5, s5, 2", "s_and_b32 s6, s7, 3", "s_add_u32 s5, s5, s6", "s_lshr_b32 s4, s7, 2"]
    if c.rot == 1:
        o += ["s_lshl_b32 s98, s6, 1", "s_add_u32 s98, s98, s4", "s_cmp_ge_u32 s98, 7", "s_cselect_b32 s99, 7, 0",
              "s_sub_u32 s98, s98, s99", "s_cmp_ge_u32 s98, 7", "s_cselect_b32 s99, 7, 0", "s_sub_u32 s98, s98, s99"]
    elif c.rot == 2:
        o += ["s_cmp_eq_u32 s4, 7", "s_cselect_b32 s98, 0, s4"]
    else:
        o += ["s_mov_b32 s98, 0"]
    for k in range(7):
        o += [f"s_lshl_b32 s{S_WQOFF+k}, s98, 19", f"s_lshl_b32 s{S_XOFF+k}, s98, 7"]
        if k < 6:
            o += ["s_add_u32 s98, s98, 1", "s_cmp_eq_u32 s98, 7", "s_cselect_b32 s98, 0, s98"]
    o += ["v_lshrrev_b32 v3, 5, v2", "v_and_b32 v4, 31, v2", "v_lshlrev_b32 v4, 4, v4",
          f"s_lshr_b32 s98, s{S_W}, 1", f"s_and_b32 s99, s{S_W}, 1",
          "v_lshrrev_b32 v5, 3, v2", "v_lshrrev_b32 v6, 4, v2", "v_lshlrev_b32 v7, 1, v6", "v_and_b32 v8, 7, v2",
          "v_xor_b32 v7, v7, v8", "v_lshlrev_b32 v7, 4, v7", f"s_mul_i32 s{S_T0}, s{S_W}, 43008",
          "v_mul_u32_u24 v9, 896, v5", f"v_add3_u32 v{V_DX}, v9, v7, s{S_T0}",
          f"s_lshl_b32 s{S_T0}, s99, 16", f"s_lshl_b32 s{S_T1}, s98, 15", f"s_add_u32 s{S_T0}, s{S_T0}, s{S_T1}",
          "v_lshlrev_b32 v9, 17, v3", f"v_add3_u32 v{V_DWQ}, v9, v4, s{S_T0}",
          f"s_mul_i32 s{S_LDSW}, s98, {BLK}", f"s_mul_i32 s{S_T0}, s99, 4224", f"s_add_u32 s{S_LDSW}, s{S_LDSW}, s{S_T0}",
          f"s_mul_i32 s{S_LDSX}, s{S_W}, 6144", f"s_mul_i32 s{S_T0}, s4, 172032", f"s_lshl_b32 s{S_T1}, s5, 9",
          f"s_mov_b32 s{S_X+2}, 172032", f"s_mov_b32 s{S_X+3}, 0x00020000",
          f"s_mov_b32 s{S_WQ+2}, {447*8192+512}", f"s_mov_b32 s{S_WQ+3}, 0x00020000",
          "s_cmp_eq_u32 s3, 0", "s_waitcnt lgkmcnt(0)",
          "s_cselect_b32 s76, s76, s86", "s_cselect_b32 s77, s77, s87", "s_cselect_b32 s82, s82, s92", "s_cselect_b32 s83, s83, s93",
          f"s_add_u32 s{S_X}, s76, s{S_T0}", f"s_addc_u32 s{S_X+1}, s77, 0", f"s_and_b32 s{S_X+1}, s{S_X+1}, 0xffff",
          f"s_add_u32 s{S_WQ}, s82, s{S_T1}", f"s_addc_u32 s{S_WQ+1}, s83, 0", f"s_and_b32 s{S_WQ+1}, s{S_WQ+1}, 0xffff"]
    return o

def prologue2(c):
    T0, T1, T2 = f"s{S_T0}", f"s{S_T1}", f"s{S_T2}"
    o = ["s_cmp_eq_u32 s3, 0"]
    for k in (78, 79, 80, 81, 84, 85):
        o += [f"s_cselect_b32 s{k}, s{k}, s{k+10}"]
    o += ["s_load_dwordx4 s[88:91], s[0:1], 80",
          "s_lshl_b32 s7, s4, 4", "s_add_u32 s7, s7, s5", f"s_lshl_b32 {T0}, s7, 18",
          f"s_add_u32 s78, s78, {T0}", "s_addc_u32 s79, s79, 0", f"s_add_u32 s80, s80, {T0}", "s_addc_u32 s81, s81, 0"]
    o += srd(S_K, 78, 79, 262144) + srd(S_V, 80, 81, 262144)
    o += [f"s_mul_i32 {T0}, s5, 229376", f"s_add_u32 s84, s84, {T0}", "s_addc_u32 s85, s85, 0"]
    o += srd(S_WO, 84, 85, 229376)
    o += [f"s_lshl_b32 {T0}, s3, 7", f"s_add_u32 s7, s7, {T0}", f"s_mul_i32 {T0}, s7, 172032",
          f"s_add_u32 s100, s96, {T0}", "s_addc_u32 s101, s97, 0"]
    o += srd(S_WS, 100, 101, 172032) + srd(S_ALL, 96, 97, OOB)
    o += ["s_cmp_eq_u32 s98, 0"]
    for bb in range(3):
        o += [f"s_cselect_b32 s{S_WQOFF+1+bb}, s{S_WQOFF+1+2*bb}, s{S_WQOFF+2+2*bb}"]
    o += ["s_cmp_eq_u32 s4, 7", "s_cselect_b32 s101, 0, s4"] if c.rot else ["s_mov_b32 s101, 0"]
    o += [f"s_mov_b32 {T0}, s101"]
    for k in range(7):
        o += [f"s_lshl_b32 s{S_WOOFF+k}, {T0}, 7", f"s_mul_i32 s{S_STOFF+k}, {T0}, 24576"]
        if k < 6:
            o += [f"s_add_u32 {T0}, {T0}, 1", f"s_cmp_eq_u32 {T0}, 7", f"s_cselect_b32 {T0}, 0, {T0}"]
    o += [f"s_mov_b32 s{S_C}, 0x3db8aa3b", f"s_mov_b32 s{S_TH}, {c.TH}", f"s_mov_b32 s{S_TL}, {c.TL}",
          f"s_lshl_b32 {T0}, s98, 13", f"s_lshl_b32 {T1}, s99, 11", f"s_add_u32 {T0}, {T0}, {T1}",
          "v_lshlrev_b32 v9, 12, v3", f"v_add3_u32 v{V_DKV}, v9, v4, {T0}",
          f"s_mul_i32 {T0}, s98, {64*896}", f"s_mul_i32 {T1}, s99, {4*896}", f"s_add_u32 {T0}, {T0}, {T1}",
          "v_mul_u32_u24 v9, 7168, v5", "v_lshlrev_b32 v10, 4, v8", f"v_add3_u32 v{V_DWO}, v9, v10, {T0}",
          "v_lshl_add_u32 v10, v3, 18, v10", "v_and_b32 v11, 1, v5", "v_lshl_add_u32 v10, v11, 17, v10",
          "v_and_b32 v12, 1, v6", "v_lshl_add_u32 v10, v12, 15, v10", f"s_lshl_b32 {T0}, s99, 16",
          f"v_add_u32 v{V_DWU}, {T0}, v10",
          "v_lshlrev_b32 v9, 4, v2", f"v_add_u32 v{V_ST}, s{S_LDSX}, v9",
          "v_lshrrev_b32 v13, 2, v2", "v_and_b32 v13, 7, v13", "v_mul_u32_u24 v9, 1056, v13",
          "v_and_b32 v10, 3, v2", "v_lshl_add_u32 v9, v10, 3, v9",
          f"v_lshl_add_u32 v{V_RT}, v3, 9, v9", f"v_lshl_add_u32 v{V_RO}, v3, 7, v9",
          "v_lshlrev_b32 v9, 10, v13", "v_and_b32 v14, 1, v13", "v_lshl_add_u32 v9, v14, 3, v9",
          "v_lshrrev_b32 v14, 1, v13", "v_lshl_add_u32 v9, v14, 6, v9", "v_lshl_add_u32 v9, v10, 4, v9",
          f"v_lshl_add_u32 v{V_RW}, v3, 9, v9", f"v_lshl_add_u32 v{V_RU}, v3, 7, v9",
          "v_mul_u32_u24 v9, 1056, v8", "v_lshl_add_u32 v9, v11, 9, v9", f"v_lshl_add_u32 v{V_RK}, v6, 4, v9",
          "v_and_b32 v15, 15, v2", "v_lshlrev_b32 v9, 7, v15", "v_and_b32 v14, 6, v2", "v_xor_b32 v14, v14, v6",
          "v_lshl_add_u32 v9, v14, 4, v9", f"s_add_u32 {T0}, s{S_LDSX}, {10*BLK}",
          f"v_add_u32 v{V_RX}, {T0}, v9", "v_xor_b32 v9, 64, v9", f"v_add_u32 v{V_RX+1}, {T0}, v9",
          f"v_mov_b32 v14, {OOB}", "v_cmp_gt_u32 vcc, 16, v2",
          f"s_lshl_b32 {T0}, s{S_W}, 11", f"v_lshl_add_u32 v9, v2, 7, {T0}", f"v_cndmask_b32 v{V_TCH}, v14, v9, vcc",
          "v_mul_u32_u24 v9, 7, v9", f"v_cndmask_b32 v{V_TCO}, v14, v9, vcc",
          "v_cmp_gt_u32 vcc, 1, v2", "s_nop 1", f"v_cndmask_b32 v{V_FLW}, v14, v2, vcc",
          f"v_lshlrev_b32 v{V_FLR}, 2, v15",
          "v_mul_u32_u24 v9, 1792, v15", f"v_lshl_add_u32 v{V_OUT}, v6, 4, v9"]
    for base in (V_RK, V_RT, V_RO):
        o += [f"v_add_u32 v{base+1}, {3*SLOT}, v{base}", f"v_add_u32 v{base+2}, {6*SLOT}, v{base}"]
    o += ["v_mov_b32 v11, 0x3f803f80"]
    for t in range(3):
        o += [f"v_cmp_eq_u32 vcc, {t}, v10", "s_nop 1", "v_cndmask_b32 v9, 0, v11, vcc"]
        o += [f"v_accvgpr_write_b32 a{A_ONE+4*t+r}, v9" for r in range(4)]
    o += [f"v_mov_b32 v{V_NEGM+r}, 0" for r in range(12)]
    o += ["s_waitcnt lgkmcnt(0)"] + srd(S_OUT, 88, 89, 8 * 192 * 896 * 2) + srd(S_DBG, 90, 91, 256)
    o += ["s_lshr_b32 s6, s7, 4",
          f"s_lshl_b32 {T0}, s6, 2", f"s_add_u32 {T0}, {T0}, s{S_W}", f"s_lshl_b32 {T0}, {T0}, 8", f"s_add_u32 s{S_FLR}, {T0}, {FLB}",
          f"s_lshl_b32 s100, s{S_W}, 2", "s_add_u32 s100, s100, s5", "s_and_b32 s100, s100, 15"]
    sig = sorted(set(c.flags) | {6})
    tab = 0
    for ch in range(7):
        tab |= (min(x for x in sig if x >= ch) - 1) << (4 * ch)
    for r in range(3):
        if r == 0:
            o += [f"s_add_u32 {T0}, s100, 12", "s_cmp_lt_u32 s100, 12", f"s_cselect_b32 {T0}, s100, {T0}"]
        else:
            o += [f"s_add_u32 {T0}, s100, {8 if r == 1 else 26}"]
        o += [f"s_mul_i32 {T1}, {T0}, 43", f"s_lshr_b32 {T1}, {T1}, 8", f"s_mul_i32 {T2}, {T1}, 6", f"s_sub_u32 {T0}, {T0}, {T2}",
              f"s_lshl_b32 {T2}, {T1}, 2", f"s_lshr_b32 {T2}, {tab}, {T2}", f"s_and_b32 {T2}, {T2}, 15",
              f"s_mul_i32 {T2}, {T2}, 5", f"s_lshl_b32 s{S_NEED+r}, 16, {T2}",
              f"s_add_u32 {T1}, {T1}, s101", f"s_cmp_ge_u32 {T1}, 7", f"s_cselect_b32 {T2}, 7, 0", f"s_sub_u32 {T1}, {T1}, {T2}",
              f"s_mul_i32 s{S_SRC+r}, s6, 2752512", f"s_mul_i32 {T2}, {T1}, 24576", f"s_add_u32 s{S_SRC+r}, s{S_SRC+r}, {T2}",
              f"s_lshl_b32 {T2}, {T0}, 10", f"s_add_u32 s{S_SRC+r}, s{S_SRC+r}, {T2}",
              f"s_lshl_b32 s7, {T1}, 7", f"s_and_b32 {T2}, {T0}, 1", f"s_lshl_b32 {T2}, {T2}, 6", f"s_add_u32 s7, s7, {T2}",
              f"s_lshr_b32 {T0}, {T0}, 1", f"s_mul_i32 {T2}, s{S_W}, 3", f"s_add_u32 {T0}, {T0}, {T2}",
              f"s_mul_i32 {T0}, {T0}, 28672", f"s_add_u32 s7, s7, {T0}",
              f"s_mul_i32 {T0}, s4, 344064", f"s_add_u32 s7, s7, {T0}", f"s_mul_i32 {T0}, s3, 896", f"s_add_u32 s{S_DST+r}, s7, {T0}"]
    for r, cmp in ((0, "s_cmp_lt_u32 s100, 14"), (1, "s_cmp_ge_u32 s100, 4")):
        o += [cmp, f"s_cselect_b32 s{S_SRC+r}, s{S_SRC+r}, {OOB}", f"s_cselect_b32 s{S_DST+r}, s{S_DST+r}, {OOB}",
              f"s_cselect_b32 s{S_NEED+r}, s{S_NEED+r}, 0"]
    o += [f"s_lshl_b32 s{S_GRP}, s6, 4", "s_cmp_eq_u32 s5, 0", f"s_cselect_b32 {T2}, s{S_FLR}, {OOB}",
          f"s_or_b32 {T0}, s5, s{S_W}", f"s_cselect_b32 s{S_SITE}, 0x1000, s{S_GRP}"]
    return o

def qacc(t, q):
    return ((t >> 1) * 3 + q) * 8 + (t & 1) * 4
def sreg(j, kt, q):
    return (V_SALT if (j == 0 and kt == 0) else V_S + 12 * kt) + q * 4
def preg(j, q):
    return V_P + (j & 1) * 12 + q * 4
def lreg(j):
    return V_L + (j & 1) * 4
def oreg(t, q):
    return ("v", V_OV + (t * 3 + q) * 4) if t < 4 else ("a", (t * 3 + q) * 4)
def oacc(ch, nt, q):
    return (96 if ch % 2 == 0 else 144) + (q * 4 + nt) * 4

def softmax_items(j, kt, tmp, qorder=(0, 1, 2)):
    out, pend = [], None
    for q in qorder:
        for hf in range(2):
            e = V_E + 2 * (tmp[0] % 4)
            tmp[0] += 1
            out.append(Ins(f"v_exp_f32 v{e}, v{sreg(j,kt,q)+2*hf}", 2, meta=q))
            if pend:
                out.append(pend)
            out.append(Ins(f"v_exp_f32 v{e+1}, v{sreg(j,kt,q)+2*hf+1}", 2, meta=q))
            pend = Ins(f"v_cvt_pk_bf16_f32 v{preg(j,q)+2*kt+hf}, v{e}, v{e+1}", 1, meta=q)
    return out, pend

def ones_mfma(j):
    o = []
    for q in range(3):
        cin = vr(lreg(j), 4) if q else (vr(lreg(j - 1), 4) if j else "0")
        o.append(f"{MF} {vr(lreg(j),4)}, {ar(A_ONE+4*q,4)}, {vr(preg(j,q),4)}, {cin}")
    return o

def rare_path(j):
    D, F, T = (138, None, 141) if j == 0 else (228, 231, 234)
    o = ["s_nop 7", "s_nop 7"]
    for q in range(3):
        a, b = sreg(j, 0, q), sreg(j, 1, q)
        o += [f"v_max3_f32 v{D+q}, v{a}, v{a+1}, v{a+2}", f"v_max3_f32 v{D+q}, v{D+q}, v{a+3}, v{b}",
              f"v_max3_f32 v{D+q}, v{D+q}, v{b+1}, v{b+2}", f"v_max_f32 v{D+q}, v{D+q}, v{b+3}"]
    for op in ("v_permlane32_swap_b32", "v_permlane16_swap_b32"):
        o += [f"v_mov_b32 v{T+q}, v{D+q}" for q in range(3)] + ["s_nop 1"]
        o += [f"{op} v{T+q}, v{D+q}" for q in range(3)]
        o += [f"v_max_f32 v{D+q}, v{D+q}, v{T+q}" for q in range(3)]
    if j:
        o += [f"v_max_f32 v{D+q}, 0, v{D+q}" for q in range(3)]
        o += [f"v_exp_f32 v{F+q}, -v{D+q}" for q in range(3)]
    for q in range(3):
        tgt = [V_NEGM + 4 * q, sreg(j, 0, q), sreg(j, 1, q)] + ([sreg(1, 0, q)] if j == 0 else [])
        for a in tgt:
            o += [f"v_sub_f32 v{a+r}, v{a+r}, v{D+q}" for r in range(4)]
        if j:
            o += [f"v_mul_f32 v{lreg(j-1)+q}, v{lreg(j-1)+q}, v{F+q}"]
    tmp = [0]
    for kt in range(2):
        it, pend = softmax_items(j, kt, tmp)
        o += [x.text for x in it] + ["s_nop 0", pend.text]
    if j:
        for t in range(16):
            for q in range(3):
                f, a = oreg(t, q)
                if f == "v":
                    o += [f"v_mul_f32 v{a+r}, v{a+r}, v{F+q}" for r in range(4)]
                else:
                    o += [f"v_accvgpr_read_b32 v{T+r}, a{a+r}" for r in range(4)]
                    o += [f"v_mul_f32 v{T+r}, v{T+r}, v{F+q}" for r in range(4)]
                    o += [f"v_accvgpr_write_b32 a{a+r}, v{T+r}" for r in range(4)]
    o += ["s_nop 1"] + ones_mfma(j) + ["s_nop 7", "s_nop 7"]
    return check_hazards(o, fix=True)[0]

def order(mode):
    if mode == "A3":
        return [(f, q if f % 2 == 0 else 2 - q) for f in range(16) for q in range(3)]
    out = []
    for b in range(4):
        for qi in range(3):
            q = qi if b % 2 == 0 else 2 - qi
            rng = range(4) if qi % 2 == 0 else range(3, -1, -1)
            out += [(4 * b + i, q) for i in rng]
    return out

def build_main(c):
    steps = steps_list()
    NS = len(steps)
    idx = {s: n for n, s in enumerate(steps)}
    tl = Timeline()
    G, USE, LAST, ONES, FIN = {}, {}, {}, {}, {}
    fb = lambda F: A_FR + 4 * (F % c.NF)
    def mode(n):
        ty, k = steps[n]
        return "CH" if c.chain and (ty in "UK" or (ty == "O" and k >= 2)) else "A3"
    def ki(n, f):
        return (f & 3, f >> 2) if (mode(n) == "CH" or steps[n][0] == "U") else (f >> 2, f & 3)
    started = set()
    for n, (ty, k) in enumerate(steps):
        for m, (f, q) in enumerate(order(mode(n))):
            F = 16 * n + f
            if ty == "W":
                key, d, b, c0 = ("Q", f, q), vr(qacc(f, q), 4), ar((k * 3 + q) * 4, 4), "0"
            elif ty == "U":
                i, nt = ki(n, f)
                t = 4 * (k & 3) + nt
                key, d, b, c0 = ("Q", t, q), vr(qacc(t, q), 4), ar(((4 * (k >> 2) + 2 + i) * 3 + q) * 4, 4), "0"
            elif ty == "K":
                kt, s = f >> 3, f & 7
                key, d, b, c0 = ("S", k, kt, q), vr(sreg(k, kt, q), 4), vr((s * 3 + q) * 4, 4), vr(V_NEGM + 4 * q, 4)
            elif ty == "V":
                fl, a = oreg(f, q)
                key, d, b, c0 = ("O", f, q), vr(a, 4, fl), vr(preg(k, q), 4), "0"
            else:
                i, nt = ki(n, f)
                s = (k & 1) * 4 + i
                key, d, b, c0 = ("P", k >> 1, nt, q), vr(oacc(k >> 1, nt, q), 4), vr((s * 3 + q) * 4, 4), "0"
            i_m = tl.add_mfma(f"{MF} {d}, {ar(fb(F),4)}, {b}, {d if key in started else c0}")
            started.add(key)
            FIN[key] = i_m
            if m % 3 == 0:
                G[16 * n + m // 3] = i_m
            USE.setdefault(F, i_m)
            LAST[F] = i_m
            if ty == "O":
                USE.setdefault(("B", s), i_m)
            if (ty, k) == ("K", 0):
                USE.setdefault(("QB", s), i_m)
            jn = None
            if ty == "V" and k < 15 and m == 3 * c.ones_at + 2:
                jn = k + 1
            if (ty, k) == ("K", 1) and m == 11:
                jn = 0
            if jn is not None:
                for t in ones_mfma(jn):
                    ONES[jn] = tl.add_mfma(t)
    NM = len(tl.mf)
    beg = lambda n: G[16 * n]
    end = lambda n: (G[16 * (n + 1)] - 1) if n + 1 < NS else NM - 1
    at = lambda x: min(NM - 1, beg(int(x)) + int((x - int(x)) * (end(int(x)) - beg(int(x)) + 1)))
    nK0, nV15, nO0 = idx[("K", 0)], idx[("V", 15)], idx[("O", 0)]

    bsteps = [n for n in range(0, nK0, c.bar_q)]
    if c.bar_q == 2:
        bsteps = [0] + list(range(1, nK0, 2))
    bsteps += [nK0] + list(range(nK0 + c.bar_a, nV15, c.bar_a))
    bsteps += list(range(nV15, NS - 1, c.bar_o))
    bsteps = sorted(set(bsteps))
    bgap = {n: G[16 * (n + 1) - c.D] for n in bsteps}
    covers = {n: list(range(n + 1, (bsteps[i + 1] if i + 1 < len(bsteps) else NS - 1) + 1)) for i, n in enumerate(bsteps)}
    def freed(m):
        later = [n for n in bsteps if n >= m + 1]
        return bgap[later[0]] + 1 if later else NM

    xreg = lambda kc: [16, 13, 10][kc % 3] * BLK
    x_issue = {2: 0, 3: 0, 4: 1, 5: 2, 6: 3}
    x_read = {1: 0, 2: 1, 3: 2, 4: 3, 5: 4, 6: 5}
    free_at = {0: -1, 1: -1, 2: -1, 3: -1, 4: -1, 7: freed(x_read[4]), 5: freed(x_read[5]), 6: freed(x_read[5]), 8: freed(x_read[6])}
    plan = []
    def add(kind, i, p0, p1, npc):
        for p in range(npc):
            plan.append([at(p0 + (p1 - p0) * p / npc), kind, i, p])
    per = {}
    for m in range(2, 14):
        per.setdefault(m - 2, []).append(("S", m, 4))
    for kc, n in x_issue.items():
        per.setdefault(n, []).append(("X", kc, 6))
    for n, items in per.items():
        tot, a = max(8, sum(x[2] for x in items)), 0
        for kind, i, npc in items:
            add(kind, i, n + a / tot, n + (a + npc) / tot, npc)
            a += npc
    for m, x in zip(range(14, 14 + len(c.kv_early)), c.kv_early):
        add("S", m, x + 0.5, x + 1.0, 4)
    m0 = 14 + len(c.kv_early)
    w = (c.kv_last + 1 - 14) / (46 - m0)
    for m in range(m0, 46):
        add("S", m, 14 + (m - m0) * w, 14 + (m - m0 + 1) * w, 4)
    x = c.kv_last + 1
    for m in range(46, 60):
        x = max(x, m - c.wo_la)
        add("S", m, x, x + 0.6, 4)
        x += 0.6
    first = {}
    for e in plan:
        first.setdefault((e[1], e[2]), e[0])
    plan.sort(key=lambda e: (first[(e[1], e[2])], e[1], e[2], e[3]))
    slot_of = {}
    def alloc(m, g):
        if m < 14:
            pool = [0, 1, 2, 3]
        elif 13 not in slot_of:
            pool = [4, 5, 6, 7, 8]
        else:
            pool = list(range(9))
        s = min(pool, key=lambda s: (free_at[s], s))
        g = max(g, free_at[s])
        slot_of[m] = s
        free_at[s] = freed(m)
        return g
    alloc(0, -1); alloc(1, -1)
    for e in plan:
        if e[1] == "S" and e[3] == 0:
            e[0] = alloc(e[2], e[0])
    for e in plan:
        if e[3] == 0:
            first[(e[1], e[2])] = e[0]
    plan.sort(key=lambda e: (first[(e[1], e[2])], e[1], e[2], e[3]))

    def dma(kind, i, p):
        if kind == "X":
            return [Ins(f"s_add_u32 m0, s{S_LDSX}, {xreg(i) + 1024*p}"), Ins(f"s_add_u32 s{S_T0}, s{S_XOFF+i}, {7168*p}"),
                    Ins(f"buffer_load_dwordx4 v{V_DX}, {sq(S_X)}, s{S_T0} offen {c.pol_x} lds", 1, "vm", ("X", i))]
        ty, k = steps[i]
        base = slot_of[i] * SLOT
        if ty in "WU":
            so, off, v = (S_WQOFF, (k * 32 + p) * 8192, V_DWQ) if ty == "W" else (S_WQOFF + 1 + (k >> 2), p * 8192 + (k & 3) * 128, V_DWU)
            return [Ins(f"s_add_u32 m0, s{S_LDSW}, {base + WPOS[p]}"), Ins(f"s_add_u32 s{S_T0}, s{so}, {off}"),
                    Ins(f"buffer_load_dwordx4 v{v}, {sq(S_WQ)}, s{S_T0} offen {c.pol_wq} lds", 1, "vm", ("S", i))]
        o = []
        if ty in "KV":
            g, sr, v, pol = 512 * p, (S_K if ty == "K" else S_V), V_DKV, c.pol_kv
            if p == 0:
                o.append(Ins(f"s_mov_b32 s{S_T1}, {k*16384}"))
        else:
            g, sr, v, pol = 896 * p, S_WO, V_DWO, c.pol_wo
            if p == 0:
                o.append(Ins(f"s_add_u32 s{S_T1}, s{S_WOOFF+(k>>1)}, {(k&1)*128*896}"))
        o.append(Ins(f"s_add_u32 m0, s{S_LDSW}, {base + 1056*p - g}"))
        off = f" offset:{g}" if g else ""
        o.append(Ins(f"buffer_load_dwordx4 v{v}, {sq(sr)}, s{S_T1} offen{off} {pol} lds", 1, "vm", ("S", i)))
        return o

    def reads(F):
        n, f = F // 16, F % 16
        ty, k = steps[n]
        s, r = slot_of[n], fb(F)
        win, base = s // 3, (s % 3) * SLOT
        if ty == "K":
            return [Ins(f"ds_read_b128 {ar(r,4)}, v{V_RK+win} offset:{base + (f>>3)*BLK + (f&7)*64}", 1, "ds", F)]
        if ty == "V":
            v, o0, dd = V_RT + win, base + f * 32, BLK
        elif ty == "W":
            v, o0, dd = V_RW, s * SLOT + (f >> 1) * 64 + (f & 1) * 8, BLK
        else:
            i, nt = ki(n, f)
            o0, dd = (i >> 1) * BLK + (i & 1) * 512, 256
            if ty == "U":
                v, o0 = V_RU, o0 + s * SLOT + (nt >> 1) * 64 + (nt & 1) * 8
            else:
                v, o0 = V_RO + win, o0 + base + nt * 32
        assert o0 + dd < 65536
        return [Ins(f"ds_read_b64_tr_b16 {ar(r,2)}, v{v} offset:{o0}", 1, "ds", F),
                Ins(f"ds_read_b64_tr_b16 {ar(r+2,2)}, v{v} offset:{o0+dd}", 1, "ds", F)]
    def xreads(kc):
        return [Ins(f"ds_read_b128 {ar(((2*kc+s)*3+q)*4,4)}, v{V_RX+s} offset:{xreg(kc) - 10*BLK + q*2048}", 1, "ds", ("X", kc))
                for s in range(2) for q in range(3)]

    P = lambda t: tl.put(-1, Ins(t) if isinstance(t, str) else t)
    for t in prologue1(c):
        P(t)
    pro = [("X", 0, p) for p in range(6)] + [("S", 0, p) for p in range(4)] + [("S", 1, p) for p in range(4)] + [("X", 1, p) for p in range(6)]
    for e in pro[:12]:
        for x in dma(*e):
            P(x)
    if c.code_pf:
        for t in ["s_getpc_b64 s[70:71]", f"s_lshr_b32 s{S_T0}, s2, 3", f"s_lshl_b32 s{S_T0}, s{S_T0}, 11",
                  f"s_add_u32 s70, s70, s{S_T0}", "s_addc_u32 s71, s71, 0", "v_and_b32 v12, 15, v2", "v_lshlrev_b32 v12, 7, v12"]:
            P(t)
        P(Ins(f"global_load_dword v{V_DUM}, v12, s[70:71]", 1, "vm", "dum"))
    for t in prologue2(c):
        P(t)
    for e in pro[12:]:
        for x in dma(*e):
            P(x)
    P(Ins(f"buffer_store_dword v{V_NEGM}, v{V_FLW}, {sq(S_ALL)}, s{S_T2} offen sc1", 1, "vm", "reset"))
    P(Ins("", 1, "waitv", {("X", 0), ("S", 0)}))
    P("s_barrier")
    for x in xreads(0):
        P(x)
    for F in range(c.D):
        for x in reads(F):
            P(x)
    P(Ins("", 1, "waitl", {0, ("X", 0)}))

    NFR = 16 * NS
    for F in range(c.D, NFR):
        g = G[F - c.D]
        assert F < c.NF or LAST[F - c.NF] <= g
        for k, x in enumerate(reads(F)):
            tl.put(g + k, x)
    hasread = lambda g: bool(tl.gaps[g].mem)
    def lead_before(ins, g, span=3):
        for i in range(g, g - span, -1):
            if i >= 0 and hasread(i) and not tl.gaps[i].lead:
                tl.gaps[i].lead.append(ins)
                return i
        return tl.back(ins, g, max(0, g - span))
    for n in bsteps:
        tl.gaps[bgap[n]].lead.append(Ins("s_barrier"))
        need = {("S", m) for m in covers[n]} | {("X", kc) for kc, r in x_read.items() if r == n}
        if n == 3:
            need.add("reset")
        if n == nK0:
            need.add("dum")
        lead_before(Ins("", 1, "waitv", need), bgap[n] - 1)
    for kc, r in x_read.items():
        assert r in bsteps
        tl.chain(xreads(kc), bgap[r] + 1, end(r) - 3)
    F = 1
    while F < NFR:
        grp = [F]
        if mode(F // 16) == "CH" and F % 4 == 1:
            grp = [F, F + 1, F + 2]
        need = set(grp)
        if F % 16 == 0 and steps[F // 16][0] == "U" and steps[F // 16][1] % 4 == 0:
            bb = steps[F // 16][1] >> 2
            need |= {("X", 2 * bb + 1), ("X", 2 * bb + 2)}
            tl.back(Ins("", 1, "waitl", need), USE[F] - 1, USE[F] - 1)
        else:
            lead_before(Ins("", 1, "waitl", need), min(USE[x] for x in grp) - 1)
        F += len(grp)

    cur = 0
    for s in range(8):
        it = []
        for q in sorted(range(3), key=lambda q: FIN[("Q", 2 * s + 1, q)]):
            src, dst = (s * 3 + q) * 8, (s * 3 + q) * 4
            rdy = FIN[("Q", 2 * s + 1, q)] + 4
            it += [(Ins(f"v_mul_f32 v{src+r}, s{S_C}, v{src+r}"), FIN[("Q", 2 * s + (r >> 2), q)] + 4) for r in range(8)]
            if s:
                it += [(Ins(f"v_cvt_pk_bf16_f32 v{dst+r}, v{src+2*r}, v{src+2*r+1}"), rdy) for r in range(4)]
        if s == 0:
            for q in range(3):
                it += [Ins(f"v_cvt_pk_bf16_f32 v{q*4+r}, v{q*8+2*r}, v{q*8+2*r+1}") for r in range(4)]
        lo = max(cur, it[0][1])
        hi = min(USE[("QB", s)] - 2, max(FIN[("Q", 2 * s + 1, q)] for q in range(3)) + 26)
        cur = tl.chain(it, lo, hi)[-1][0]
    q_done = cur

    tmp = [0]
    prev_branch = 0
    for j in range(16):
        it, pend = [], None
        for kt in range(2):
            qo = sorted(range(3), key=lambda q: FIN[("S", j, kt, q)])
            items, p = softmax_items(j, kt, tmp, qo)
            xs = [(x, FIN[("S", j, kt, x.meta)] + 5) for x in items]
            if pend:
                xs.insert(1, (pend, 0))
            it += xs
            pend = p
        lo = max(it[0][1], prev_branch + 1, q_done + 1)
        ps = tl.chain(it, lo, ONES[j] - 6)
        tl.chain([pend], ps[-1][0] + 1, ONES[j] - 5)
        l = lreg(j)
        br = (G[16 * idx[("K", 1)] + 8] - 1) if j == 0 else end(idx[("V", j - 1)])
        chk = [Ins(f"v_max3_f32 v{V_CHK}, v{l}, v{l+1}, v{l+2}"), Ins(f"v_cmp_nge_f32 vcc, s{S_TH}, v{V_CHK}")]
        if j == 0:
            chk = [Ins(f"v_min3_f32 v{V_CHK+1}, v{l}, v{l+1}, v{l+2}"), Ins(f"v_cmp_nle_f32 s[{S_RET}:{S_RET+1}], s{S_TL}, v{V_CHK+1}")] + chk
            chk += [Ins(f"s_or_b64 vcc, vcc, s[{S_RET}:{S_RET+1}]")]
        tl.chain(chk, ONES[j] + 5, br - 1)
        g = tl.gaps[br]
        sec = g.lead if not g.lead else g.rest
        sec += [Ins(f"s_cbranch_vccnz L_stub{j}"), Ins(f"L_back{j}:", 0)]
        prev_branch = br

    tl.chain([Ins(f"v_mov_b32 v{V_CHK+1}, 1"),
              Ins(f"buffer_atomic_add v{V_CHK+1}, v{V_FLW}, {sq(S_DBG)}, s{S_SITE} offen sc1", 1, "vm", "cnt")],
             beg(c.cnt_site + 1), beg(c.cnt_site + 1) + 14)

    tl.chain([Ins(f"v_rcp_f32 v{V_RINV+q}, v{lreg(15)+q}", 2) for q in range(3)], beg(nV15), beg(nV15) + 9)
    cur, rot = beg(nV15), 0
    for s in range(8):
        it = []
        for tp in range(2):
            for q in sorted(range(3), key=lambda q: FIN[("O", 2 * s + tp, q)]):
                fl, a = oreg(2 * s + tp, q)
                rdy = FIN[("O", 2 * s + tp, q)] + 4
                if fl == "a":
                    T = 216 + 4 * (rot % 2)
                    rot += 1
                    it += [(Ins(f"v_accvgpr_read_b32 v{T+r}, a{a+r}"), rdy) for r in range(4)]
                    a = T
                it += [(Ins(f"v_cvt_pk_bf16_f32 v{(s*3+q)*4+2*tp+h}, v{a+2*h}, v{a+2*h+1}"), rdy) for h in range(2)]
        lo = max(cur, it[0][1])
        dead = USE[("B", s)] - 2
        left = sum(12 if x < 2 else 36 for x in range(s, 8))
        share = lo + int((USE[("B", 7)] - 2 - lo) * (12 if s < 2 else 36) / left) + 1
        cur = tl.chain(it, lo, max(min(dead, share), min(dead, it[-1][1] + 2)))[-1][0]

    def chunk_out(ch):
        it = []
        pcs = sorted(range(6), key=lambda pc: FIN[("P", ch, 2 * (pc & 1) + 1, pc >> 1)])
        it.append((Ins(f"s_add_u32 s{S_T0}, s{S_STOFF+ch}, 4096"), 0))
        for pc in pcs:
            q, p = pc >> 1, pc & 1
            a, T = oacc(ch, 2 * p, q), 192 + 4 * pc
            rdy = FIN[("P", ch, 2 * p + 1, q)] + 4
            it += [(Ins(f"v_mul_f32 v{a+r}, v{a+r}, v{V_RINV+q}"), FIN[("P", ch, 2 * p + (r >> 2), q)] + 4) for r in range(8)]
            it += [(Ins(f"v_cvt_pk_bf16_f32 v{T+r}, v{a+2*r}, v{a+2*r+1}"), rdy) for r in range(4)]
            so = S_STOFF + ch if pc < 4 else S_T0
            it += [(Ins(f"buffer_store_dwordx4 {vr(T,4)}, v{V_ST}, {sq(S_WS)}, s{so} offen offset:{(pc&3)*1024} sc1", 1, "vm", ("st", ch)), rdy)]
        return it
    tail = []
    st_last = {}
    for ch in range(7):
        it = chunk_out(ch)
        lo = max(cur + 1, it[1][1])
        if ch < 6:
            cur = tl.chain(it, lo, end(nO0 + 2 * ch + 3) - 26)[-1][0]
            st_last[ch] = cur
        else:
            early = it[:1 + 3 * 13]
            if c.chain:
                tl.chain(early, lo, NM - 1)
                tail = [x for x, _ in it[len(early):]]
            else:
                tail = [x for x, _ in it]

    def flag(ch):
        return [Ins(f"v_mov_b32 v{V_FV}, {1 << (5 * (ch - 1))}"),
                Ins(f"buffer_atomic_add v{V_FV}, v{V_FLW}, {sq(S_ALL)}, s{S_FLR} offen sc1", 1, "vm", ("fl", ch))]
    def poll(tok):
        return [Ins(f"v_mov_b32 v{V_POLL}, 0"),
                Ins(f"buffer_atomic_add v{V_POLL}, v{V_FLW}, {sq(S_ALL)}, s{S_FLR} offen sc0 sc1", 1, "vm", tok)]
    def ready(r):
        return [f"s_andn2_b32 s{S_OK+r}, s{S_NEED+r}, s{S_SPIN}", f"s_cselect_b32 s{S_T2}, {OOB}, s{S_SRC+r}"]
    def rloads(r, so):
        o = []
        for h in range(16):
            o.append(Ins(f"buffer_load_dwordx4 {ar(64*r+4*h,4)}, v{V_ST}, {sq(S_ALL)}, s{so} offen sc1", 1, "vm", ("R", r, h)))
            if h < 15:
                o.append(Ins(f"s_add_u32 s{so}, s{so}, 172032"))
        return o
    tO = lambda t: at(nO0 + 2 * t)
    tl.chain([Ins(f"buffer_load_dword v{V_POLL}, off, {sq(S_DBG)}, s{S_GRP} sc1", 1, "vm", "dbg")], tO(0.5), tO(1.0))
    ps = tl.chain([Ins("", 1, "waitv", {"dbg"}), Ins(f"v_cmp_gt_u32 vcc, 1, v{V_POLL}")], tO(2.0), tO(2.3))
    g = tl.gaps[ps[-1][0] + 2]
    (g.lead if not g.lead else g.rest).extend([Ins("s_cbranch_vccnz L_dbgspin"), Ins("L_dbgback:", 0)])
    tail_flags = []
    for ch in c.flags:
        g = st_last[ch] + c.flag_delay
        if g + 10 < NM:
            tl.chain([Ins("", 1, "waitv", {("st", ch)})] + flag(ch), g, g + 20)
        else:
            tail_flags.append(ch)
    tail_loads, cur = [], 0
    for r, tp in enumerate(c.early):
        if tp is None:
            tl.chain([Ins(f"s_mov_b32 s{S_OK+r}, 1")], tO(3.0), tO(3.5))
            continue
        tl.chain(poll(("p", r)), tO(tp), tO(tp + 0.15))
        g = max(cur + 1, tO(min(6.95, tp + c.poll_wait)))
        ps = tl.chain([Ins("", 1, "waitv", {("p", r)}), Ins(f"v_readfirstlane_b32 s{S_SPIN}, v{V_POLL}")], g, g + 12)
        gi = ps[-1][0] + 1
        gi = min(range(gi, min(gi + 6, NM)), key=lambda k: (len(tl.gaps[k].seq()), k))
        for t in ready(r):
            tl.put(gi, Ins(t), 2)
        cur = gi
        ld = rloads(r, S_T2)
        while ld:
            lo = cur + c.load_gap
            free = [k for k in range(lo, min(lo + 8, NM - 1)) if not tl.gaps[k].seq()]
            if lo >= NM - 2:
                tail_loads = ld
                break
            cur = free[0] if free else min(range(lo, min(lo + 8, NM - 1)), key=lambda k: (tl.gaps[k].added(ld[0], 1), k))
            tl.gaps[cur].mem.append(ld[0])
            if len(ld) > 1:
                tl.chain([ld[1]], cur + 1, cur + c.load_gap - 1)
            ld = ld[2:]

    for x, ten, tile, half in c.touch:
        plan.append([at(x), "T", (ten, tile, half), 0])
    for k, x in enumerate(c.touch_wo):
        plan.append([at(x), "T", ("O", k, 0), 0])
    for e in plan:
        if e[1] == "T":
            first[(e[1], e[2])] = e[0]
    plan.sort(key=lambda e: (first[(e[1], e[2])], e[1], str(e[2]), e[3]))
    def touch(ten, tile, half):
        if ten == "O":
            return [Ins(f"s_add_u32 s{S_T0}, s{S_WOOFF}, {tile*64*896}"),
                    Ins(f"buffer_load_dword v{V_DUM}, v{V_TCO}, {sq(S_WO)}, s{S_T0} offen {c.pol_touch}", 1, "vm", "dum")]
        return [Ins(f"s_mov_b32 s{S_T0}, {tile*16384 + half*8192}"),
                Ins(f"buffer_load_dword v{V_DUM}, v{V_TCH}, {sq(S_K if ten == 'K' else S_V)}, s{S_T0} offen {c.pol_touch}", 1, "vm", "dum")]

    prev = -1
    late = []
    for g0, kind, i, p in plan:
        ins = touch(*i) if kind == "T" else dma(kind, i, p)
        lo = max(g0, prev + 3, prev + len(ins))
        if kind == "X" and i >= 4:
            lo = max(lo, G[16 * x_issue[i] + c.D + 2])
        g = lo
        while tl.gaps[g].seq() and g < lo + c.slack:
            g += 1
        if tl.gaps[g].seq():
            g = min(range(lo, lo + c.slack), key=lambda k: (tl.gaps[k].added(ins[-1], 1), k))
        tl.gaps[g].mem.append(ins[-1])
        tl.chain(ins[:-1], max(prev + 1, g - 6), g - 1)
        prev = g
        late.append(g - g0)

    if c.stamps:
        for k, n in enumerate(c.stamps):
            tl.gaps[beg(n)].lead[0:0] = [Ins(t) for t in stamp(k + 1)]
    lin = tl.linear()
    ns = len(c.stamps) + 1 if c.stamps else 0
    ST = lambda k: [Ins(t) for t in stamp(ns + k)] if c.stamps else []

    I = lambda *ts: [Ins(t) for t in ts]
    lin += I("s_nop 7") + tail + ST(0) + tail_loads
    for ch in tail_flags:
        lin += [Ins("", 1, "waitv", {("st", ch)})] + flag(ch)
    SEL, ACC = 0, 8
    lin += I(f"v_lshrrev_b32 v16, 2, v{V_FLR}", f"v_lshrrev_b32 v17, 4, v{V_OUT}", "v_and_b32 v17, 3, v17",
             "v_and_b32 v18, 1, v16", "v_lshlrev_b32 v18, 4, v18", "v_mov_b32 v19, 0x3f80", "v_lshlrev_b32 v19, v18, v19",
             "v_lshrrev_b32 v18, 1, v16", "v_and_b32 v20, 2, v18", "v_sub_u32 v17, v17, v20",
             "v_and_b32 v18, 1, v18", "v_lshrrev_b32 v20, 3, v16", "v_lshl_add_u32 v18, v20, 1, v18",
             "v_lshl_add_u32 v18, v17, 2, v18")
    for r in range(8):
        lin += I(f"v_cmp_eq_u32 vcc, {r}, v18", "s_nop 1", f"v_cndmask_b32 v{SEL+r}, 0, v19, vcc")
    lin += [Ins("", 1, "waitv", {("st", 6)})] + flag(6) + ST(1)
    resolve_waits(lin)
    verify(lin, steps, slot_of)
    texts = [x.text for x in lin]
    T = lambda xs: [x.text for x in xs]
    if c.stamps:
        texts += [f"v_writelane_b32 v{V_STAMP}, s{S_OK}, 62", f"v_writelane_b32 v{V_STAMP}, s{S_OK+1}, 63"]
    texts += [f"s_mov_b32 s{S_T0}, 1", f"s_mov_b32 s{S_T1}, 0", "L_poll:"] + T(poll(0)) + ["s_waitcnt vmcnt(0)",
              f"v_readfirstlane_b32 s{S_SPIN}, v{V_POLL}", f"s_add_u32 s{S_T1}, s{S_T1}, 1", f"s_cmp_ge_u32 s{S_T1}, {c.spin_max}",
              f"s_cselect_b32 s{S_SPIN}, -1, s{S_SPIN}"]
    for r in range(3):
        okr = S_OK + r if r < 2 else S_T0
        if r == 2:
            texts += [f"s_or_b32 s{S_T2}, s{S_OK}, s{S_OK+1}", "s_cbranch_scc1 L_have2"]
        texts += [f"s_cmp_eq_u32 s{okr}, 0", f"s_cbranch_scc1 L_have{r}", f"s_andn2_b32 s{okr}, s{S_NEED+r}, s{S_SPIN}",
                  f"s_cbranch_scc1 L_have{r}"] + T(rloads(r, S_SRC + r)) + [f"L_have{r}:"]
    texts += [f"s_cmp_eq_u32 s{S_T0}, 0", "s_cbranch_scc1 L_all"]
    texts += ([f"s_sleep {c.sleep}"] if c.sleep else []) + ["s_branch L_poll", "L_all:"] + T(ST(2))
    texts += ["s_waitcnt vmcnt(16)"]
    for r in range(3):
        a = ACC + 8 * r
        for h in range(16):
            if r == 2:
                texts += [f"s_waitcnt vmcnt({15-h+2})"]
            for e in range(2):
                d = vr(a + 4 * e, 4)
                texts += [f"{MF} {d}, {vr(SEL+4*e,4)}, {ar(64*r+4*h,4)}, {d if h else 0}"]
        texts += ["s_nop 6"] + [f"v_cvt_pk_bf16_f32 v{40+4*r+k}, v{a+2*k}, v{a+2*k+1}" for k in range(4)]
        texts += [f"buffer_store_dwordx4 {vr(40+4*r,4)}, v{V_OUT}, {sq(S_OUT)}, s{S_DST+r} offen"]
    if c.stamps:
        texts += stamp(ns + 3) + ["s_waitcnt vmcnt(0)"] + stamp(ns + 4)
        texts += [
                  f"v_lshrrev_b32 v8, 2, v{V_ST}", "v_and_b32 v8, 255, v8", "s_lshl_b32 s3, s2, 8", "s_add_u32 s3, s3, 0x8000000",
                  f"s_cmp_lg_u32 s{S_W}, 0", "s_cbranch_scc1 L_end", f"buffer_store_dword v{V_STAMP}, v8, {sq(S_ALL)}, s3 offen"]
    texts, probs = check_hazards(texts, fix=True)
    stats = dict(n=len(texts), nops=len(probs), cost=[tl.cost(beg(n), end(n)) for n in range(NS)], maxlate=max(late),
                 stl=[round((st_last[k] - beg(nO0)) / 96, 2) for k in range(6)])
    texts += ["L_end:", "s_endpgm"]
    texts += ["L_dbgspin:", f"s_mov_b32 s{S_SPIN}, 0", "L_dspin:", f"buffer_load_dword v{V_POLL}, off, {sq(S_DBG)}, s{S_GRP} sc1",
              "s_waitcnt vmcnt(0)", f"v_cmp_gt_u32 vcc, 1, v{V_POLL}", f"s_add_u32 s{S_SPIN}, s{S_SPIN}, 1",
              f"s_cmp_ge_u32 s{S_SPIN}, {c.spin_max}", "s_cbranch_scc1 L_dbgback", "s_cbranch_vccnz L_dspin", "s_branch L_dbgback"]
    texts += ["L_stub0:"] + rare_path(0) + ["s_branch L_back0"]
    for j in range(1, 16):
        texts += [f"L_stub{j}:", f"s_call_b64 s[{S_RET}:{S_RET+1}], L_rare{j&1}", f"s_branch L_back{j}"]
    for par in range(2):
        texts += [f"L_rare{par}:"] + rare_path(par + 2) + [f"s_setpc_b64 s[{S_RET}:{S_RET+1}]"]
    return texts, stats, probs

def verify(lin, steps, slot_of):
    pending, lq, vq = {}, [], []
    issued, landed, visible = {}, set(), set()
    last_epoch, epoch, in_slot, cnt = {}, 0, {}, {}
    xslots = {5: (5,), 6: (4, 5), 7: (4,), 8: (6,)}
    for ins in lin:
        t = ins.text
        if ins.tag == "vm":
            vq.append(ins.meta)
            issued[ins.meta] = issued.get(ins.meta, 0) + 1
            landed.discard(ins.meta)
            if isinstance(ins.meta, tuple) and ins.meta[0] == "X" and ins.meta[1] >= 3:
                assert cnt.get(("X", ins.meta[1] - 3), 0) == 6, ("x region reused early", ins.meta)
            if isinstance(ins.meta, tuple) and ins.meta[0] == "fl":
                assert ("st", ins.meta[1]) in landed and issued[("st", ins.meta[1])] == 6, ins.meta
            if isinstance(ins.meta, tuple) and ins.meta[0] == "S":
                m = ins.meta[1]
                s = slot_of[m]
                old = in_slot.get(s)
                if old is None:
                    for kc in xslots.get(s, ()):
                        assert cnt.get(("X", kc), 0) == 6 and last_epoch[("X", kc)] < epoch, ("slot under x", m)
                elif old != m:
                    assert cnt.get(old, 0) == (16 if steps[old][0] == "K" else 32), ("slot reused early", m, old)
                    assert last_epoch[old] < epoch, ("slot reuse without barrier", m, old)
                in_slot[s] = m
        elif t.startswith("s_waitcnt"):
            mv = re.search(r"vmcnt\((\d+)\)", t)
            if mv:
                k = max(0, len(vq) - int(mv.group(1)))
                done, vq = vq[:k], vq[k:]
                landed |= {d for d in done if d not in vq}
            ml = re.search(r"lgkmcnt\((\d+)\)", t)
            if ml:
                k = max(0, len(lq) - int(ml.group(1)))
                done, lq = lq[:k], lq[k:]
                for rs, tok in done:
                    for r in rs:
                        pending.pop(r, None)
                    key = tok // 16 if isinstance(tok, int) else tok
                    cnt[key] = cnt.get(key, 0) + 1
                    last_epoch[key] = epoch
        elif t == "s_barrier":
            visible |= {d for d in landed if not (isinstance(d, tuple) and d[0] == "S") or issued[d] == 4}
            epoch += 1
        elif ins.tag == "ds":
            wr, tok = rw(t)[1], ins.meta
            if isinstance(tok, int):
                assert ("S", tok // 16) in visible, ("read before visible", tok)
            else:
                assert tok in landed and issued[tok] == 6, ("x read before landed", tok)
            lq.append((wr, tok))
            for r in wr:
                pending[r] = tok
        elif t.startswith("v_mfma"):
            for r in rw(t)[2]:
                assert r not in pending, ("mfma reads in-flight fragment", t)
        assert len(vq) <= 63, "vmcnt overflow"

def emit(c, path):
    main, stats, probs = build_main(c)
    K1 = NAME + "_kernel"
    s = "; @launch grid=(256,1,1) block=(256,1,1) lds=163840\n"
    s += '.amdgcn_target "amdgcn-amd-amdhsa--gfx950"\n.text\n'
    s += f".globl {K1}\n.p2align 8\n.type {K1},@function\n{K1}:\n"
    s += "\n".join(x if x.endswith(":") else "    " + " ".join(x.split()) for x in main) + "\n"
    if c.code_pf:
        s += ".fill 2048, 4, 0xbf810000\n"
    s += f""".section .rodata,"a"
.p2align 6
.amdhsa_kernel {K1}
  .amdhsa_next_free_vgpr 512
  .amdhsa_next_free_sgpr 102
  .amdhsa_accum_offset 256
  .amdhsa_group_segment_fixed_size 0
  .amdhsa_kernarg_size 104
  .amdhsa_user_sgpr_count 2
  .amdhsa_user_sgpr_kernarg_segment_ptr 1
  .amdhsa_system_sgpr_workgroup_id_x 1
  .amdhsa_float_denorm_mode_32 3
.end_amdhsa_kernel
"""
    open(path, "w").write(s)
    return stats, probs

if __name__ == "__main__":
    c = Cfg()
    for kv in sys.argv[2:]:
        k, v = kv.split("=", 1)
        setattr(c, k, eval(v))
    stats, probs = emit(c, sys.argv[1])
    print(stats, "total cost", sum(stats["cost"]))
    for p in probs[:30]:
        print("  nop", p)
```

```python
import sys
from core2 import *

NAME = "concat_heads__mha_block_cached__gqa_block_cached__near_ridge"
BLK, SLOT = 8448, 16896
WPOS = [0, 1032, 2112, 3144]
MF = "v_mfma_f32_16x16x32_bf16"
FLB = 0x3000000
OOB = 0x10000000

class Cfg:
    D = 6
    NF = 12
    pol_x = ""
    pol_wq = ""
    pol_kv = "nt"
    pol_wo = ""
    pol_touch = ""
    rot = True
    stamps = False
    code_pf = True
    chain = True
    TH = 0x4B800000
    TL = 0x33800000
    kv_early = [3, 5, 6.5, 8, 9.5, 12, 13]
    kv_last = 42.0
    wo_la = 6
    bar_q = 1
    bar_a = 2
    bar_o = 2
    ones_at = 12
    touch = []
    touch_wo = []
    spin_max = 40000
    sleep = 0
    cnt_site = 16
    flags = (1, 3, 4, 5)
    flag_delay = 75
    early = (4.2, 6.0)
    poll_wait = 0.65
    load_gap = 4
    slack = 12
    diag = None

S_X, S_WQ, S_K, S_V, S_WO, S_WS = 8, 12, 16, 20, 24, 28
S_W, S_LDSW, S_TL, S_LDSX = 32, 33, 34, 35
S_WQOFF, S_XOFF, S_WOOFF, S_STOFF = 36, 43, 56, 63
S_T0, S_T1, S_C, S_TH, S_RET = 50, 51, 52, 53, 54
S_T2, S_SPIN, S_STAMP, S_SITE = 70, 71, 72, 7
S_OUT, S_ALL, S_DBG = 76, 80, 84
S_SRC, S_DST, S_NEED, S_FLR, S_OK, S_GRP = 88, 91, 94, 97, 100, 6
V_P, V_E, V_L, V_CHK, V_OV = 96, 120, 128, 136, 144
V_S, V_NEGM, V_SALT = 192, 216, 228
V_DWQ, V_DWU, V_DX, V_RW, V_RU, V_RX, V_TCH, V_TCO, V_DUM = 192, 193, 194, 195, 196, 197, 199, 200, 203
V_DKV, V_RK, V_RT, V_DWO, V_RO, V_ST, V_FLW, V_FLR, V_OUT, V_STAMP = 240, 241, 244, 247, 248, 251, 252, 253, 254, 255
V_RINV, V_FV, V_POLL = 228, 231, 232
A_ONE, A_FR = 192, 208

def steps_list():
    st = [("W", 0), ("W", 1)] + [("U", k) for k in range(12)] + [("K", 0)]
    for j in range(1, 16):
        st += [("K", j), ("V", j - 1)]
    return st + [("V", 15)] + [("O", k) for k in range(14)]

def srd(d, lo, hi, nbytes):
    return [f"s_mov_b32 s{d}, s{lo}", f"s_and_b32 s{d+1}, s{hi}, 0xffff", f"s_mov_b32 s{d+2}, {nbytes}",
            f"s_mov_b32 s{d+3}, 0x00020000"]
def sq(d):
    return f"s[{d}:{d+3}]"

def stamp(k):
    return [f"s_memrealtime s[{S_STAMP}:{S_STAMP+1}]", f"s_memtime s[{S_STAMP+2}:{S_STAMP+3}]", "s_waitcnt lgkmcnt(0)",
            f"v_writelane_b32 v{V_STAMP}, s{S_STAMP}, {k}", f"v_writelane_b32 v{V_STAMP}, s{S_STAMP+2}, {32+k}"]

def prologue1(c):
    o = ["s_cmp_ge_u32 s2, 256", "s_cbranch_scc1 L_end"]
    if c.stamps:
        o += [f"v_mov_b32 v{V_STAMP}, 0"] + stamp(0)
    o += ["s_load_dwordx8 s[76:83], s[0:1], 0", "s_load_dwordx2 s[84:85], s[0:1], 32",
          "s_load_dwordx2 s[86:87], s[0:1], 40", "s_load_dwordx8 s[88:95], s[0:1], 48",
          "s_load_dwordx2 s[96:97], s[0:1], 96",
          "v_lshrrev_b32 v1, 6, v0", "v_and_b32 v2, 63, v0", f"v_readfirstlane_b32 s{S_W}, v1",
          "s_and_b32 s6, s2, 7", "s_lshr_b32 s7, s2, 3", "s_lshr_b32 s3, s6, 2", "s_and_b32 s5, s6, 3",
          "s_lshl_b32 s5, s5, 2", "s_and_b32 s6, s7, 3", "s_add_u32 s5, s5, s6", "s_lshr_b32 s4, s7, 2"]
    if c.rot == 1:
        o += ["s_lshl_b32 s98, s6, 1", "s_add_u32 s98, s98, s4", "s_cmp_ge_u32 s98, 7", "s_cselect_b32 s99, 7, 0",
              "s_sub_u32 s98, s98, s99", "s_cmp_ge_u32 s98, 7", "s_cselect_b32 s99, 7, 0", "s_sub_u32 s98, s98, s99"]
    elif c.rot == 2:
        o += ["s_cmp_eq_u32 s4, 7", "s_cselect_b32 s98, 0, s4"]
    else:
        o += ["s_mov_b32 s98, 0"]
    for k in range(7):
        o += [f"s_lshl_b32 s{S_WQOFF+k}, s98, 19", f"s_lshl_b32 s{S_XOFF+k}, s98, 7"]
        if k < 6:
            o += ["s_add_u32 s98, s98, 1", "s_cmp_eq_u32 s98, 7", "s_cselect_b32 s98, 0, s98"]
    o += ["v_lshrrev_b32 v3, 5, v2", "v_and_b32 v4, 31, v2", "v_lshlrev_b32 v4, 4, v4",
          f"s_lshr_b32 s98, s{S_W}, 1", f"s_and_b32 s99, s{S_W}, 1",
          "v_lshrrev_b32 v5, 3, v2", "v_lshrrev_b32 v6, 4, v2", "v_lshlrev_b32 v7, 1, v6", "v_and_b32 v8, 7, v2",
          "v_xor_b32 v7, v7, v8", "v_lshlrev_b32 v7, 4, v7", f"s_mul_i32 s{S_T0}, s{S_W}, 43008",
          "v_mul_u32_u24 v9, 896, v5", f"v_add3_u32 v{V_DX}, v9, v7, s{S_T0}",
          f"s_lshl_b32 s{S_T0}, s99, 16", f"s_lshl_b32 s{S_T1}, s98, 15", f"s_add_u32 s{S_T0}, s{S_T0}, s{S_T1}",
          "v_lshlrev_b32 v9, 17, v3", f"v_add3_u32 v{V_DWQ}, v9, v4, s{S_T0}",
          f"s_mul_i32 s{S_LDSW}, s98, {BLK}", f"s_mul_i32 s{S_T0}, s99, 4224", f"s_add_u32 s{S_LDSW}, s{S_LDSW}, s{S_T0}",
          f"s_mul_i32 s{S_LDSX}, s{S_W}, 6144", f"s_mul_i32 s{S_T0}, s4, 172032", f"s_lshl_b32 s{S_T1}, s5, 9",
          f"s_mov_b32 s{S_X+2}, 172032", f"s_mov_b32 s{S_X+3}, 0x00020000",
          f"s_mov_b32 s{S_WQ+2}, {447*8192+512}", f"s_mov_b32 s{S_WQ+3}, 0x00020000",
          "s_cmp_eq_u32 s3, 0", "s_waitcnt lgkmcnt(0)",
          "s_cselect_b32 s76, s76, s86", "s_cselect_b32 s77, s77, s87", "s_cselect_b32 s82, s82, s92", "s_cselect_b32 s83, s83, s93",
          f"s_add_u32 s{S_X}, s76, s{S_T0}", f"s_addc_u32 s{S_X+1}, s77, 0", f"s_and_b32 s{S_X+1}, s{S_X+1}, 0xffff",
          f"s_add_u32 s{S_WQ}, s82, s{S_T1}", f"s_addc_u32 s{S_WQ+1}, s83, 0", f"s_and_b32 s{S_WQ+1}, s{S_WQ+1}, 0xffff"]
    return o

def prologue2(c):
    T0, T1, T2 = f"s{S_T0}", f"s{S_T1}", f"s{S_T2}"
    o = ["s_cmp_eq_u32 s3, 0"]
    for k in (78, 79, 80, 81, 84, 85):
        o += [f"s_cselect_b32 s{k}, s{k}, s{k+10}"]
    o += ["s_load_dwordx4 s[88:91], s[0:1], 80",
          "s_lshl_b32 s7, s4, 4", "s_add_u32 s7, s7, s5", f"s_lshl_b32 {T0}, s7, 18",
          f"s_add_u32 s78, s78, {T0}", "s_addc_u32 s79, s79, 0", f"s_add_u32 s80, s80, {T0}", "s_addc_u32 s81, s81, 0"]
    o += srd(S_K, 78, 79, 262144) + srd(S_V, 80, 81, 262144)
    o += [f"s_mul_i32 {T0}, s5, 229376", f"s_add_u32 s84, s84, {T0}", "s_addc_u32 s85, s85, 0"]
    o += srd(S_WO, 84, 85, 229376)
    o += [f"s_lshl_b32 {T0}, s3, 7", f"s_add_u32 s7, s7, {T0}", f"s_mul_i32 {T0}, s7, 172032",
          f"s_add_u32 s100, s96, {T0}", "s_addc_u32 s101, s97, 0"]
    o += srd(S_WS, 100, 101, 172032) + srd(S_ALL, 96, 97, OOB)
    o += ["s_cmp_eq_u32 s98, 0"]
    for bb in range(3):
        o += [f"s_cselect_b32 s{S_WQOFF+1+bb}, s{S_WQOFF+1+2*bb}, s{S_WQOFF+2+2*bb}"]
    o += ["s_cmp_eq_u32 s4, 7", "s_cselect_b32 s101, 0, s4"] if c.rot else ["s_mov_b32 s101, 0"]
    o += [f"s_mov_b32 {T0}, s101"]
    for k in range(7):
        o += [f"s_lshl_b32 s{S_WOOFF+k}, {T0}, 7", f"s_mul_i32 s{S_STOFF+k}, {T0}, 24576"]
        if k < 6:
            o += [f"s_add_u32 {T0}, {T0}, 1", f"s_cmp_eq_u32 {T0}, 7", f"s_cselect_b32 {T0}, 0, {T0}"]
    o += [f"s_mov_b32 s{S_C}, 0x3db8aa3b", f"s_mov_b32 s{S_TH}, {c.TH}", f"s_mov_b32 s{S_TL}, {c.TL}",
          f"s_lshl_b32 {T0}, s98, 13", f"s_lshl_b32 {T1}, s99, 11", f"s_add_u32 {T0}, {T0}, {T1}",
          "v_lshlrev_b32 v9, 12, v3", f"v_add3_u32 v{V_DKV}, v9, v4, {T0}",
          f"s_mul_i32 {T0}, s98, {64*896}", f"s_mul_i32 {T1}, s99, {4*896}", f"s_add_u32 {T0}, {T0}, {T1}",
          "v_mul_u32_u24 v9, 7168, v5", "v_lshlrev_b32 v10, 4, v8", f"v_add3_u32 v{V_DWO}, v9, v10, {T0}",
          "v_lshl_add_u32 v10, v3, 18, v10", "v_and_b32 v11, 1, v5", "v_lshl_add_u32 v10, v11, 17, v10",
          "v_and_b32 v12, 1, v6", "v_lshl_add_u32 v10, v12, 15, v10", f"s_lshl_b32 {T0}, s99, 16",
          f"v_add_u32 v{V_DWU}, {T0}, v10",
          "v_lshlrev_b32 v9, 4, v2", f"v_add_u32 v{V_ST}, s{S_LDSX}, v9",
          "v_lshrrev_b32 v13, 2, v2", "v_and_b32 v13, 7, v13", "v_mul_u32_u24 v9, 1056, v13",
          "v_and_b32 v10, 3, v2", "v_lshl_add_u32 v9, v10, 3, v9",
          f"v_lshl_add_u32 v{V_RT}, v3, 9, v9", f"v_lshl_add_u32 v{V_RO}, v3, 7, v9",
          "v_lshlrev_b32 v9, 10, v13", "v_and_b32 v14, 1, v13", "v_lshl_add_u32 v9, v14, 3, v9",
          "v_lshrrev_b32 v14, 1, v13", "v_lshl_add_u32 v9, v14, 6, v9", "v_lshl_add_u32 v9, v10, 4, v9",
          f"v_lshl_add_u32 v{V_RW}, v3, 9, v9", f"v_lshl_add_u32 v{V_RU}, v3, 7, v9",
          "v_mul_u32_u24 v9, 1056, v8", "v_lshl_add_u32 v9, v11, 9, v9", f"v_lshl_add_u32 v{V_RK}, v6, 4, v9",
          "v_and_b32 v15, 15, v2", "v_lshlrev_b32 v9, 7, v15", "v_and_b32 v14, 6, v2", "v_xor_b32 v14, v14, v6",
          "v_lshl_add_u32 v9, v14, 4, v9", f"s_add_u32 {T0}, s{S_LDSX}, {10*BLK}",
          f"v_add_u32 v{V_RX}, {T0}, v9", "v_xor_b32 v9, 64, v9", f"v_add_u32 v{V_RX+1}, {T0}, v9",
          f"v_mov_b32 v14, {OOB}", "v_cmp_gt_u32 vcc, 16, v2",
          f"s_lshl_b32 {T0}, s{S_W}, 11", f"v_lshl_add_u32 v9, v2, 7, {T0}", f"v_cndmask_b32 v{V_TCH}, v14, v9, vcc",
          "v_mul_u32_u24 v9, 7, v9", f"v_cndmask_b32 v{V_TCO}, v14, v9, vcc",
          "v_cmp_gt_u32 vcc, 1, v2", "s_nop 1", f"v_cndmask_b32 v{V_FLW}, v14, v2, vcc",
          f"v_lshlrev_b32 v{V_FLR}, 2, v15",
          "v_mul_u32_u24 v9, 1792, v15", f"v_lshl_add_u32 v{V_OUT}, v6, 4, v9"]
    for base in (V_RK, V_RT, V_RO):
        o += [f"v_add_u32 v{base+1}, {3*SLOT}, v{base}", f"v_add_u32 v{base+2}, {6*SLOT}, v{base}"]
    o += ["v_mov_b32 v11, 0x3f803f80"]
    for t in range(3):
        o += [f"v_cmp_eq_u32 vcc, {t}, v10", "s_nop 1", "v_cndmask_b32 v9, 0, v11, vcc"]
        o += [f"v_accvgpr_write_b32 a{A_ONE+4*t+r}, v9" for r in range(4)]
    o += [f"v_mov_b32 v{V_NEGM+r}, 0" for r in range(12)]
    o += ["s_waitcnt lgkmcnt(0)"] + srd(S_OUT, 88, 89, 8 * 192 * 896 * 2) + srd(S_DBG, 90, 91, 256)
    o += ["s_lshr_b32 s6, s7, 4",
          f"s_lshl_b32 {T0}, s6, 2", f"s_add_u32 {T0}, {T0}, s{S_W}", f"s_lshl_b32 {T0}, {T0}, 8", f"s_add_u32 s{S_FLR}, {T0}, {FLB}",
          f"s_lshl_b32 s100, s{S_W}, 2", "s_add_u32 s100, s100, s5", "s_and_b32 s100, s100, 15"]
    sig = sorted(set(c.flags) | {6})
    tab = 0
    for ch in range(7):
        tab |= (min(x for x in sig if x >= ch) - 1) << (4 * ch)
    for r in range(3):
        if r == 0:
            o += [f"s_add_u32 {T0}, s100, 12", "s_cmp_lt_u32 s100, 12", f"s_cselect_b32 {T0}, s100, {T0}"]
        else:
            o += [f"s_add_u32 {T0}, s100, {8 if r == 1 else 26}"]
        o += [f"s_mul_i32 {T1}, {T0}, 43", f"s_lshr_b32 {T1}, {T1}, 8", f"s_mul_i32 {T2}, {T1}, 6", f"s_sub_u32 {T0}, {T0}, {T2}",
              f"s_lshl_b32 {T2}, {T1}, 2", f"s_lshr_b32 {T2}, {tab}, {T2}", f"s_and_b32 {T2}, {T2}, 15",
              f"s_mul_i32 {T2}, {T2}, 5", f"s_lshl_b32 s{S_NEED+r}, 16, {T2}",
              f"s_add_u32 {T1}, {T1}, s101", f"s_cmp_ge_u32 {T1}, 7", f"s_cselect_b32 {T2}, 7, 0", f"s_sub_u32 {T1}, {T1}, {T2}",
              f"s_mul_i32 s{S_SRC+r}, s6, 2752512", f"s_mul_i32 {T2}, {T1}, 24576", f"s_add_u32 s{S_SRC+r}, s{S_SRC+r}, {T2}",
              f"s_lshl_b32 {T2}, {T0}, 10", f"s_add_u32 s{S_SRC+r}, s{S_SRC+r}, {T2}",
              f"s_lshl_b32 s7, {T1}, 7", f"s_and_b32 {T2}, {T0}, 1", f"s_lshl_b32 {T2}, {T2}, 6", f"s_add_u32 s7, s7, {T2}",
              f"s_lshr_b32 {T0}, {T0}, 1", f"s_mul_i32 {T2}, s{S_W}, 3", f"s_add_u32 {T0}, {T0}, {T2}",
              f"s_mul_i32 {T0}, {T0}, 28672", f"s_add_u32 s7, s7, {T0}",
              f"s_mul_i32 {T0}, s4, 344064", f"s_add_u32 s7, s7, {T0}", f"s_mul_i32 {T0}, s3, 896", f"s_add_u32 s{S_DST+r}, s7, {T0}"]
    for r, cmp in ((0, "s_cmp_lt_u32 s100, 14"), (1, "s_cmp_ge_u32 s100, 4")):
        o += [cmp, f"s_cselect_b32 s{S_SRC+r}, s{S_SRC+r}, {OOB}", f"s_cselect_b32 s{S_DST+r}, s{S_DST+r}, {OOB}",
              f"s_cselect_b32 s{S_NEED+r}, s{S_NEED+r}, 0"]
    o += [f"s_lshl_b32 s{S_GRP}, s6, 4", "s_cmp_eq_u32 s5, 0", f"s_cselect_b32 {T2}, s{S_FLR}, {OOB}",
          f"s_or_b32 {T0}, s5, s{S_W}", f"s_cselect_b32 s{S_SITE}, 0x1000, s{S_GRP}"]
    return o

def qacc(t, q):
    return ((t >> 1) * 3 + q) * 8 + (t & 1) * 4
def sreg(j, kt, q):
    return (V_SALT if (j == 0 and kt == 0) else V_S + 12 * kt) + q * 4
def preg(j, q):
    return V_P + (j & 1) * 12 + q * 4
def lreg(j):
    return V_L + (j & 1) * 4
def oreg(t, q):
    return ("v", V_OV + (t * 3 + q) * 4) if t < 4 else ("a", (t * 3 + q) * 4)
def oacc(ch, nt, q):
    return (96 if ch % 2 == 0 else 144) + (q * 4 + nt) * 4

def softmax_items(j, kt, tmp, qorder=(0, 1, 2)):
    out, pend = [], None
    for q in qorder:
        for hf in range(2):
            e = V_E + 2 * (tmp[0] % 4)
            tmp[0] += 1
            out.append(Ins(f"v_exp_f32 v{e}, v{sreg(j,kt,q)+2*hf}", 2, meta=q))
            if pend:
                out.append(pend)
            out.append(Ins(f"v_exp_f32 v{e+1}, v{sreg(j,kt,q)+2*hf+1}", 2, meta=q))
            pend = Ins(f"v_cvt_pk_bf16_f32 v{preg(j,q)+2*kt+hf}, v{e}, v{e+1}", 1, meta=q)
    return out, pend

def ones_mfma(j):
    o = []
    for q in range(3):
        cin = vr(lreg(j), 4) if q else (vr(lreg(j - 1), 4) if j else "0")
        o.append(f"{MF} {vr(lreg(j),4)}, {ar(A_ONE+4*q,4)}, {vr(preg(j,q),4)}, {cin}")
    return o

def rare_path(j):
    D, F, T = (138, None, 141) if j == 0 else (228, 231, 234)
    o = ["s_nop 7", "s_nop 7"]
    for q in range(3):
        a, b = sreg(j, 0, q), sreg(j, 1, q)
        o += [f"v_max3_f32 v{D+q}, v{a}, v{a+1}, v{a+2}", f"v_max3_f32 v{D+q}, v{D+q}, v{a+3}, v{b}",
              f"v_max3_f32 v{D+q}, v{D+q}, v{b+1}, v{b+2}", f"v_max_f32 v{D+q}, v{D+q}, v{b+3}"]
    for op in ("v_permlane32_swap_b32", "v_permlane16_swap_b32"):
        o += [f"v_mov_b32 v{T+q}, v{D+q}" for q in range(3)] + ["s_nop 1"]
        o += [f"{op} v{T+q}, v{D+q}" for q in range(3)]
        o += [f"v_max_f32 v{D+q}, v{D+q}, v{T+q}" for q in range(3)]
    if j:
        o += [f"v_max_f32 v{D+q}, 0, v{D+q}" for q in range(3)]
        o += [f"v_exp_f32 v{F+q}, -v{D+q}" for q in range(3)]
    for q in range(3):
        tgt = [V_NEGM + 4 * q, sreg(j, 0, q), sreg(j, 1, q)] + ([sreg(1, 0, q)] if j == 0 else [])
        for a in tgt:
            o += [f"v_sub_f32 v{a+r}, v{a+r}, v{D+q}" for r in range(4)]
        if j:
            o += [f"v_mul_f32 v{lreg(j-1)+q}, v{lreg(j-1)+q}, v{F+q}"]
    tmp = [0]
    for kt in range(2):
        it, pend = softmax_items(j, kt, tmp)
        o += [x.text for x in it] + ["s_nop 0", pend.text]
    if j:
        for t in range(16):
            for q in range(3):
                f, a = oreg(t, q)
                if f == "v":
                    o += [f"v_mul_f32 v{a+r}, v{a+r}, v{F+q}" for r in range(4)]
                else:
                    o += [f"v_accvgpr_read_b32 v{T+r}, a{a+r}" for r in range(4)]
                    o += [f"v_mul_f32 v{T+r}, v{T+r}, v{F+q}" for r in range(4)]
                    o += [f"v_accvgpr_write_b32 a{a+r}, v{T+r}" for r in range(4)]
    o += ["s_nop 1"] + ones_mfma(j) + ["s_nop 7", "s_nop 7"]
    return check_hazards(o, fix=True)[0]

def order(mode):
    if mode == "A3":
        return [(f, q if f % 2 == 0 else 2 - q) for f in range(16) for q in range(3)]
    out = []
    for b in range(4):
        for qi in range(3):
            q = qi if b % 2 == 0 else 2 - qi
            rng = range(4) if qi % 2 == 0 else range(3, -1, -1)
            out += [(4 * b + i, q) for i in rng]
    return out

def build_main(c):
    steps = steps_list()
    NS = len(steps)
    idx = {s: n for n, s in enumerate(steps)}
    tl = Timeline()
    G, USE, LAST, ONES, FIN = {}, {}, {}, {}, {}
    fb = lambda F: A_FR + 4 * (F % c.NF)
    def mode(n):
        ty, k = steps[n]
        return "CH" if c.chain and (ty in "UK" or (ty == "O" and k >= 2)) else "A3"
    def ki(n, f):
        return (f & 3, f >> 2) if (mode(n) == "CH" or steps[n][0] == "U") else (f >> 2, f & 3)
    started = set()
    for n, (ty, k) in enumerate(steps):
        for m, (f, q) in enumerate(order(mode(n))):
            F = 16 * n + f
            if ty == "W":
                key, d, b, c0 = ("Q", f, q), vr(qacc(f, q), 4), ar((k * 3 + q) * 4, 4), "0"
            elif ty == "U":
                i, nt = ki(n, f)
                t = 4 * (k & 3) + nt
                key, d, b, c0 = ("Q", t, q), vr(qacc(t, q), 4), ar(((4 * (k >> 2) + 2 + i) * 3 + q) * 4, 4), "0"
            elif ty == "K":
                kt, s = f >> 3, f & 7
                key, d, b, c0 = ("S", k, kt, q), vr(sreg(k, kt, q), 4), vr((s * 3 + q) * 4, 4), vr(V_NEGM + 4 * q, 4)
            elif ty == "V":
                fl, a = oreg(f, q)
                key, d, b, c0 = ("O", f, q), vr(a, 4, fl), vr(preg(k, q), 4), "0"
            else:
                i, nt = ki(n, f)
                s = (k & 1) * 4 + i
                key, d, b, c0 = ("P", k >> 1, nt, q), vr(oacc(k >> 1, nt, q), 4), vr((s * 3 + q) * 4, 4), "0"
            i_m = tl.add_mfma(f"{MF} {d}, {ar(fb(F),4)}, {b}, {d if key in started else c0}")
            started.add(key)
            FIN[key] = i_m
            if m % 3 == 0:
                G[16 * n + m // 3] = i_m
            USE.setdefault(F, i_m)
            LAST[F] = i_m
            if ty == "O":
                USE.setdefault(("B", s), i_m)
            if (ty, k) == ("K", 0):
                USE.setdefault(("QB", s), i_m)
            jn = None
            if ty == "V" and k < 15 and m == 3 * c.ones_at + 2:
                jn = k + 1
            if (ty, k) == ("K", 1) and m == 11:
                jn = 0
            if jn is not None:
                for t in ones_mfma(jn):
                    ONES[jn] = tl.add_mfma(t)
    NM = len(tl.mf)
    beg = lambda n: G[16 * n]
    end = lambda n: (G[16 * (n + 1)] - 1) if n + 1 < NS else NM - 1
    at = lambda x: min(NM - 1, beg(int(x)) + int((x - int(x)) * (end(int(x)) - beg(int(x)) + 1)))
    nK0, nV15, nO0 = idx[("K", 0)], idx[("V", 15)], idx[("O", 0)]

    bsteps = [n for n in range(0, nK0, c.bar_q)]
    if c.bar_q == 2:
        bsteps = [0] + list(range(1, nK0, 2))
    bsteps += [nK0] + list(range(nK0 + c.bar_a, nV15, c.bar_a))
    bsteps += list(range(nV15, NS - 1, c.bar_o))
    bsteps = sorted(set(bsteps))
    bgap = {n: G[16 * (n + 1) - c.D] for n in bsteps}
    covers = {n: list(range(n + 1, (bsteps[i + 1] if i + 1 < len(bsteps) else NS - 1) + 1)) for i, n in enumerate(bsteps)}
    def freed(m):
        later = [n for n in bsteps if n >= m + 1]
        return bgap[later[0]] + 1 if later else NM

    xreg = lambda kc: [16, 13, 10][kc % 3] * BLK
    x_issue = {2: 0, 3: 0, 4: 1, 5: 2, 6: 3}
    x_read = {1: 0, 2: 1, 3: 2, 4: 3, 5: 4, 6: 5}
    free_at = {0: -1, 1: -1, 2: -1, 3: -1, 4: -1, 7: freed(x_read[4]), 5: freed(x_read[5]), 6: freed(x_read[5]), 8: freed(x_read[6])}
    plan = []
    def add(kind, i, p0, p1, npc):
        for p in range(npc):
            plan.append([at(p0 + (p1 - p0) * p / npc), kind, i, p])
    per = {}
    for m in range(2, 14):
        per.setdefault(m - 2, []).append(("S", m, 4))
    for kc, n in x_issue.items():
        per.setdefault(n, []).append(("X", kc, 6))
    for n, items in per.items():
        tot, a = max(8, sum(x[2] for x in items)), 0
        for kind, i, npc in items:
            add(kind, i, n + a / tot, n + (a + npc) / tot, npc)
            a += npc
    for m, x in zip(range(14, 14 + len(c.kv_early)), c.kv_early):
        add("S", m, x + 0.5, x + 1.0, 4)
    m0 = 14 + len(c.kv_early)
    w = (c.kv_last + 1 - 14) / (46 - m0)
    for m in range(m0, 46):
        add("S", m, 14 + (m - m0) * w, 14 + (m - m0 + 1) * w, 4)
    x = c.kv_last + 1
    for m in range(46, 60):
        x = max(x, m - c.wo_la)
        add("S", m, x, x + 0.6, 4)
        x += 0.6
    first = {}
    for e in plan:
        first.setdefault((e[1], e[2]), e[0])
    plan.sort(key=lambda e: (first[(e[1], e[2])], e[1], e[2], e[3]))
    slot_of = {}
    def alloc(m, g):
        if m < 14:
            pool = [0, 1, 2, 3]
        elif 13 not in slot_of:
            pool = [4, 5, 6, 7, 8]
        else:
            pool = list(range(9))
        s = min(pool, key=lambda s: (free_at[s], s))
        g = max(g, free_at[s])
        slot_of[m] = s
        free_at[s] = freed(m)
        return g
    alloc(0, -1); alloc(1, -1)
    for e in plan:
        if e[1] == "S" and e[3] == 0:
            e[0] = alloc(e[2], e[0])
    for e in plan:
        if e[3] == 0:
            first[(e[1], e[2])] = e[0]
    plan.sort(key=lambda e: (first[(e[1], e[2])], e[1], e[2], e[3]))

    def dma(kind, i, p):
        if kind == "X":
            return [Ins(f"s_add_u32 m0, s{S_LDSX}, {xreg(i) + 1024*p}"), Ins(f"s_add_u32 s{S_T0}, s{S_XOFF+i}, {7168*p}"),
                    Ins(f"buffer_load_dwordx4 v{V_DX}, {sq(S_X)}, s{S_T0} offen {c.pol_x} lds", 1, "vm", ("X", i))]
        ty, k = steps[i]
        base = slot_of[i] * SLOT
        if ty in "WU":
            so, off, v = (S_WQOFF, (k * 32 + p) * 8192, V_DWQ) if ty == "W" else (S_WQOFF + 1 + (k >> 2), p * 8192 + (k & 3) * 128, V_DWU)
            return [Ins(f"s_add_u32 m0, s{S_LDSW}, {base + WPOS[p]}"), Ins(f"s_add_u32 s{S_T0}, s{so}, {off}"),
                    Ins(f"buffer_load_dwordx4 v{v}, {sq(S_WQ)}, s{S_T0} offen {c.pol_wq} lds", 1, "vm", ("S", i))]
        o = []
        if ty in "KV":
            g, sr, v, pol = 512 * p, (S_K if ty == "K" else S_V), V_DKV, c.pol_kv
            if p == 0:
                o.append(Ins(f"s_mov_b32 s{S_T1}, {k*16384}"))
        else:
            g, sr, v, pol = 896 * p, S_WO, V_DWO, c.pol_wo
            if p == 0:
                o.append(Ins(f"s_add_u32 s{S_T1}, s{S_WOOFF+(k>>1)}, {(k&1)*128*896}"))
        o.append(Ins(f"s_add_u32 m0, s{S_LDSW}, {base + 1056*p - g}"))
        off = f" offset:{g}" if g else ""
        o.append(Ins(f"buffer_load_dwordx4 v{v}, {sq(sr)}, s{S_T1} offen{off} {pol} lds", 1, "vm", ("S", i)))
        return o

    def reads(F):
        n, f = F // 16, F % 16
        ty, k = steps[n]
        s, r = slot_of[n], fb(F)
        win, base = s // 3, (s % 3) * SLOT
        if ty == "K":
            return [Ins(f"ds_read_b128 {ar(r,4)}, v{V_RK+win} offset:{base + (f>>3)*BLK + (f&7)*64}", 1, "ds", F)]
        if ty == "V":
            v, o0, dd = V_RT + win, base + f * 32, BLK
        elif ty == "W":
            v, o0, dd = V_RW, s * SLOT + (f >> 1) * 64 + (f & 1) * 8, BLK
        else:
            i, nt = ki(n, f)
            o0, dd = (i >> 1) * BLK + (i & 1) * 512, 256
            if ty == "U":
                v, o0 = V_RU, o0 + s * SLOT + (nt >> 1) * 64 + (nt & 1) * 8
            else:
                v, o0 = V_RO + win, o0 + base + nt * 32
        assert o0 + dd < 65536
        return [Ins(f"ds_read_b64_tr_b16 {ar(r,2)}, v{v} offset:{o0}", 1, "ds", F),
                Ins(f"ds_read_b64_tr_b16 {ar(r+2,2)}, v{v} offset:{o0+dd}", 1, "ds", F)]
    def xreads(kc):
        return [Ins(f"ds_read_b128 {ar(((2*kc+s)*3+q)*4,4)}, v{V_RX+s} offset:{xreg(kc) - 10*BLK + q*2048}", 1, "ds", ("X", kc))
                for s in range(2) for q in range(3)]

    P = lambda t: tl.put(-1, Ins(t) if isinstance(t, str) else t)
    for t in prologue1(c):
        P(t)
    pro = [("X", 0, p) for p in range(6)] + [("S", 0, p) for p in range(4)] + [("S", 1, p) for p in range(4)] + [("X", 1, p) for p in range(6)]
    for e in pro[:12]:
        for x in dma(*e):
            P(x)
    if c.code_pf:
        for t in ["s_getpc_b64 s[70:71]", f"s_lshr_b32 s{S_T0}, s2, 3", f"s_lshl_b32 s{S_T0}, s{S_T0}, 11",
                  f"s_add_u32 s70, s70, s{S_T0}", "s_addc_u32 s71, s71, 0", "v_and_b32 v12, 15, v2", "v_lshlrev_b32 v12, 7, v12"]:
            P(t)
        P(Ins(f"global_load_dword v{V_DUM}, v12, s[70:71]", 1, "vm", "dum"))
    for t in prologue2(c):
        P(t)
    for e in pro[12:]:
        for x in dma(*e):
            P(x)
    P(Ins(f"buffer_store_dword v{V_NEGM}, v{V_FLW}, {sq(S_ALL)}, s{S_T2} offen sc1", 1, "vm", "reset"))
    P(Ins("", 1, "waitv", {("X", 0), ("S", 0)}))
    P("s_barrier")
    for x in xreads(0):
        P(x)
    for F in range(c.D):
        for x in reads(F):
            P(x)
    P(Ins("", 1, "waitl", {0, ("X", 0)}))

    NFR = 16 * NS
    for F in range(c.D, NFR):
        g = G[F - c.D]
        assert F < c.NF or LAST[F - c.NF] <= g
        for k, x in enumerate(reads(F)):
            tl.put(g + k, x)
    hasread = lambda g: bool(tl.gaps[g].mem)
    def lead_before(ins, g, span=3):
        for i in range(g, g - span, -1):
            if i >= 0 and hasread(i) and not tl.gaps[i].lead:
                tl.gaps[i].lead.append(ins)
                return i
        return tl.back(ins, g, max(0, g - span))
    for n in bsteps:
        tl.gaps[bgap[n]].lead.append(Ins("s_barrier"))
        need = {("S", m) for m in covers[n]} | {("X", kc) for kc, r in x_read.items() if r == n}
        if n == 3:
            need.add("reset")
        if n == nK0:
            need.add("dum")
        lead_before(Ins("", 1, "waitv", need), bgap[n] - 1)
    for kc, r in x_read.items():
        assert r in bsteps
        tl.chain(xreads(kc), bgap[r] + 1, end(r) - 3)
    F = 1
    while F < NFR:
        grp = [F]
        if mode(F // 16) == "CH" and F % 4 == 1:
            grp = [F, F + 1, F + 2]
        need = set(grp)
        if F % 16 == 0 and steps[F // 16][0] == "U" and steps[F // 16][1] % 4 == 0:
            bb = steps[F // 16][1] >> 2
            need |= {("X", 2 * bb + 1), ("X", 2 * bb + 2)}
            tl.back(Ins("", 1, "waitl", need), USE[F] - 1, USE[F] - 1)
        else:
            lead_before(Ins("", 1, "waitl", need), min(USE[x] for x in grp) - 1)
        F += len(grp)

    cur = 0
    for s in range(8):
        it = []
        for q in sorted(range(3), key=lambda q: FIN[("Q", 2 * s + 1, q)]):
            src, dst = (s * 3 + q) * 8, (s * 3 + q) * 4
            rdy = FIN[("Q", 2 * s + 1, q)] + 4
            it += [(Ins(f"v_mul_f32 v{src+r}, s{S_C}, v{src+r}"), FIN[("Q", 2 * s + (r >> 2), q)] + 4) for r in range(8)]
            if s:
                it += [(Ins(f"v_cvt_pk_bf16_f32 v{dst+r}, v{src+2*r}, v{src+2*r+1}"), rdy) for r in range(4)]
        if s == 0:
            for q in range(3):
                it += [Ins(f"v_cvt_pk_bf16_f32 v{q*4+r}, v{q*8+2*r}, v{q*8+2*r+1}") for r in range(4)]
        lo = max(cur, it[0][1])
        hi = min(USE[("QB", s)] - 2, max(FIN[("Q", 2 * s + 1, q)] for q in range(3)) + 26)
        cur = tl.chain(it, lo, hi)[-1][0]
    q_done = cur

    tmp = [0]
    prev_branch = 0
    for j in range(16):
        it, pend = [], None
        for kt in range(2):
            qo = sorted(range(3), key=lambda q: FIN[("S", j, kt, q)])
            items, p = softmax_items(j, kt, tmp, qo)
            xs = [(x, FIN[("S", j, kt, x.meta)] + 5) for x in items]
            if pend:
                xs.insert(1, (pend, 0))
            it += xs
            pend = p
        lo = max(it[0][1], prev_branch + 1, q_done + 1)
        ps = tl.chain(it, lo, ONES[j] - 6)
        tl.chain([pend], ps[-1][0] + 1, ONES[j] - 5)
        l = lreg(j)
        br = (G[16 * idx[("K", 1)] + 8] - 1) if j == 0 else end(idx[("V", j - 1)])
        chk = [Ins(f"v_max3_f32 v{V_CHK}, v{l}, v{l+1}, v{l+2}"), Ins(f"v_cmp_nge_f32 vcc, s{S_TH}, v{V_CHK}")]
        if j == 0:
            chk = [Ins(f"v_min3_f32 v{V_CHK+1}, v{l}, v{l+1}, v{l+2}"), Ins(f"v_cmp_nle_f32 s[{S_RET}:{S_RET+1}], s{S_TL}, v{V_CHK+1}")] + chk
            chk += [Ins(f"s_or_b64 vcc, vcc, s[{S_RET}:{S_RET+1}]")]
        tl.chain(chk, ONES[j] + 5, br - 1)
        g = tl.gaps[br]
        sec = g.lead if not g.lead else g.rest
        sec += [Ins(f"s_cbranch_vccnz L_stub{j}"), Ins(f"L_back{j}:", 0)]
        prev_branch = br

    tl.chain([Ins(f"v_mov_b32 v{V_CHK+1}, 1"),
              Ins(f"buffer_atomic_add v{V_CHK+1}, v{V_FLW}, {sq(S_DBG)}, s{S_SITE} offen sc1", 1, "vm", "cnt")],
             beg(c.cnt_site + 1), beg(c.cnt_site + 1) + 14)

    tl.chain([Ins(f"v_rcp_f32 v{V_RINV+q}, v{lreg(15)+q}", 2) for q in range(3)], beg(nV15), beg(nV15) + 9)
    cur, rot = beg(nV15), 0
    for s in range(8):
        it = []
        for tp in range(2):
            for q in sorted(range(3), key=lambda q: FIN[("O", 2 * s + tp, q)]):
                fl, a = oreg(2 * s + tp, q)
                rdy = FIN[("O", 2 * s + tp, q)] + 4
                if fl == "a":
                    T = 216 + 4 * (rot % 2)
                    rot += 1
                    it += [(Ins(f"v_accvgpr_read_b32 v{T+r}, a{a+r}"), rdy) for r in range(4)]
                    a = T
                it += [(Ins(f"v_cvt_pk_bf16_f32 v{(s*3+q)*4+2*tp+h}, v{a+2*h}, v{a+2*h+1}"), rdy) for h in range(2)]
        lo = max(cur, it[0][1])
        dead = USE[("B", s)] - 2
        left = sum(12 if x < 2 else 36 for x in range(s, 8))
        share = lo + int((USE[("B", 7)] - 2 - lo) * (12 if s < 2 else 36) / left) + 1
        cur = tl.chain(it, lo, max(min(dead, share), min(dead, it[-1][1] + 2)))[-1][0]

    def chunk_out(ch):
        it = []
        pcs = sorted(range(6), key=lambda pc: FIN[("P", ch, 2 * (pc & 1) + 1, pc >> 1)])
        it.append((Ins(f"s_add_u32 s{S_T0}, s{S_STOFF+ch}, 4096"), 0))
        for pc in pcs:
            q, p = pc >> 1, pc & 1
            a, T = oacc(ch, 2 * p, q), 192 + 4 * pc
            rdy = FIN[("P", ch, 2 * p + 1, q)] + 4
            it += [(Ins(f"v_mul_f32 v{a+r}, v{a+r}, v{V_RINV+q}"), FIN[("P", ch, 2 * p + (r >> 2), q)] + 4) for r in range(8)]
            it += [(Ins(f"v_cvt_pk_bf16_f32 v{T+r}, v{a+2*r}, v{a+2*r+1}"), rdy) for r in range(4)]
            so = S_STOFF + ch if pc < 4 else S_T0
            it += [(Ins(f"buffer_store_dwordx4 {vr(T,4)}, v{V_ST}, {sq(S_WS)}, s{so} offen offset:{(pc&3)*1024} sc1", 1, "vm", ("st", ch)), rdy)]
        return it
    tail = []
    st_last = {}
    for ch in range(7):
        it = chunk_out(ch)
        lo = max(cur + 1, it[1][1])
        if ch < 6:
            cur = tl.chain(it, lo, end(nO0 + 2 * ch + 3) - 26)[-1][0]
            st_last[ch] = cur
        else:
            early = it[:1 + 3 * 13]
            if c.chain:
                tl.chain(early, lo, NM - 1)
                tail = [x for x, _ in it[len(early):]]
            else:
                tail = [x for x, _ in it]

    def flag(ch):
        return [Ins(f"v_mov_b32 v{V_FV}, {1 << (5 * (ch - 1))}"),
                Ins(f"buffer_atomic_add v{V_FV}, v{V_FLW}, {sq(S_ALL)}, s{S_FLR} offen sc1", 1, "vm", ("fl", ch))]
    def poll(tok):
        return [Ins(f"v_mov_b32 v{V_POLL}, 0"),
                Ins(f"buffer_atomic_add v{V_POLL}, v{V_FLW}, {sq(S_ALL)}, s{S_FLR} offen sc0 sc1", 1, "vm", tok)]
    def ready(r):
        return [f"s_andn2_b32 s{S_OK+r}, s{S_NEED+r}, s{S_SPIN}", f"s_cselect_b32 s{S_T2}, {OOB}, s{S_SRC+r}"]
    def rloads(r, so):
        o = []
        for h in range(16):
            o.append(Ins(f"buffer_load_dwordx4 {ar(64*r+4*h,4)}, v{V_ST}, {sq(S_ALL)}, s{so} offen sc1", 1, "vm", ("R", r, h)))
            if h < 15:
                o.append(Ins(f"s_add_u32 s{so}, s{so}, 172032"))
        return o
    tO = lambda t: at(nO0 + 2 * t)
    tl.chain([Ins(f"buffer_load_dword v{V_POLL}, off, {sq(S_DBG)}, s{S_GRP} sc1", 1, "vm", "dbg")], tO(0.5), tO(1.0))
    ps = tl.chain([Ins("", 1, "waitv", {"dbg"}), Ins(f"v_cmp_gt_u32 vcc, 1, v{V_POLL}")], tO(2.0), tO(2.3))
    g = tl.gaps[ps[-1][0] + 2]
    (g.lead if not g.lead else g.rest).extend([Ins("s_cbranch_vccnz L_dbgspin"), Ins("L_dbgback:", 0)])
    tail_flags = []
    for ch in c.flags:
        g = st_last[ch] + c.flag_delay
        if g + 10 < NM:
            tl.chain([Ins("", 1, "waitv", {("st", ch)})] + flag(ch), g, g + 20)
        else:
            tail_flags.append(ch)
    tail_loads, cur = [], 0
    for r, tp in enumerate(c.early):
        if tp is None:
            tl.chain([Ins(f"s_mov_b32 s{S_OK+r}, 1")], tO(3.0), tO(3.5))
            continue
        tl.chain(poll(("p", r)), tO(tp), tO(tp + 0.15))
        g = max(cur + 1, tO(min(6.95, tp + c.poll_wait)))
        ps = tl.chain([Ins("", 1, "waitv", {("p", r)}), Ins(f"v_readfirstlane_b32 s{S_SPIN}, v{V_POLL}")], g, g + 12)
        gi = ps[-1][0] + 1
        gi = min(range(gi, min(gi + 6, NM)), key=lambda k: (len(tl.gaps[k].seq()), k))
        for t in ready(r):
            tl.put(gi, Ins(t), 2)
        cur = gi
        ld = rloads(r, S_T2)
        while ld:
            lo = cur + c.load_gap
            free = [k for k in range(lo, min(lo + 8, NM - 1)) if not tl.gaps[k].seq()]
            if lo >= NM - 2:
                tail_loads = ld
                break
            cur = free[0] if free else min(range(lo, min(lo + 8, NM - 1)), key=lambda k: (tl.gaps[k].added(ld[0], 1), k))
            tl.gaps[cur].mem.append(ld[0])
            if len(ld) > 1:
                tl.chain([ld[1]], cur + 1, cur + c.load_gap - 1)
            ld = ld[2:]

    for x, ten, tile, half in c.touch:
        plan.append([at(x), "T", (ten, tile, half), 0])
    for k, x in enumerate(c.touch_wo):
        plan.append([at(x), "T", ("O", k, 0), 0])
    for e in plan:
        if e[1] == "T":
            first[(e[1], e[2])] = e[0]
    plan.sort(key=lambda e: (first[(e[1], e[2])], e[1], str(e[2]), e[3]))
    def touch(ten, tile, half):
        if ten == "O":
            return [Ins(f"s_add_u32 s{S_T0}, s{S_WOOFF}, {tile*64*896}"),
                    Ins(f"buffer_load_dword v{V_DUM}, v{V_TCO}, {sq(S_WO)}, s{S_T0} offen {c.pol_touch}", 1, "vm", "dum")]
        return [Ins(f"s_mov_b32 s{S_T0}, {tile*16384 + half*8192}"),
                Ins(f"buffer_load_dword v{V_DUM}, v{V_TCH}, {sq(S_K if ten == 'K' else S_V)}, s{S_T0} offen {c.pol_touch}", 1, "vm", "dum")]

    prev = -1
    late = []
    for g0, kind, i, p in plan:
        ins = touch(*i) if kind == "T" else dma(kind, i, p)
        lo = max(g0, prev + 3, prev + len(ins))
        if kind == "X" and i >= 4:
            lo = max(lo, G[16 * x_issue[i] + c.D + 2])
        g = lo
        while tl.gaps[g].seq() and g < lo + c.slack:
            g += 1
        if tl.gaps[g].seq():
            g = min(range(lo, lo + c.slack), key=lambda k: (tl.gaps[k].added(ins[-1], 1), k))
        tl.gaps[g].mem.append(ins[-1])
        tl.chain(ins[:-1], max(prev + 1, g - 6), g - 1)
        prev = g
        late.append(g - g0)

    if c.stamps:
        for k, n in enumerate(c.stamps):
            tl.gaps[beg(n)].lead[0:0] = [Ins(t) for t in stamp(k + 1)]
    lin = tl.linear()
    ns = len(c.stamps) + 1 if c.stamps else 0
    ST = lambda k: [Ins(t) for t in stamp(ns + k)] if c.stamps else []

    I = lambda *ts: [Ins(t) for t in ts]
    lin += I("s_nop 7") + tail + ST(0) + tail_loads
    for ch in tail_flags:
        lin += [Ins("", 1, "waitv", {("st", ch)})] + flag(ch)
    SEL, ACC = 0, 8
    lin += I(f"v_lshrrev_b32 v16, 2, v{V_FLR}", f"v_lshrrev_b32 v17, 4, v{V_OUT}", "v_and_b32 v17, 3, v17",
             "v_and_b32 v18, 1, v16", "v_lshlrev_b32 v18, 4, v18", "v_mov_b32 v19, 0x3f80", "v_lshlrev_b32 v19, v18, v19",
             "v_lshrrev_b32 v18, 1, v16", "v_and_b32 v20, 2, v18", "v_sub_u32 v17, v17, v20",
             "v_and_b32 v18, 1, v18", "v_lshrrev_b32 v20, 3, v16", "v_lshl_add_u32 v18, v20, 1, v18",
             "v_lshl_add_u32 v18, v17, 2, v18")
    for r in range(8):
        lin += I(f"v_cmp_eq_u32 vcc, {r}, v18", "s_nop 1", f"v_cndmask_b32 v{SEL+r}, 0, v19, vcc")
    lin += [Ins("", 1, "waitv", {("st", 6)})] + flag(6) + ST(1)
    resolve_waits(lin)
    verify(lin, steps, slot_of)
    texts = [x.text for x in lin]
    T = lambda xs: [x.text for x in xs]
    if c.stamps:
        texts += [f"v_writelane_b32 v{V_STAMP}, s{S_OK}, 62", f"v_writelane_b32 v{V_STAMP}, s{S_OK+1}, 63"]
    texts += [f"s_mov_b32 s{S_T0}, 1", f"s_mov_b32 s{S_T1}, 0", "L_poll:"] + T(poll(0)) + ["s_waitcnt vmcnt(0)",
              f"v_readfirstlane_b32 s{S_SPIN}, v{V_POLL}", f"s_add_u32 s{S_T1}, s{S_T1}, 1", f"s_cmp_ge_u32 s{S_T1}, {c.spin_max}",
              f"s_cselect_b32 s{S_SPIN}, -1, s{S_SPIN}"]
    for r in range(3):
        okr = S_OK + r if r < 2 else S_T0
        if r == 2:
            texts += [f"s_or_b32 s{S_T2}, s{S_OK}, s{S_OK+1}", "s_cbranch_scc1 L_have2"]
        texts += [f"s_cmp_eq_u32 s{okr}, 0", f"s_cbranch_scc1 L_have{r}", f"s_andn2_b32 s{okr}, s{S_NEED+r}, s{S_SPIN}",
                  f"s_cbranch_scc1 L_have{r}"] + T(rloads(r, S_SRC + r)) + [f"L_have{r}:"]
    texts += [f"s_cmp_eq_u32 s{S_T0}, 0", "s_cbranch_scc1 L_all"]
    texts += ([f"s_sleep {c.sleep}"] if c.sleep else []) + ["s_branch L_poll", "L_all:"] + T(ST(2))
    texts += ["s_waitcnt vmcnt(16)"]
    for r in range(3):
        a = ACC + 8 * r
        for h in range(16):
            if r == 2:
                texts += [f"s_waitcnt vmcnt({15-h+2})"]
            for e in range(2):
                d = vr(a + 4 * e, 4)
                texts += [f"{MF} {d}, {vr(SEL+4*e,4)}, {ar(64*r+4*h,4)}, {d if h else 0}"]
        texts += ["s_nop 6"] + [f"v_cvt_pk_bf16_f32 v{40+4*r+k}, v{a+2*k}, v{a+2*k+1}" for k in range(4)]
        texts += [f"buffer_store_dwordx4 {vr(40+4*r,4)}, v{V_OUT}, {sq(S_OUT)}, s{S_DST+r} offen"]
    if c.stamps:
        texts += stamp(ns + 3) + ["s_waitcnt vmcnt(0)"] + stamp(ns + 4)
        if c.diag is not None:
            lane = c.diag if c.diag >= 0 else ns + 5 + c.diag
            texts += ["s_nop 1", f"v_readlane_b32 s40, v{V_STAMP}, {lane}", f"v_readlane_b32 s41, v{V_STAMP}, 0", "s_nop 3",
                      "s_sub_u32 s40, s40, s41", "s_lshl_b32 s40, s40, 2", "s_add_u32 s40, s40, 10000",
                      "L_diag:", "s_sleep 1", "s_memrealtime s[42:43]", "s_waitcnt lgkmcnt(0)", "s_sub_u32 s42, s42, s41",
                      "s_cmp_lt_u32 s42, s40", "s_cbranch_scc1 L_diag"]
        texts += [
                  f"v_lshrrev_b32 v8, 2, v{V_ST}", "v_and_b32 v8, 255, v8", "s_lshl_b32 s3, s2, 8", "s_add_u32 s3, s3, 0x8000000",
                  f"s_cmp_lg_u32 s{S_W}, 0", "s_cbranch_scc1 L_end", f"buffer_store_dword v{V_STAMP}, v8, {sq(S_ALL)}, s3 offen"]
    texts, probs = check_hazards(texts, fix=True)
    stats = dict(n=len(texts), nops=len(probs), cost=[tl.cost(beg(n), end(n)) for n in range(NS)], maxlate=max(late),
                 stl=[round((st_last[k] - beg(nO0)) / 96, 2) for k in range(6)])
    texts += ["L_end:", "s_endpgm"]
    texts += ["L_dbgspin:", f"s_mov_b32 s{S_SPIN}, 0", "L_dspin:", f"buffer_load_dword v{V_POLL}, off, {sq(S_DBG)}, s{S_GRP} sc1",
              "s_waitcnt vmcnt(0)", f"v_cmp_gt_u32 vcc, 1, v{V_POLL}", f"s_add_u32 s{S_SPIN}, s{S_SPIN}, 1",
              f"s_cmp_ge_u32 s{S_SPIN}, {c.spin_max}", "s_cbranch_scc1 L_dbgback", "s_cbranch_vccnz L_dspin", "s_branch L_dbgback"]
    texts += ["L_stub0:"] + rare_path(0) + ["s_branch L_back0"]
    for j in range(1, 16):
        texts += [f"L_stub{j}:", f"s_call_b64 s[{S_RET}:{S_RET+1}], L_rare{j&1}", f"s_branch L_back{j}"]
    for par in range(2):
        texts += [f"L_rare{par}:"] + rare_path(par + 2) + [f"s_setpc_b64 s[{S_RET}:{S_RET+1}]"]
    return texts, stats, probs

def verify(lin, steps, slot_of):
    pending, lq, vq = {}, [], []
    issued, landed, visible = {}, set(), set()
    last_epoch, epoch, in_slot, cnt = {}, 0, {}, {}
    xslots = {5: (5,), 6: (4, 5), 7: (4,), 8: (6,)}
    for ins in lin:
        t = ins.text
        if ins.tag == "vm":
            vq.append(ins.meta)
            issued[ins.meta] = issued.get(ins.meta, 0) + 1
            landed.discard(ins.meta)
            if isinstance(ins.meta, tuple) and ins.meta[0] == "X" and ins.meta[1] >= 3:
                assert cnt.get(("X", ins.meta[1] - 3), 0) == 6, ("x region reused early", ins.meta)
            if isinstance(ins.meta, tuple) and ins.meta[0] == "fl":
                assert ("st", ins.meta[1]) in landed and issued[("st", ins.meta[1])] == 6, ins.meta
            if isinstance(ins.meta, tuple) and ins.meta[0] == "S":
                m = ins.meta[1]
                s = slot_of[m]
                old = in_slot.get(s)
                if old is None:
                    for kc in xslots.get(s, ()):
                        assert cnt.get(("X", kc), 0) == 6 and last_epoch[("X", kc)] < epoch, ("slot under x", m)
                elif old != m:
                    assert cnt.get(old, 0) == (16 if steps[old][0] == "K" else 32), ("slot reused early", m, old)
                    assert last_epoch[old] < epoch, ("slot reuse without barrier", m, old)
                in_slot[s] = m
        elif t.startswith("s_waitcnt"):
            mv = re.search(r"vmcnt\((\d+)\)", t)
            if mv:
                k = max(0, len(vq) - int(mv.group(1)))
                done, vq = vq[:k], vq[k:]
                landed |= {d for d in done if d not in vq}
            ml = re.search(r"lgkmcnt\((\d+)\)", t)
            if ml:
                k = max(0, len(lq) - int(ml.group(1)))
                done, lq = lq[:k], lq[k:]
                for rs, tok in done:
                    for r in rs:
                        pending.pop(r, None)
                    key = tok // 16 if isinstance(tok, int) else tok
                    cnt[key] = cnt.get(key, 0) + 1
                    last_epoch[key] = epoch
        elif t == "s_barrier":
            visible |= {d for d in landed if not (isinstance(d, tuple) and d[0] == "S") or issued[d] == 4}
            epoch += 1
        elif ins.tag == "ds":
            wr, tok = rw(t)[1], ins.meta
            if isinstance(tok, int):
                assert ("S", tok // 16) in visible, ("read before visible", tok)
            else:
                assert tok in landed and issued[tok] == 6, ("x read before landed", tok)
            lq.append((wr, tok))
            for r in wr:
                pending[r] = tok
        elif t.startswith("v_mfma"):
            for r in rw(t)[2]:
                assert r not in pending, ("mfma reads in-flight fragment", t)
        assert len(vq) <= 63, "vmcnt overflow"

def emit(c, path):
    main, stats, probs = build_main(c)
    K1 = NAME + "_kernel"
    s = "; @launch grid=(256,1,1) block=(256,1,1) lds=163840\n"
    s += '.amdgcn_target "amdgcn-amd-amdhsa--gfx950"\n.text\n'
    s += f".globl {K1}\n.p2align 8\n.type {K1},@function\n{K1}:\n"
    s += "\n".join(x if x.endswith(":") else "    " + " ".join(x.split()) for x in main) + "\n"
    if c.code_pf:
        s += ".fill 2048, 4, 0xbf810000\n"
    s += f""".section .rodata,"a"
.p2align 6
.amdhsa_kernel {K1}
  .amdhsa_next_free_vgpr 512
  .amdhsa_next_free_sgpr 102
  .amdhsa_accum_offset 256
  .amdhsa_group_segment_fixed_size 0
  .amdhsa_kernarg_size 104
  .amdhsa_user_sgpr_count 2
  .amdhsa_user_sgpr_kernarg_segment_ptr 1
  .amdhsa_system_sgpr_workgroup_id_x 1
  .amdhsa_float_denorm_mode_32 3
.end_amdhsa_kernel
"""
    open(path, "w").write(s)
    return stats, probs

if __name__ == "__main__":
    c = Cfg()
    for kv in sys.argv[2:]:
        k, v = kv.split("=", 1)
        setattr(c, k, eval(v))
    stats, probs = emit(c, sys.argv[1])
    print(stats, "total cost", sum(stats["cost"]))
    for p in probs[:30]:
        print("  nop", p)
```

```python
import re

class Ins:
    __slots__ = ("text", "cost", "tag", "meta")
    def __init__(self, text, cost=1, tag=None, meta=None):
        self.text, self.cost, self.tag, self.meta = text, cost, tag, meta

def vr(a, n=1, f="v"):
    return f"{f}{a}" if n == 1 else f"{f}[{a}:{a+n-1}]"
def ar(a, n=1):
    return vr(a, n, "a")

class Timeline:
    CAP = 2
    def __init__(self):
        self.mf = []
        self.gaps = {-1: []}
        self.tail = {}
    def add_mfma(self, text, meta=None):
        self.mf.append(Ins(text, 2, "mfma", meta))
        i = len(self.mf) - 1
        self.gaps[i] = []
        return i
    def load(self, i):
        return sum(x.cost for x in self.gaps[i]) + sum(x.cost for x in self.tail.get(i, []))
    def put(self, i, ins):
        self.gaps[i].append(ins)
        return i
    def put_last(self, i, ins):
        self.tail.setdefault(i, []).append(ins)
        return i
    def place(self, ins, lo, hi):
        hi = min(hi, len(self.mf) - 1)
        lo = min(lo, hi)
        for i in range(lo, hi + 1):
            if self.load(i) + ins.cost <= self.CAP:
                return self.put(i, ins)
        return None
    def chain(self, items, lo, hi):
        hi = min(hi, len(self.mf) - 1)
        norm = [(x, lo) if isinstance(x, Ins) else x for x in items]
        cap = self.CAP
        while True:
            pos, cur, extra, ok = [], lo, {}, True
            for ins, e in norm:
                cur = min(max(cur, e), hi)
                while cur <= hi and self.load(cur) + extra.get(cur, 0) + ins.cost > cap:
                    cur += 1
                if cur > hi:
                    ok = False
                    break
                extra[cur] = extra.get(cur, 0) + ins.cost
                pos.append(cur)
            if ok:
                break
            cap += 1
        for (ins, _), p in zip(norm, pos):
            self.put(p, ins)
        return pos
    def linear(self):
        out = list(self.gaps[-1]) + list(self.tail.get(-1, []))
        for i, m in enumerate(self.mf):
            out.append(m)
            out += self.gaps[i]
            out += self.tail.get(i, [])
        return out

def resolve_waits(lin):
    lq, vq = [], []
    for ins in lin:
        if ins.tag == "ds":
            lq.append(ins.meta)
        elif ins.tag == "vm":
            vq.append(ins.meta)
        elif ins.text == "s_waitcnt lgkmcnt(0)" and ins.tag is None:
            lq.clear()
        elif ins.tag in ("waitl", "waitv"):
            q = lq if ins.tag == "waitl" else vq
            last = -1
            for k, tok in enumerate(q):
                if tok in ins.meta:
                    last = k
            n = len(q) - 1 - last
            if ins.tag == "waitl":
                n = min(n, 15)
                ins.text = f"s_waitcnt lgkmcnt({n})"
            else:
                n = min(n, 63)
                ins.text = f"s_waitcnt vmcnt({n})"
            del q[:len(q) - n]
    return lin

_REG = re.compile(r"\b([va])(?:(\d+)|\[(\d+):(\d+)\])")
def regs(op):
    out = []
    for m in _REG.finditer(op):
        if m.group(2) is not None:
            out.append((m.group(1), int(m.group(2))))
        else:
            out += [(m.group(1), k) for k in range(int(m.group(3)), int(m.group(4)) + 1)]
    return out

TRANS = ("v_exp_f32", "v_rcp_f32", "v_log_f32")
def rw(text):
    parts = text.split(None, 1)
    op = parts[0]
    ops = [x.strip() for x in parts[1].split(",")] if len(parts) > 1 else []
    if op.startswith("v_mfma"):
        return "mfma", regs(ops[0]), regs(ops[1]) + regs(ops[2]), regs(ops[3])
    if op.startswith("v_permlane"):
        r = regs(ops[0]) + regs(ops[1])
        return "perm", r, r, []
    if op.startswith("v_cmp") or op.startswith("v_readfirstlane"):
        return "valu", [], [x for o in ops[1:] for x in regs(o)], []
    if op.startswith("v_"):
        rd = [x for o in ops[1:] for x in regs(o)]
        if op.startswith("v_fmac"):
            rd += regs(ops[0])
        return ("trans" if op in TRANS else "valu"), regs(ops[0]), rd, []
    if op.startswith("ds_read"):
        return "ds", regs(ops[0]), regs(ops[1]), []
    if op.startswith("ds_write"):
        return "ds", [], regs(ops[0]) + regs(ops[1]), []
    if op.startswith("buffer_store") or op.startswith("buffer_atomic"):
        return "store", [], regs(ops[0]) + regs(ops[1]), []
    if op.startswith("buffer_load") or op.startswith("global_load"):
        if text.rstrip().endswith("lds"):
            return "dma", [], regs(ops[0]), []
        return "load", regs(ops[0]), regs(ops[1]), []
    return "salu", [], [], []

def states(text):
    if text.startswith("s_nop"):
        return int(text.split()[1]) + 1
    if text.endswith(":") or text.startswith("."):
        return 0
    return 1

def check_hazards(texts, fix=False):
    out, pos = [], 0
    w_mfma, w_valu, w_trans, r_c, r_store = {}, {}, {}, {}, {}
    d_of = {}
    m0_w = -99
    vcc_w = -99
    sg_w = {}
    problems = []
    for t in texts:
        if t.endswith(":") or t.startswith(".") or t.startswith(";"):
            out.append(t)
            continue
        kind, wr, rd, c = rw(t)
        need = 0
        def req(tab, rs, n):
            nonlocal need
            for r in rs:
                if r in tab:
                    need = max(need, n - (pos - tab[r] - 1))
        if kind == "mfma":
            req(w_valu, rd + c, 2)
            req(w_mfma, rd, 8)
            for r in c:
                if r in w_mfma and d_of[r] != tuple(c):
                    req(w_mfma, [r], 6)
        elif kind in ("valu", "trans", "perm"):
            req(w_mfma, rd + wr, 8)
            req(r_c, wr, 3)
            req(r_store, wr, 2)
            if kind != "trans":
                req(w_trans, rd, 1)
            if kind == "perm":
                req(w_valu, rd, 2)
            if t.startswith("v_readfirstlane"):
                req(w_valu, rd, 1)
        elif kind in ("ds", "store", "load", "dma"):
            req(w_mfma, rd + wr, 8)
            req(r_store, wr, 1)
            if kind == "dma":
                need = max(need, 1 - (pos - m0_w - 1))
        if t.startswith("v_cndmask"):
            need = max(need, 2 - (pos - vcc_w - 1))
        if kind in ("valu", "trans", "store", "load", "dma"):
            for r in re.findall(r"\bs(\d+)\b", t.split(",", 1)[-1]):
                if int(r) in sg_w:
                    need = max(need, (2 if kind in ("valu", "trans") else 5) - (pos - sg_w[int(r)] - 1))
        if need > 0:
            if fix:
                out.append(f"s_nop {need-1}")
                pos += need
            problems.append((t, need))
        out.append(t)
        if kind == "mfma":
            for r in wr:
                w_mfma[r] = pos
                d_of[r] = tuple(wr)
                w_valu.pop(r, None)
            for r in c:
                r_c[r] = pos
        elif kind in ("valu", "trans", "perm"):
            for r in wr:
                w_valu[r] = pos
                w_mfma.pop(r, None)
                if kind == "trans":
                    w_trans[r] = pos
                else:
                    w_trans.pop(r, None)
        elif kind == "store":
            for r in rd:
                r_store[r] = pos
        if t.startswith("v_cmp") and " vcc," in t:
            vcc_w = pos
        mm = re.match(r"v_read(?:first)?lane_b32 s(\d+),", t)
        if mm:
            sg_w[int(mm.group(1))] = pos
        if re.match(r"s_\w+ m0,", t):
            m0_w = pos
        pos += states(t)
    return out, problems
```

```python
from core import Ins, vr, ar, resolve_waits, rw, check_hazards
import re

def cls(ins):
    t = ins.text
    if ins.tag in ("waitl", "waitv") or t.startswith("s_"):
        return "s"
    if t.endswith(":"):
        return "l"
    if t.startswith("ds_"):
        return "d"
    if t.startswith("buffer_") or t.startswith("global_"):
        return "m"
    if t.startswith("v_mfma"):
        return "x"
    if t.startswith(("v_exp", "v_rcp", "v_permlane")):
        return "e"
    return "v"

def gap_cost(seq):
    t, ready, prev = 4, 16, None
    for ins in seq:
        k = cls(ins)
        if k == "l":
            continue
        if k == "s":
            t += 4
        elif k in "ve":
            t = max(t, 8) + (4 if prev == "m" else 0) + (4 if k == "v" else 8)
        elif k == "d":
            st = max(t, 8) + (4 if prev in ("v", "e") else 0)
            t, ready = st + 4, max(ready, st + 8)
        elif k == "m":
            t = max(t, 8) + (8 if prev else 0) + 8
        else:
            t = max(t, 16) + 16
        prev = k
    return max(t, ready) - 16

class Gap:
    __slots__ = ("lead", "mem", "rest")
    def __init__(self):
        self.lead, self.mem, self.rest = [], [], []
    def seq(self):
        return self.lead + self.mem + self.rest
    def section(self, ins, minsec):
        k = cls(ins)
        if k == "s" and not self.lead and minsec <= 0:
            return 0
        if k in "dm" and minsec <= 1:
            return 1
        return 2
    def added(self, ins, sec):
        parts = [list(self.lead), list(self.mem), list(self.rest)]
        before = gap_cost(parts[0] + parts[1] + parts[2])
        parts[sec].append(ins)
        return gap_cost(parts[0] + parts[1] + parts[2]) - before
    def add(self, ins, sec):
        (self.lead, self.mem, self.rest)[sec].append(ins)
    def remove(self, ins, sec):
        (self.lead, self.mem, self.rest)[sec].remove(ins)

class Timeline:
    def __init__(self):
        self.mf, self.gaps, self.pre = [], [], []
    def add_mfma(self, text):
        self.mf.append(Ins(text, 2, "mfma"))
        self.gaps.append(Gap())
        return len(self.mf) - 1
    def put(self, i, ins, minsec=0):
        if i < 0:
            self.pre.append(ins)
            return
        g = self.gaps[i]
        g.add(ins, g.section(ins, minsec))
    def chain(self, items, lo, hi, lo_sec=0, level=0):
        hi = min(hi, len(self.mf) - 1)
        assert lo <= hi, (lo, hi, items[0])
        norm = [(x, lo) if isinstance(x, Ins) else x for x in items]
        levels = [(0, 0.0)] + [(a, f) for a in range(4, 400, 4) for f in (0.08, 0.16, 0.25, 0.34, 0.5, 0.67, 0.84, 1.0)]
        for top, frac in levels[level:]:
            done, cur, sec0, ok = [], lo, lo_sec, True
            for ins, e in norm:
                e = min(e, hi)
                if e > cur:
                    cur, sec0 = e, 0
                while True:
                    g = self.gaps[cur]
                    sec = g.section(ins, sec0)
                    add = g.added(ins, sec)
                    allow = top if int((hi - cur + 1) * frac) != int((hi - cur) * frac) or (cur == hi and top) else top - 4
                    if add <= 0 or gap_cost(g.seq()) + add <= allow:
                        break
                    if cur == hi:
                        ok = False
                        break
                    cur, sec0 = cur + 1, 0
                if not ok:
                    break
                g.add(ins, sec)
                done.append((ins, cur, sec))
                sec0 = max(sec, 1) if sec == 0 else sec
            if ok:
                return [(c, s) for _, c, s in done]
            for ins, c, s in done:
                self.gaps[c].remove(ins, s)
        raise AssertionError("chain does not fit")
    def back(self, ins, hi, lo):
        for i in range(hi, lo - 1, -1):
            g = self.gaps[i]
            sec = g.section(ins, 0)
            if g.added(ins, sec) <= 0:
                g.add(ins, sec)
                return i
        self.put(hi, ins)
        return hi
    def cost(self, a, b):
        return sum(gap_cost(self.gaps[i].seq()) for i in range(a, b + 1))
    def linear(self):
        out = list(self.pre)
        for m, g in zip(self.mf, self.gaps):
            out.append(m)
            out += g.seq()
        return out
```

```python
import sys
from core2 import *

NAME = "concat_heads__mha_block_cached__gqa_block_cached__near_ridge"
BLK, SLOT = 8448, 16896
WPOS = [0, 1032, 2112, 3144]
MF = "v_mfma_f32_16x16x32_bf16"
OOB = 0x10000000
AUX = 0x1C0000
STAMP_AT = 0xF800000

class Cfg:
    D = 6
    NF = 12
    pol_x = ""
    pol_wq = ""
    pol_kv = "nt"
    pol_wo = ""
    pol_out = ""
    rot = 0
    nW = 10
    nx = 2
    w_la = 3
    pro_order = "X0 S0 S1 X1 S2"
    pro_first = 10
    pro_n = 22
    x_issue = {2: 0.5, 3: 2.3, 4: 4.3, 5: 6.0, 6: 7.2}
    x_read = {1: 1.25, 2: 3.25, 3: 5.0, 4: 6.25, 5: 8.25, 6: 9.25}
    kv_early = [3.5, 9.7, 10.4, 11.1, 11.8, 12.5, 13.2]
    kv_step = 12
    kv_last = 42.0
    staged = []
    wo_at = None
    wo_la = 6
    back = 20
    slack = 40
    bar_q = 1
    bar_a = 2
    bar_o = 2
    chain = True
    ones_at = 12
    TH = 0x4B800000
    TL = 0x33800000
    code_pf = True
    races = 4
    race_at = 2.6
    race_skip = 10
    race_len = 48
    race_step = 3
    race_clamp = 4
    force = None
    asym = 1
    flags = (1, 3, 4)
    flag_delay = 110
    early = (4.4, None)
    poll_wait = 0.9
    load_gap = 9
    gs = 4
    st_group = 1
    spin_max = 40000
    stamps = False
    pstamps = False
    diag = None

S_X, S_WQ, S_K, S_V, S_WO, S_ALL, S_OUT, S_DBG = 8, 12, 16, 20, 24, 28, 76, 80
S_GRP, S_LEAD = 6, 7
S_W, S_LDSW, S_TL, S_LDSX = 32, 33, 34, 35
S_WQOFF, S_XOFF, S_WOOFF = 36, 43, 56
S_T0, S_T1, S_C, S_TH, S_RET = 50, 51, 52, 53, 54
S_SB, S_ST0, S_ST1, S_PRB, S_ACC, S_TOT = 63, 65, 66, 67, 68, 69
S_T2, S_SPIN, S_STAMP = 70, 71, 72
S_RA, S_RB, S_D0, S_D1 = 84, 85, 86, 87
S_SRC, S_DST, S_NEED, S_FLR, S_OK = 88, 91, 94, 97, 100
V_P, V_E, V_L, V_CHK, V_OV = 96, 120, 128, 136, 144
V_S, V_NEGM, V_SALT = 192, 216, 228
V_DWQ, V_DWU, V_DX, V_RW, V_RU, V_RX, V_SWQ, V_DUM, V_INI = 192, 193, 194, 195, 197, 199, 201, 202, 203
VL, VH5, VC31, VM, VG, V7, VA, VB, VC, VQ, VC4, VROW = range(204, 216)
V_DKV, V_RK, V_RT, V_DWO, V_RO, V_ST, V_FLW, V_OUT, V_STAMP = 240, 241, 244, 247, 248, 251, 252, 254, 255
V_RINV, V_FV, V_POLL, V_SW, V_PUB = 228, 231, 232, 143, 253
A_ONE, A_FR = 192, 208

def steps_list(c):
    st = [("W", k) for k in range(c.nW)] + [("U", k) for k in range(14 - c.nW)] + [("K", 0)]
    for j in range(1, 16):
        st += [("K", j), ("V", j - 1)]
    return st + [("V", 15)] + [("O", k) for k in range(14)]

def sq(d):
    return f"s[{d}:{d+3}]"
def srd_tail(d, nbytes):
    return [f"s_mov_b32 s{d+2}, {nbytes}", f"s_mov_b32 s{d+3}, 0x00020000"]

def stamp(k):
    return [f"s_memrealtime s[{S_STAMP}:{S_STAMP+1}]", f"s_memtime s[{S_STAMP+2}:{S_STAMP+3}]", "s_waitcnt lgkmcnt(0)",
            f"v_writelane_b32 v{V_STAMP}, s{S_STAMP}, {k}", f"v_writelane_b32 v{V_STAMP}, s{S_STAMP+2}, {32+k}"]

def rot7(dst, src):
    a, b = S_RET, S_RET + 1
    return [f"s_mov_b32 s{a}, 0x06543210", f"s_mov_b32 s{b}, 0x10654321", f"s_lshl_b32 s{dst}, s{src}, 2",
            f"s_lshr_b64 s[{a}:{b}], s[{a}:{b}], s{dst}", f"s_mov_b32 s{dst}, s{a}"]

def prologue1(c):
    T0, T1 = f"s{S_T0}", f"s{S_T1}"
    o = ["s_cmp_ge_u32 s2, 256", "s_cbranch_scc1 L_end"]
    if c.stamps:
        o += [f"v_mov_b32 v{V_STAMP}, 0"] + stamp(0)
    o += ["s_bfe_u32 s3, s2, 0x10002", f"s_mul_i32 {T0}, s3, 40"]
    o += [f"s_load_dwordx8 s[88:95], s[0:1], {T0}", f"s_mov_b32 s7, {T0}"]
    o += [f"v_lshrrev_b32 v{VA}, 6, v0", f"v_and_b32 v{VL}, 63, v0", f"v_readfirstlane_b32 s{S_W}, v{VA}",
          "s_and_b32 s5, s2, 3", "s_lshl_b32 s5, s5, 2", "s_bfe_u32 s6, s2, 0x20003", "s_add_u32 s5, s5, s6", "s_lshr_b32 s4, s2, 5",
          f"v_lshrrev_b32 v{VH5}, 5, v{VL}", f"v_and_b32 v{VC31}, 31, v{VL}", f"v_lshlrev_b32 v{VC31}, 4, v{VC31}",
          f"v_lshrrev_b32 v{VM}, 3, v{VL}", f"v_lshrrev_b32 v{VG}, 4, v{VL}", f"v_and_b32 v{V7}, 7, v{VL}",
          f"s_lshr_b32 s98, s{S_W}, 1", f"s_and_b32 s99, s{S_W}, 1",
          f"v_lshlrev_b32 v{VA}, 1, v{VG}", f"v_xor_b32 v{VA}, v{VA}, v{V7}", f"v_lshlrev_b32 v{VA}, 4, v{VA}",
          f"s_lshl_b32 {T0}, s4, 2", f"s_add_u32 {T0}, {T0}, s{S_W}", f"s_mul_i32 {T0}, {T0}, 43008",
          f"v_mul_u32_u24 v{VB}, 896, v{VM}", f"v_add3_u32 v{V_DX}, v{VB}, v{VA}, {T0}",
          f"s_lshl_b32 {T0}, s99, 16", f"s_lshl_b32 {T1}, s5, 9", f"s_add_u32 s{S_D0}, {T0}, {T1}",
          f"s_lshl_b32 {T1}, s98, 15", f"s_add_u32 {T0}, s{S_D0}, {T1}",
          f"v_lshlrev_b32 v{VB}, 17, v{VH5}", f"v_add3_u32 v{V_DWQ}, v{VB}, v{VC31}, {T0}",
          f"s_mul_i32 s{S_LDSW}, s{S_W}, 4224", f"s_mul_i32 s{S_LDSX}, s{S_W}, 6144"]
    o += srd_tail(S_X, 8 * 172032) + srd_tail(S_WQ, 448 * 8192)
    if c.rot:
        o += [f"s_lshl_b32 {T0}, s6, 1", f"s_add_u32 {T0}, {T0}, s4", f"s_mul_i32 {T1}, {T0}, 37", f"s_lshr_b32 {T1}, {T1}, 8",
              f"s_mul_i32 {T1}, {T1}, 7", f"s_sub_u32 {T0}, {T0}, {T1}"] + rot7(S_D1, S_T0)
        for k in range(7):
            o += [f"s_bfe_u32 {T0}, s{S_D1}, {0x40000 + 4*k}", f"s_lshl_b32 s{S_XOFF+k}, {T0}, 7"]
            if k < c.nW // 2:
                o += [f"s_lshl_b32 s{S_WQOFF+k}, {T0}, 19"]
        o += [f"s_lshl_b32 {T0}, s98, 2", f"s_lshr_b32 s{S_D1}, s{S_D1}, {T0}"]
        for k in range(c.nW // 2, 7, 2):
            o += [f"s_bfe_u32 {T0}, s{S_D1}, {0x40000 + 4*k}", f"s_lshl_b32 s{S_WQOFF+k}, {T0}, 19"]
    return o + ["s_waitcnt lgkmcnt(0)", f"s_mov_b64 s[{S_X}:{S_X+1}], s[88:89]", f"s_mov_b64 s[{S_WQ}:{S_WQ+1}], s[94:95]"]

def dwu(c):
    o = [f"v_lshlrev_b32 v{VB}, 4, v{V7}", f"v_lshl_add_u32 v{VB}, v{VH5}, 18, v{VB}", f"v_and_b32 v{VA}, 1, v{VM}",
         f"v_lshl_add_u32 v{VB}, v{VA}, 17, v{VB}", f"v_and_b32 v{VA}, 1, v{VG}", f"v_lshl_add_u32 v{VB}, v{VA}, 15, v{VB}"]
    if not c.rot:
        o += [f"s_lshl_b32 s{S_D1}, s98, 19", f"s_add_u32 s{S_D0}, s{S_D0}, s{S_D1}"]
    return o + [f"v_add_u32 v{V_DWU}, s{S_D0}, v{VB}"]

def prologue2(c):
    o = [f"s_load_dwordx2 s[{S_WO}:{S_WO+1}], s[0:1], s7 offset:32", f"s_load_dwordx4 s[{S_OUT}:{S_OUT+3}], s[0:1], 80",
         f"s_load_dwordx2 s[{S_ALL}:{S_ALL+1}], s[0:1], 96",
         f"s_mov_b64 s[{S_K}:{S_K+1}], s[90:91]", f"s_mov_b64 s[{S_V}:{S_V+1}], s[92:93]",
         f"v_lshrrev_b32 v{VROW}, 2, v{VL}", f"v_and_b32 v{VROW}, 7, v{VROW}", f"v_and_b32 v{VC4}, 3, v{VL}",
         f"v_lshlrev_b32 v{VA}, 10, v{VROW}", f"v_and_b32 v{VB}, 1, v{VROW}", f"v_lshl_add_u32 v{VA}, v{VB}, 3, v{VA}",
         f"v_lshrrev_b32 v{VB}, 1, v{VROW}", f"v_lshl_add_u32 v{VA}, v{VB}, 6, v{VA}", f"v_lshl_add_u32 v{VA}, v{VC4}, 4, v{VA}",
         f"v_lshl_add_u32 v{V_RW}, v{VH5}, 9, v{VA}", f"v_lshl_add_u32 v{V_RU}, v{VH5}, 7, v{VA}",
         f"v_add_u32 v{V_RW+1}, {3*SLOT}, v{V_RW}", f"v_add_u32 v{V_RU+1}, {3*SLOT}, v{V_RU}",
         f"v_and_b32 v{VQ}, 15, v{VL}", f"v_lshlrev_b32 v{VA}, 7, v{VQ}", f"v_and_b32 v{VB}, 6, v{VL}", f"v_xor_b32 v{VB}, v{VB}, v{VG}",
         f"v_lshl_add_u32 v{VA}, v{VB}, 4, v{VA}", f"s_add_u32 s{S_T0}, s{S_LDSX}, {10*BLK}",
         f"v_add_u32 v{V_RX}, s{S_T0}, v{VA}", f"v_xor_b32 v{VA}, 64, v{VA}", f"v_add_u32 v{V_RX+1}, s{S_T0}, v{VA}"]
    return o + dwu(c)

def deferred(c):
    D0, D1, T2 = f"s{S_D0}", f"s{S_D1}", f"s{S_T2}"
    kv = srd_tail(S_K, 1 << 25) + srd_tail(S_V, 1 << 25) + [
        f"s_lshl_b32 {D0}, s4, 4", f"s_add_u32 {D0}, {D0}, s5", f"s_lshl_b32 {D0}, {D0}, 18",
        f"s_lshl_b32 {D1}, s98, 13", f"s_add_u32 {D0}, {D0}, {D1}", f"s_lshl_b32 {D1}, s99, 11", f"s_add_u32 {D0}, {D0}, {D1}",
        f"v_lshlrev_b32 v{VA}, 12, v{VH5}", f"v_add3_u32 v{V_DKV}, v{VA}, v{VC31}, {D0}", f"v_lshlrev_b32 v{V_ST}, 4, v{VL}"]
    ini = srd_tail(S_ALL, OOB) + srd_tail(S_DBG, 256) + [
        f"s_lshl_b32 {D0}, s3, 3", f"s_add_u32 {D0}, {D0}, s4", f"s_lshl_b32 {D0}, {D0}, 2", f"s_add_u32 {D0}, {D0}, s{S_W}",
        f"s_lshl_b32 s{S_SB}, {D0}, 21", f"s_lshr_b32 {D0}, {D0}, 2", f"s_lshl_b32 s{S_GRP}, {D0}, 4", f"s_add_u32 s{S_FLR}, s{S_SB}, {AUX}",
        f"s_min_u32 {D1}, s5, 1", f"s_lshl_b32 {D0}, {D1}, 28", f"s_add_u32 {T2}, s{S_FLR}, {D0}",
        f"s_or_b32 {D1}, s5, s{S_W}", f"s_min_u32 {D1}, {D1}, 1", f"s_lshl_b32 {D0}, {D1}, 28", f"s_add_u32 s{S_LEAD}, s{S_GRP}, {D0}",
        f"s_mul_i32 {D0}, {D1}, 0x0f000000", f"s_max_u32 s{S_PRB}, s{S_FLR}, {D0}",
        f"v_lshrrev_b32 v{VA}, 1, v{VL}", f"v_mul_u32_u24 v{VB}, {0x4000+256}, v{VA}", f"v_min_u32 v{V_DUM}, 1, v{VA}",
        f"v_and_b32 v{VA}, 3, v{VL}", f"v_lshrrev_b32 v{VC}, 1, v{VA}", f"v_lshl_add_u32 v{VB}, v{VC}, 12, v{VB}",
        f"v_and_b32 v{VA}, 1, v{VL}", f"v_lshl_add_u32 v{VB}, v{VA}, 13, v{VB}",
        f"v_cmp_gt_u32 vcc, {2+2*c.races}, v{VL}", f"v_mov_b32 v{VC}, {OOB}", f"v_min_u32 v{VA}, 1, v{VL}",
        f"v_lshlrev_b32 v{V_FLW}, 28, v{VA}", f"v_cndmask_b32 v{V_INI}, v{VC}, v{VB}, vcc"]
    att = [f"s_mov_b32 s{S_C}, 0x3db8aa3b", f"s_mov_b32 s{S_TH}, {c.TH}", f"s_mov_b32 s{S_TL}, {c.TL}",
           f"v_mul_u32_u24 v{VA}, 1056, v{VROW}", f"v_lshl_add_u32 v{VA}, v{VC4}, 3, v{VA}",
           f"v_lshl_add_u32 v{V_RT}, v{VH5}, 9, v{VA}", f"v_lshl_add_u32 v{V_RO}, v{VH5}, 7, v{VA}",
           f"v_mul_u32_u24 v{VA}, 1056, v{V7}", f"v_and_b32 v{VB}, 1, v{VM}", f"v_lshl_add_u32 v{VA}, v{VB}, 9, v{VA}",
           f"v_lshl_add_u32 v{V_RK}, v{VG}, 4, v{VA}"]
    for base in (V_RK, V_RT, V_RO):
        att += [f"v_add_u32 v{base+1}, {3*SLOT}, v{base}", f"v_add_u32 v{base+2}, {6*SLOT}, v{base}"]
    att += [f"v_mov_b32 v{VB}, 0x3f803f80"]
    for t in range(3):
        att += [f"v_cmp_eq_u32 vcc, {t}, v{VC4}"] + [f"v_mov_b32 v{V_NEGM+4*t+r}, 0" for r in range(4)]
        att += [f"v_cndmask_b32 v{VA}, 0, v{VB}, vcc"] + [f"v_accvgpr_write_b32 a{A_ONE+4*t+r}, v{VA}" for r in range(4)]
    out = srd_tail(S_WO, 4096 * 896) + srd_tail(S_OUT, 8 * 192 * 896 * 2) + [
        f"s_lshl_b32 {D0}, s5, 2", f"s_add_u32 {D0}, {D0}, s98", f"s_lshl_b32 {D0}, {D0}, 4", f"s_add_u32 {D0}, {D0}, s99",
        f"s_mul_i32 {D0}, {D0}, {4*896}", f"v_mul_u32_u24 v{VA}, 7168, v{VM}", f"v_lshlrev_b32 v{VB}, 4, v{V7}",
        f"v_add3_u32 v{V_DWO}, v{VA}, v{VB}, {D0}",
        f"v_mul_u32_u24 v{VA}, 1792, v{VQ}", f"v_lshl_add_u32 v{V_OUT}, v{VG}, 4, v{VA}"]
    out += rot7(S_OK + 1, 4)
    for k in range(7):
        out += [f"s_bfe_u32 {D0}, s{S_OK+1}, {0x40000 + 4*k}", f"s_lshl_b32 s{S_WOOFF+k}, {D0}, 7"]
    J = f"s{S_OK}"
    if c.asym:
        out += [f"s_lshr_b32 {J}, s5, 3", f"s_lshl_b32 {J}, {J}, 2", f"s_and_b32 {D0}, s5, 3", f"s_add_u32 {J}, {J}, {D0}",
                f"s_lshl_b32 {D0}, s{S_W}, 1", f"s_add_u32 {J}, {J}, {D0}", f"s_and_b32 {J}, {J}, 7",
                f"s_and_b32 {D0}, s5, 4", f"s_lshl_b32 {D0}, {D0}, 1", f"s_add_u32 {J}, {J}, {D0}"]
    else:
        out += [f"s_lshl_b32 {J}, s{S_W}, 2", f"s_add_u32 {J}, {J}, s5", f"s_and_b32 {J}, {J}, 15"]
    sig = sorted(set(c.flags) | {6})
    tab = sum((min(x for x in sig if x >= ch) - 1) << (4 * ch) for ch in range(7))
    E = f"s{S_SPIN}"
    out += [f"s_mul_i32 s{S_ST0}, s4, 344064", f"s_mul_i32 {D0}, s3, 896", f"s_add_u32 s{S_ST0}, s{S_ST0}, {D0}",
            f"s_mul_i32 {D0}, s{S_W}, {3*28672}", f"s_add_u32 s{S_ST0}, s{S_ST0}, {D0}"]
    for r in range(3):
        src, dst = f"s{S_SRC+r}", f"s{S_DST+r}"
        out += [f"s_add_u32 {D0}, {J}, {(0, 10, 26)[r]}", f"s_mul_i32 {D1}, {D0}, 43", f"s_lshr_b32 {D1}, {D1}, 8",
                f"s_mul_i32 {E}, {D1}, 6", f"s_sub_u32 {D0}, {D0}, {E}",
                f"s_lshl_b32 {src}, {D1}, 18", f"s_add_u32 {src}, {src}, s{S_SB}", f"s_lshl_b32 {E}, {D0}, 10", f"s_add_u32 {src}, {src}, {E}",
                f"s_lshl_b32 {D1}, {D1}, 2", f"s_lshr_b32 {E}, {tab}, {D1}", f"s_and_b32 {E}, {E}, 15", f"s_mul_i32 {E}, {E}, 5",
                f"s_lshl_b32 s{S_NEED+r}, 16, {E}",
                f"s_lshr_b32 {E}, s{S_OK+1}, {D1}", f"s_and_b32 {E}, {E}, 15", f"s_lshl_b32 {E}, {E}, 7", f"s_add_u32 {dst}, s{S_ST0}, {E}",
                f"s_and_b32 {E}, {D0}, 1", f"s_lshl_b32 {E}, {E}, 6", f"s_add_u32 {dst}, {dst}, {E}",
                f"s_lshr_b32 {E}, {D0}, 1", f"s_mul_i32 {E}, {E}, 28672", f"s_add_u32 {dst}, {dst}, {E}"]
    out += [f"s_add_u32 {D0}, {J}, 6", f"s_lshr_b32 {D0}, {D0}, 4", f"s_lshl_b32 {D1}, {D0}, 28",
            f"s_add_u32 s{S_SRC}, s{S_SRC}, {D1}", f"s_add_u32 s{S_DST}, s{S_DST}, {D1}",
            f"s_sub_u32 {D0}, {D0}, 1", f"s_and_b32 s{S_NEED}, s{S_NEED}, {D0}",
            f"s_lshl_b32 {D0}, s5, 14", f"s_add_u32 s{S_SB}, s{S_SB}, {D0}", f"s_and_b32 {D0}, s5, 2", f"s_lshl_b32 {D0}, {D0}, 10",
            f"s_add_u32 s{S_SB}, s{S_SB}, {D0}"]
    return kv, ini, att, out

def qacc(t, q):
    return ((t >> 1) * 3 + q) * 8 + (t & 1) * 4
def sreg(j, kt, q):
    return (V_SALT if (j == 0 and kt == 0) else V_S + 12 * kt) + q * 4
def preg(j, q):
    return V_P + (j & 1) * 12 + q * 4
def lreg(j):
    return V_L + (j & 1) * 4
def oreg(t, q):
    return ("v", V_OV + (t * 3 + q) * 4) if t < 4 else ("a", (t * 3 + q) * 4)
def oacc(ch, nt, q):
    return (96 if ch % 2 == 0 else 144) + (q * 4 + nt) * 4

def softmax_items(j, kt, tmp, qorder=(0, 1, 2)):
    out, pend = [], None
    for q in qorder:
        for hf in range(2):
            e = V_E + 2 * (tmp[0] % 4)
            tmp[0] += 1
            out.append(Ins(f"v_exp_f32 v{e}, v{sreg(j,kt,q)+2*hf}", 2, meta=q))
            if pend:
                out.append(pend)
            out.append(Ins(f"v_exp_f32 v{e+1}, v{sreg(j,kt,q)+2*hf+1}", 2, meta=q))
            pend = Ins(f"v_cvt_pk_bf16_f32 v{preg(j,q)+2*kt+hf}, v{e}, v{e+1}", 1, meta=q)
    return out, pend

def ones_mfma(j):
    o = []
    for q in range(3):
        cin = vr(lreg(j), 4) if q else (vr(lreg(j - 1), 4) if j else "0")
        o.append(f"{MF} {vr(lreg(j),4)}, {ar(A_ONE+4*q,4)}, {vr(preg(j,q),4)}, {cin}")
    return o

def rare_path(j):
    D, F, T = (138, None, 141) if j == 0 else (228, 231, 234)
    o = ["s_nop 7", "s_nop 7"]
    for q in range(3):
        a, b = sreg(j, 0, q), sreg(j, 1, q)
        o += [f"v_max3_f32 v{D+q}, v{a}, v{a+1}, v{a+2}", f"v_max3_f32 v{D+q}, v{D+q}, v{a+3}, v{b}",
              f"v_max3_f32 v{D+q}, v{D+q}, v{b+1}, v{b+2}", f"v_max_f32 v{D+q}, v{D+q}, v{b+3}"]
    for op in ("v_permlane32_swap_b32", "v_permlane16_swap_b32"):
        o += [f"v_mov_b32 v{T+q}, v{D+q}" for q in range(3)] + ["s_nop 1"]
        o += [f"{op} v{T+q}, v{D+q}" for q in range(3)]
        o += [f"v_max_f32 v{D+q}, v{D+q}, v{T+q}" for q in range(3)]
    if j:
        o += [f"v_max_f32 v{D+q}, 0, v{D+q}" for q in range(3)]
        o += [f"v_exp_f32 v{F+q}, -v{D+q}" for q in range(3)]
    for q in range(3):
        tgt = [V_NEGM + 4 * q, sreg(j, 0, q), sreg(j, 1, q)] + ([sreg(1, 0, q)] if j == 0 else [])
        for a in tgt:
            o += [f"v_sub_f32 v{a+r}, v{a+r}, v{D+q}" for r in range(4)]
        if j:
            o += [f"v_mul_f32 v{lreg(j-1)+q}, v{lreg(j-1)+q}, v{F+q}"]
    tmp = [0]
    for kt in range(2):
        it, pend = softmax_items(j, kt, tmp)
        o += [x.text for x in it] + ["s_nop 0", pend.text]
    if j:
        for t in range(16):
            for q in range(3):
                f, a = oreg(t, q)
                if f == "v":
                    o += [f"v_mul_f32 v{a+r}, v{a+r}, v{F+q}" for r in range(4)]
                else:
                    o += [f"v_accvgpr_read_b32 v{T+r}, a{a+r}" for r in range(4)]
                    o += [f"v_mul_f32 v{T+r}, v{T+r}, v{F+q}" for r in range(4)]
                    o += [f"v_accvgpr_write_b32 a{a+r}, v{T+r}" for r in range(4)]
    o += ["s_nop 1"] + ones_mfma(j) + ["s_nop 7", "s_nop 7"]
    return check_hazards(o, fix=True)[0]

def order(mode):
    if mode == "A3":
        return [(f, q if f % 2 == 0 else 2 - q) for f in range(16) for q in range(3)]
    out = []
    for b in range(4):
        for qi in range(3):
            q = qi if b % 2 == 0 else 2 - qi
            rng = range(4) if qi % 2 == 0 else range(3, -1, -1)
            out += [(4 * b + i, q) for i in rng]
    return out

def build_main(c):
    steps = steps_list(c)
    NS = len(steps)
    idx = {s: n for n, s in enumerate(steps)}
    tl = Timeline()
    G, USE, LAST, ONES, FIN = {}, {}, {}, {}, {}
    fb = lambda F: A_FR + 4 * (F % c.NF)
    def mode(n):
        ty, k = steps[n]
        return "CH" if c.chain and (ty in "UK" or (ty == "O" and k >= 2)) else "A3"
    def ki(n, f):
        return (f & 3, f >> 2) if (mode(n) == "CH" or steps[n][0] == "U") else (f >> 2, f & 3)
    started = set()
    for n, (ty, k) in enumerate(steps):
        for m, (f, q) in enumerate(order(mode(n))):
            F = 16 * n + f
            if ty == "W":
                key, d, b, c0 = ("Q", f, q), vr(qacc(f, q), 4), ar((k * 3 + q) * 4, 4), "0"
            elif ty == "U":
                i, nt = ki(n, f)
                t = 4 * (k & 3) + nt
                key, d, b, c0 = ("Q", t, q), vr(qacc(t, q), 4), ar(((4 * (k >> 2) + c.nW + i) * 3 + q) * 4, 4), "0"
            elif ty == "K":
                kt, s = f >> 3, f & 7
                key, d, b, c0 = ("S", k, kt, q), vr(sreg(k, kt, q), 4), vr((s * 3 + q) * 4, 4), vr(V_NEGM + 4 * q, 4)
            elif ty == "V":
                fl, a = oreg(f, q)
                key, d, b, c0 = ("O", f, q), vr(a, 4, fl), vr(preg(k, q), 4), "0"
            else:
                i, nt = ki(n, f)
                s = (k & 1) * 4 + i
                key, d, b, c0 = ("P", k >> 1, nt, q), vr(oacc(k >> 1, nt, q), 4), vr((s * 3 + q) * 4, 4), "0"
            i_m = tl.add_mfma(f"{MF} {d}, {ar(fb(F),4)}, {b}, {d if key in started else c0}")
            started.add(key)
            FIN[key] = i_m
            if m % 3 == 0:
                G[16 * n + m // 3] = i_m
            USE.setdefault(F, i_m)
            LAST[F] = i_m
            if ty == "O":
                USE.setdefault(("B", s), i_m)
            if (ty, k) == ("K", 0):
                USE.setdefault(("QB", s), i_m)
            jn = None
            if ty == "V" and k < 15 and m == 3 * c.ones_at + 2:
                jn = k + 1
            if (ty, k) == ("K", 1) and m == 11:
                jn = 0
            if jn is not None:
                for t in ones_mfma(jn):
                    ONES[jn] = tl.add_mfma(t)
    NM = len(tl.mf)
    beg = lambda n: G[16 * n]
    end = lambda n: (G[16 * (n + 1)] - 1) if n + 1 < NS else NM - 1
    at = lambda x: min(NM - 1, beg(int(x)) + int((x - int(x)) * (end(int(x)) - beg(int(x)) + 1)))
    nK0, nV15, nO0 = idx[("K", 0)], idx[("V", 15)], idx[("O", 0)]

    bsteps = [n for n in range(0, nK0, c.bar_q)]
    if c.bar_q == 2:
        bsteps = [0] + list(range(1, nK0, 2))
    bsteps += [nK0] + list(range(nK0 + c.bar_a, nV15, c.bar_a))
    bsteps += list(range(nV15, NS - 1, c.bar_o))
    bsteps = sorted(set(bsteps))
    bgap = {n: G[16 * (n + 1) - c.D] for n in bsteps}
    covers = {n: list(range(n + 1, (bsteps[i + 1] if i + 1 < len(bsteps) else NS - 1) + 1)) for i, n in enumerate(bsteps)}
    def freed(m):
        later = [n for n in bsteps if n >= m + 1]
        return bgap[later[0]] + 1 if later else NM

    xreg = lambda kc: [16, 13, 10][kc % c.nx] * BLK
    x_read = c.x_read
    def xfreed(kc):
        g = at(x_read[kc]) + 20 + 3 * (c.D + 2)
        return min(bgap[n] for n in bsteps if bgap[n] >= g) + 1
    xslots = {5: (5,), 6: (4, 5), 7: (4,), 8: (6,)} if c.nx == 3 else {6: (5,), 7: (5,), 8: (6,)}
    free_at = {s: max([-1] + [xfreed(kc) for kc in xslots.get(s, ())]) for s in range(9)}
    pro = [(t[0], int(t[1:]), p) for t in c.pro_order.split() for p in range(6 if t[0] == "X" else 4)]
    pro_s = [int(t[1:]) for t in c.pro_order.split() if t[0] == "S"]
    units = []
    def add(kind, i, x, pieces, step=4):
        units.append([at(x), step, kind, i, list(pieces)])
    rest = {}
    for kind, i, p in pro[c.pro_n:]:
        rest.setdefault((kind, i), []).append(p)
    for (kind, i), ps in rest.items():
        add(kind, i, 0.0, ps, 3)
    for m in range(max(pro_s) + 1, 14):
        add("S", m, max(0.03, m - c.w_la), range(4), 3)
    for kc, x in c.x_issue.items():
        add("X", kc, x, range(6), 3)
        if kc > c.nx:
            units[-1][0] = max(units[-1][0], at(x_read[kc - c.nx]) + 20 + 3 * (c.D + 2))
    staged = {m: r for x, m, r in c.staged}
    for x, m, r in c.staged:
        ks = (r + 15) // 12
        assert r + 16 <= 192 and (r >= 168 or x >= (ks + 1 if ks < c.nW else c.nW + 4 * ((ks - c.nW) // 4 + 1)))
        assert r + 16 <= 48 or m < 14 + len(c.kv_early)
        add("G", m, x, range(4), c.kv_step)
    for m, x in zip(range(14, 14 + len(c.kv_early)), c.kv_early):
        add("S", m, x, range(4), 6 if m in staged else c.kv_step)
    m0 = 14 + len(c.kv_early)
    late_kv = [m for m in range(m0, 46) if m not in staged]
    w = (c.kv_last + 1 - 14) / len(late_kv)
    x = 14.0
    for m in range(m0, 46):
        if m in staged:
            add("S", m, x + 0.01, range(4), 6)
        else:
            add("S", m, x, range(4), int(w * 12))
            x += w
    x = c.kv_last + 1
    for m in range(46, 60):
        x = c.wo_at[m - 46] if c.wo_at else max(x, m - c.wo_la)
        add("S", m, x, range(4), 3)
        x += 0.5
    units.sort(key=lambda u: u[0])
    slot_of, slot_lo = {}, {}
    def alloc(m):
        if m < 14:
            pool = list(range(c.w_la + 2))
        elif 13 not in slot_of:
            pool = list(range(c.w_la + 2, 9))
        else:
            pool = list(range(9))
        s = min(pool, key=lambda s: (free_at[s], s))
        slot_of[m], slot_lo[m] = s, free_at[s]
        free_at[s] = freed(m)
    for m in pro_s:
        alloc(m)
    for u in units:
        if u[2] == "S" and u[3] not in slot_of:
            alloc(u[3])
            u[0] = max(u[0], slot_lo[u[3]])
    units.sort(key=lambda u: u[0])

    def soff(reg, fixed, off):
        return Ins(f"s_add_u32 s{S_T0}, s{reg}, {off}" if c.rot else f"s_mov_b32 s{S_T0}, {fixed + off}")
    def dma(kind, i, p):
        if kind == "X":
            return [Ins(f"s_add_u32 m0, s{S_LDSX}, {xreg(i) + 1024*p}"), soff(S_XOFF + i, 128 * i, 7168 * p),
                    Ins(f"buffer_load_dwordx4 v{V_DX}, {sq(S_X)}, s{S_T0} offen {c.pol_x} lds", 1, "vm", ("X", i))]
        ty, k = steps[i]
        if kind == "G":
            o = [Ins(f"s_mov_b32 s{S_T1}, {k*16384}")] if p == 0 else []
            off = f" offset:{512*p}" if p else ""
            return o + [Ins(f"buffer_load_dwordx4 {ar(staged[i]+4*p,4)}, v{V_DKV}, {sq(S_K if ty == 'K' else S_V)}, s{S_T1} offen{off} {c.pol_kv}", 1, "vm", ("G", i))]
        base = slot_of[i] * SLOT
        if i in staged:
            sw = V_SW if i >= 14 + len(c.kv_early) else V_SWQ
            o = [Ins("", 1, "waitv", {("G", i)}), Ins(f"s_add_u32 s{S_T0}, s{S_LDSW}, {base}"), Ins(f"v_add_u32 v{sw}, s{S_T0}, v{V_ST}")] if p == 0 else []
            return o + [Ins(f"ds_write_b128 v{sw}, {ar(staged[i]+4*p,4)} offset:{1056*p}", 1, "ds", ("SW", i))]
        if ty in "WU":
            pos, off, v = (k >> 1, ((k & 1) * 32 + p) * 8192, V_DWQ) if ty == "W" else (c.nW // 2 + 2 * (k >> 2), p * 8192 + (k & 3) * 128, V_DWU)
            return [Ins(f"s_add_u32 m0, s{S_LDSW}, {base + WPOS[p]}"), soff(S_WQOFF + pos, pos << 19, off),
                    Ins(f"buffer_load_dwordx4 v{v}, {sq(S_WQ)}, s{S_T0} offen {c.pol_wq} lds", 1, "vm", ("S", i))]
        o = []
        if ty in "KV":
            g, sr, v, pol = 512 * p, (S_K if ty == "K" else S_V), V_DKV, c.pol_kv
            if p == 0:
                o.append(Ins(f"s_mov_b32 s{S_T1}, {k*16384}"))
        else:
            g, sr, v, pol = 896 * p, S_WO, V_DWO, c.pol_wo
            if p == 0:
                o.append(Ins(f"s_add_u32 s{S_T1}, s{S_WOOFF+(k>>1)}, {(k&1)*128*896}"))
        o.append(Ins(f"s_add_u32 m0, s{S_LDSW}, {base + 1056*p - g}"))
        off = f" offset:{g}" if g else ""
        o.append(Ins(f"buffer_load_dwordx4 v{v}, {sq(sr)}, s{S_T1} offen{off} {pol} lds", 1, "vm", ("S", i)))
        return o

    def reads(F):
        n, f = F // 16, F % 16
        ty, k = steps[n]
        s, r = slot_of[n], fb(F)
        win, base = s // 3, (s % 3) * SLOT
        if ty == "K":
            return [Ins(f"ds_read_b128 {ar(r,4)}, v{V_RK+win} offset:{base + (f>>3)*BLK + (f&7)*64}", 1, "ds", F)]
        if ty == "V":
            v, o0, dd = V_RT + win, base + f * 32, BLK
        elif ty == "W":
            v, o0, dd = V_RW + win, base + (f >> 1) * 64 + (f & 1) * 8, BLK
        else:
            i, nt = ki(n, f)
            o0, dd = (i >> 1) * BLK + (i & 1) * 512, 256
            if ty == "U":
                v, o0 = V_RU + win, o0 + base + (nt >> 1) * 64 + (nt & 1) * 8
            else:
                v, o0 = V_RO + win, o0 + base + nt * 32
        assert o0 + dd < 65536
        return [Ins(f"ds_read_b64_tr_b16 {ar(r,2)}, v{v} offset:{o0}", 1, "ds", F),
                Ins(f"ds_read_b64_tr_b16 {ar(r+2,2)}, v{v} offset:{o0+dd}", 1, "ds", F)]
    def xreads(kc):
        return [Ins(f"ds_read_b128 {ar(((2*kc+s)*3+q)*4,4)}, v{V_RX+s} offset:{xreg(kc) - 10*BLK + q*2048}", 1, "ds", ("X", kc))
                for s in range(2) for q in range(3)]

    P = lambda t: tl.put(-1, Ins(t) if isinstance(t, str) else t)
    PS = lambda k: [P(t) for t in stamp(k)] if c.pstamps else None
    for t in prologue1(c):
        P(t)
    PS(1)
    for e in pro[:c.pro_first]:
        for x in dma(*e):
            P(x)
    PS(2)
    for t in prologue2(c):
        P(t)
    if c.code_pf:
        for t in ["s_getpc_b64 s[70:71]", f"s_lshr_b32 s{S_T0}, s2, 3", f"s_lshl_b32 s{S_T0}, s{S_T0}, 11",
                  f"s_add_u32 s70, s70, s{S_T0}", "s_addc_u32 s71, s71, 0", f"v_lshlrev_b32 v{VA}, 7, v{VQ}"]:
            P(t)
        P(Ins(f"global_load_dword v239, v{VA}, s[70:71]", 1, "vm", "dum"))
    PS(3)
    for e in pro[c.pro_first:c.pro_n]:
        for x in dma(*e):
            P(x)
    PS(4)
    P(Ins("", 1, "waitv", {("X", 0), ("S", 0)}))
    P("s_waitcnt lgkmcnt(0)")
    P(f"s_mov_b64 s[{S_DBG}:{S_DBG+1}], s[{S_OUT+2}:{S_OUT+3}]")
    PS(5)
    P("s_barrier")
    PS(6)
    for x in xreads(0):
        P(x)
    for F in range(c.D):
        for x in reads(F):
            P(x)
    P(Ins("", 1, "waitl", {0, ("X", 0)}))

    NFR = 16 * NS
    for F in range(c.D, NFR):
        g = G[F - c.D]
        assert F < c.NF or LAST[F - c.NF] <= g
        for k, x in enumerate(reads(F)):
            tl.put(g + k, x)
    hasread = lambda g: bool(tl.gaps[g].mem)
    def lead_before(ins, g, span=3):
        for i in range(g, g - span, -1):
            if i >= 0 and hasread(i) and not tl.gaps[i].lead:
                tl.gaps[i].lead.append(ins)
                return i
        return tl.back(ins, g, max(0, g - span))
    for n in bsteps:
        tl.gaps[bgap[n]].lead.append(Ins("s_barrier"))
        need = {("S", m) for m in covers[n]}
        if n == bsteps[3]:
            need.add("dum")
        lead_before(Ins("", 1, "waitv", need), bgap[n] - 1)
    for kc, r in x_read.items():
        g = lead_before(Ins("", 1, "waitv", {("X", kc)}), at(r) + 1)
        tl.chain(xreads(kc), g + 1, at(r) + 20)
    F = 1
    while F < NFR:
        grp = [F]
        if mode(F // 16) == "CH" and F % 4 == 1:
            grp = [F, F + 1, F + 2]
        need = set(grp)
        ty, k = steps[F // 16]
        if F % 16 == 0 and ((ty == "U" and k % 4 == 0) or (ty == "W" and k % 2 == 0)):
            need |= {("X", k // 2)} if ty == "W" else {("X", c.nW // 2 + k // 2), ("X", c.nW // 2 + k // 2 + 1)}
            tl.back(Ins("", 1, "waitl", need), USE[F] - 1, USE[F] - 1)
        else:
            lead_before(Ins("", 1, "waitl", need), min(USE[x] for x in grp) - 1)
        F += len(grp)

    pieces, last_t = [], {}
    for seq, (g0, step, kind, i, ps) in enumerate(units):
        stream = "sw" if (kind == "S" and i in staged) else "kv" if (kind == "G" or (kind == "S" and i >= 14)) else "w"
        for n_p, p in enumerate(ps):
            tgt = max(g0 + n_p * step, last_t.get(stream, -1))
            last_t[stream] = tgt
            pieces.append((tgt, seq, n_p, kind, i, p))
    pieces.sort()
    state = dict(prev=-1, k=0)
    margin = {}
    def place_units(upto, back, slack):
        while state["k"] < len(pieces) and pieces[state["k"]][0] < upto:
            tgt, _, _, kind, i, p = pieces[state["k"]]
            state["k"] += 1
            ins = dma(kind, i, p)
            prev = state["prev"]
            lo = max(tgt - back, prev + 3, prev + len(ins))
            if kind == "S":
                lo = max(lo, slot_lo[i] + len(ins) - 1)
            g = lo
            while tl.gaps[g].seq() and g < lo + slack:
                g += 1
            if tl.gaps[g].seq():
                g = min(range(lo, lo + slack), key=lambda k: (tl.gaps[k].added(ins[-1], 1), k))
            tl.gaps[g].mem.append(ins[-1])
            if ins[:-1]:
                tl.chain(ins[:-1], max(prev + 1, g - 6), g - 1)
            state["prev"] = g
            if kind == "G" or (kind == "S" and i >= 14):
                state.setdefault("kv0", g)
            if kind == "S" and i > 0:
                margin[i] = round((min(bgap[n] for n in bsteps if i in covers[n]) - g) / 49.5, 1)
    place_units(beg(nK0), 0, 8)

    kv, ini, att, out = deferred(c)
    L = lambda ts: [Ins(t) for t in ts]
    init = Ins(f"buffer_store_dword v{V_DUM}, v{V_INI}, {sq(S_ALL)}, s{S_T2} offen sc1", 1, "vm", "reset")
    ps = tl.chain(L(ini) + [init], 0, at(c.race_at) - 62)
    ps = tl.chain(L(kv), ps[-1][0] + 1, state["kv0"] - 2)
    ini_end = ps[-1][0]
    def fill(ts, g):
        sec = 0
        for t in ts:
            ins = t if isinstance(t, Ins) else Ins(t)
            while True:
                gp = tl.gaps[g]
                if gp.mem and cls(gp.mem[0]) == "d":
                    k = gp.section(ins, sec)
                    if gp.added(ins, k) <= 0:
                        break
                g, sec = g + 1, 0
            gp.add(ins, k)
            sec = 2
        return g
    A, Tt = f"s{S_ACC}", f"s{S_TOT}"
    g = fill([Ins("", 1, "waitv", {"reset"}), f"s_mov_b32 {Tt}, 0", f"s_mov_b64 s[{S_RA}:{S_RB}], 0", f"s_mov_b32 {A}, 0"], at(c.race_at))
    reset_seen = g
    for i in range(c.races):
        off = (i + 1) * (0x4000 + 256) + ((i + 1) & 1) * 4096
        ld = [f"s_load_dword s{S_RA}, s[{S_ALL}:{S_ALL+1}], s{S_PRB} offset:{off}",
              f"s_load_dword s{S_RB}, s[{S_ALL}:{S_ALL+1}], s{S_PRB} offset:{off+8192}"]
        sm = [f"s_add_u32 {A}, {A}, s{S_RA}", f"s_sub_u32 {A}, {A}, s{S_RB}"]
        first = (i + i // 2) % 2
        g0 = fill(ld[::-1 if first else 1], g + 1)
        g = g0 + c.race_skip
        while g < g0 + c.race_len:
            g = max(fill(sm[::-1 if first else 1], g) + 1, g + c.race_step)
        if c.stamps:
            tl.put(g, Ins(f"v_writelane_b32 v{V_STAMP}, {A}, {50+i}"), 2)
            g += 1
        g = fill([f"s_min_i32 {A}, {A}, {c.race_clamp}", f"s_max_i32 {A}, {A}, {-c.race_clamp}", f"s_add_u32 {Tt}, {Tt}, {A}",
                  f"s_mov_b32 {A}, 0", f"s_mov_b64 s[{S_RA}:{S_RB}], 0"], g)
    fin = [f"s_lshr_b32 {A}, {Tt}, 31", f"s_mul_i32 {A}, {A}, 3", f"s_add_u32 {A}, {A}, 4"]
    if c.force is not None:
        fin += [f"s_mov_b32 {A}, {4 + c.force}"]
    g = fill(fin, g + 1)
    g = max(g, min(b for b in bgap.values() if b > reset_seen))
    pub_at = tl.chain([Ins(f"v_mov_b32 v{V_PUB}, {A}"),
                       Ins(f"buffer_store_dword v{V_PUB}, v{V_FLW}, {sq(S_DBG)}, s{S_LEAD} offen sc1", 1, "vm", "cnt")], g + 1, g + 30)[-1][0]
    ps = tl.chain(L(att + out), ini_end + 1, beg(10))
    defer_end = ps[-1][0]

    cur = 0
    for s in range(8):
        it = []
        for q in sorted(range(3), key=lambda q: FIN[("Q", 2 * s + 1, q)]):
            src, dst = (s * 3 + q) * 8, (s * 3 + q) * 4
            rdy = FIN[("Q", 2 * s + 1, q)] + 4
            it += [(Ins(f"v_mul_f32 v{src+r}, s{S_C}, v{src+r}"), FIN[("Q", 2 * s + (r >> 2), q)] + 4) for r in range(8)]
            if s:
                it += [(Ins(f"v_cvt_pk_bf16_f32 v{dst+r}, v{src+2*r}, v{src+2*r+1}"), rdy) for r in range(4)]
        if s == 0:
            for q in range(3):
                it += [Ins(f"v_cvt_pk_bf16_f32 v{q*4+r}, v{q*8+2*r}, v{q*8+2*r+1}") for r in range(4)]
        lo = max(cur, it[0][1])
        hi = min(USE[("QB", s)] - 2, max(FIN[("Q", 2 * s + 1, q)] for q in range(3)) + 26)
        cur = tl.chain(it, lo, hi)[-1][0]
    q_done = cur

    tmp = [0]
    prev_branch = 0
    for j in range(16):
        it, pend = [], None
        for kt in range(2):
            qo = sorted(range(3), key=lambda q: FIN[("S", j, kt, q)])
            items, p = softmax_items(j, kt, tmp, qo)
            xs = [(x, FIN[("S", j, kt, x.meta)] + 5) for x in items]
            if pend:
                xs.insert(1, (pend, 0))
            it += xs
            pend = p
        lo = max(it[0][1], prev_branch + 1, q_done + 1)
        ps = tl.chain(it, lo, ONES[j] - 6)
        tl.chain([pend], ps[-1][0] + 1, ONES[j] - 5)
        l = lreg(j)
        br = (G[16 * idx[("K", 1)] + 8] - 1) if j == 0 else end(idx[("V", j - 1)])
        chk = [Ins(f"v_max3_f32 v{V_CHK}, v{l}, v{l+1}, v{l+2}"), Ins(f"v_cmp_nge_f32 vcc, s{S_TH}, v{V_CHK}")]
        if j == 0:
            chk = [Ins(f"v_min3_f32 v{V_CHK+1}, v{l}, v{l+1}, v{l+2}"), Ins(f"v_cmp_nle_f32 s[{S_RET}:{S_RET+1}], s{S_TL}, v{V_CHK+1}")] + chk
            chk += [Ins(f"s_or_b64 vcc, vcc, s[{S_RET}:{S_RET+1}]")]
        tl.chain(chk, ONES[j] + 5, br - 1)
        g = tl.gaps[br]
        sec = g.lead if not g.lead else g.rest
        sec += [Ins(f"s_cbranch_vccnz L_stub{j}"), Ins(f"L_back{j}:", 0)]
        prev_branch = br

    place_units(beg(nV15), c.back, c.slack)
    place_units(NM, 0, 8)

    nK14 = idx[("K", 15)]
    assert pub_at + 150 < beg(nK14 - 4)
    tl.chain([Ins(f"buffer_load_dword v{V_PUB}, off, {sq(S_DBG)}, s{S_GRP} sc1", 1, "vm", "dbg")], beg(nK14 - 4), beg(nK14 - 4) + 30)
    ps = tl.chain([Ins("", 1, "waitv", {"dbg"}), Ins(f"v_cmp_gt_u32 vcc, 1, v{V_PUB}")], beg(nK14), beg(nK14) + 9)
    gi = ps[-1][0] + 2
    g = tl.gaps[gi]
    (g.lead if not g.lead else g.rest).extend([Ins("s_cbranch_vccnz L_dbgspin"), Ins("L_dbgback:", 0)])
    D0, M = f"s{S_D0}", f"s{S_D1}"
    ps = tl.chain([Ins(f"v_readfirstlane_b32 {M}, v{V_PUB}")], gi + 1, gi + 6)
    fix = [f"s_mul_i32 {D0}, s99, 3", f"s_xor_b32 {M}, {M}, {D0}", f"s_and_b32 {D0}, {M}, 2", f"s_lshl_b32 {D0}, {D0}, 12", f"s_add_u32 s{S_SB+1}, s{S_SB}, {D0}",
           f"s_and_b32 {D0}, {M}, 1", f"s_lshl_b32 {D0}, {D0}, 13", f"s_add_u32 s{S_SB}, s{S_SB}, {D0}", f"s_add_u32 s{S_FLR}, s{S_FLR}, {D0}"]
    for r in range(3):
        fix += [f"s_bfe_u32 {D0}, s{S_SRC+r}, 0x10012", f"s_lshr_b32 {D0}, {M}, {D0}", f"s_and_b32 {D0}, {D0}, 1",
                f"s_lshl_b32 {D0}, {D0}, 13", f"s_add_u32 s{S_SRC+r}, s{S_SRC+r}, {D0}"]
    tl.chain(L(fix), ps[-1][0] + 1, beg(nV15))

    tl.chain([Ins(f"v_rcp_f32 v{V_RINV+q}, v{lreg(15)+q}", 2) for q in range(3)], beg(nV15), beg(nV15) + 9)
    cur, rot = beg(nV15), 0
    for s in range(8):
        it = []
        for tp in range(2):
            for q in sorted(range(3), key=lambda q: FIN[("O", 2 * s + tp, q)]):
                fl, a = oreg(2 * s + tp, q)
                rdy = FIN[("O", 2 * s + tp, q)] + 4
                if fl == "a":
                    T = 216 + 4 * (rot % 2)
                    rot += 1
                    it += [(Ins(f"v_accvgpr_read_b32 v{T+r}, a{a+r}"), rdy) for r in range(4)]
                    a = T
                it += [(Ins(f"v_cvt_pk_bf16_f32 v{(s*3+q)*4+2*tp+h}, v{a+2*h}, v{a+2*h+1}"), rdy) for h in range(2)]
        lo = max(cur, it[0][1])
        dead = USE[("B", s)] - 2
        left = sum(12 if x < 2 else 36 for x in range(s, 8))
        share = lo + int((USE[("B", 7)] - 2 - lo) * (12 if s < 2 else 36) / left) + 1
        cur = tl.chain(it, lo, max(min(dead, share), min(dead, it[-1][1] + 2)))[-1][0]

    def chunk_out(ch):
        pcs = sorted(range(6), key=lambda pc: FIN[("P", ch, 2 * (pc & 1) + 1, pc >> 1)])
        it = [(Ins(f"s_add_u32 s{S_ST0}, s{S_SB+(ch&1)}, {ch << 18}"), 0), (Ins(f"s_add_u32 s{S_ST1}, s{S_SB+(ch&1)}, {(ch << 18) + 4096}"), 0)]
        held = []
        for n_p, pc in enumerate(pcs):
            q, p = pc >> 1, pc & 1
            a, T = oacc(ch, 2 * p, q), 192 + 4 * pc
            rdy = FIN[("P", ch, 2 * p + 1, q)] + 4
            v = [(Ins(f"v_mul_f32 v{a+r}, v{a+r}, v{V_RINV+q}"), FIN[("P", ch, 2 * p + (r >> 2), q)] + 4) for r in range(8)]
            v += [(Ins(f"v_cvt_pk_bf16_f32 v{T+r}, v{a+2*r}, v{a+2*r+1}"), rdy) for r in range(4)]
            if n_p % c.st_group == c.st_group - 1:
                for k, x in enumerate(held):
                    v.insert(len(v) - 2 * (len(held) - k), x)
                held = []
            it += v
            st = (Ins(f"buffer_store_dwordx4 {vr(T,4)}, v{V_ST}, {sq(S_ALL)}, s{S_ST0 if pc < 4 else S_ST1} offen offset:{(pc&3)*1024} sc1", 1, "vm", ("st", ch)), rdy)
            if n_p % c.st_group == c.st_group - 1:
                it.append(st)
            else:
                held.append(st)
        return it
    tail = []
    st_last = {}
    for ch in range(7):
        it = chunk_out(ch)
        lo = max(cur + 1, it[2][1])
        if ch < 6:
            cur = tl.chain(it, lo, end(nO0 + 2 * ch + 3) - 26)[-1][0]
            st_last[ch] = cur
        else:
            early = it[:2 + 3 * 13]
            if c.chain:
                tl.chain(early, lo, NM - 1)
                tail = [x for x, _ in it[len(early):]]
            else:
                tail = [x for x, _ in it]

    def flag(ch):
        return [Ins(f"v_mov_b32 v{V_FV}, {1 << (5 * (ch - 1))}"),
                Ins(f"buffer_atomic_add v{V_FV}, v{V_FLW}, {sq(S_ALL)}, s{S_FLR} offen sc1", 1, "vm", ("fl", ch))]
    def poll(tok):
        return [Ins(f"v_mov_b32 v{V_POLL}, 0"),
                Ins(f"buffer_atomic_add v{V_POLL}, v{V_FLW}, {sq(S_ALL)}, s{S_FLR} offen sc0 sc1", 1, "vm", tok)]
    def ready(r):
        return [f"s_andn2_b32 s{S_OK+r}, s{S_NEED+r}, s{S_SPIN}", f"s_cselect_b32 s{S_T2}, {OOB}, s{S_SRC+r}"]
    def rloads(r, so):
        o = []
        for h in range(16):
            o.append(Ins(f"buffer_load_dwordx4 {ar(64*r+4*h,4)}, v{V_ST}, {sq(S_ALL)}, s{so} offen sc1", 1, "vm", ("R", r, h)))
            if h < 15:
                d = 16384 + 1024 * (((h + 1) & 2) - (h & 2))
                o.append(Ins(f"s_add_u32 s{so}, s{so}, {d}"))
        return o
    tO = lambda t: at(nO0 + 2 * t)
    tail_flags = []
    for ch in c.flags:
        g = st_last[ch] + c.flag_delay
        if g + 10 < NM:
            tl.chain([Ins("", 1, "waitv", {("st", ch)})] + flag(ch), g, g + 20)
        else:
            tail_flags.append(ch)
    tail_loads, cur = [], 0
    for r, tp in enumerate(c.early):
        if tp is None:
            tl.chain([Ins(f"s_mov_b32 s{S_OK+r}, s{S_NEED+r}")], tO(3.0), tO(3.5))
            continue
        tl.chain(poll(("p", r)), tO(tp), tO(tp + 0.15))
        g = max(cur + 1, tO(min(6.95, tp + c.poll_wait)))
        ps = tl.chain([Ins("", 1, "waitv", {("p", r)}), Ins(f"v_readfirstlane_b32 s{S_SPIN}, v{V_POLL}")], g, g + 12)
        gi = ps[-1][0] + 1
        gi = min(range(gi, min(gi + 6, NM)), key=lambda k: (len(tl.gaps[k].seq()), k))
        for t in ready(r):
            tl.put(gi, Ins(t), 2)
        cur = gi
        ld = rloads(r, S_T2)
        while ld:
            lo = cur + c.load_gap
            free = [k for k in range(lo, min(lo + 8, NM - 1)) if not tl.gaps[k].seq()]
            if lo >= NM - 2:
                tail_loads = ld
                break
            cur = free[0] if free else min(range(lo, min(lo + 8, NM - 1)), key=lambda k: (tl.gaps[k].added(ld[0], 1), k))
            tl.gaps[cur].mem.append(ld[0])
            if len(ld) > 1:
                tl.chain([ld[1]], cur + 1, cur + c.load_gap - 1)
            ld = ld[2:]

    if c.stamps:
        for k, n in enumerate(c.stamps):
            tl.gaps[beg(n)].lead[0:0] = [Ins(t) for t in stamp(k + 1 + 6 * c.pstamps)]
    lin = tl.linear()
    ns = len(c.stamps) + 1 + 6 * c.pstamps if c.stamps else 0
    ST = lambda k: [Ins(t) for t in stamp(ns + k)] if c.stamps else []

    I = lambda *ts: [Ins(t) for t in ts]
    lin += I("s_nop 7") + tail + ST(0) + tail_loads
    for ch in tail_flags:
        lin += [Ins("", 1, "waitv", {("st", ch)})] + flag(ch)
    SEL, ACC = 0, 8
    lin += I(f"v_bfe_u32 v16, v{V_ST}, 4, 4", f"v_lshrrev_b32 v17, 8, v{V_ST}",
             "v_and_b32 v18, 1, v16", "v_lshlrev_b32 v18, 4, v18", "v_mov_b32 v19, 0x3f80", "v_lshlrev_b32 v19, v18, v19",
             "v_lshrrev_b32 v18, 1, v16", "v_and_b32 v20, 2, v18", "v_sub_u32 v17, v17, v20",
             "v_and_b32 v18, 1, v18", "v_lshrrev_b32 v20, 3, v16", "v_lshl_add_u32 v18, v20, 1, v18",
             "v_lshl_add_u32 v18, v17, 2, v18")
    for r in range(8):
        lin += I(f"v_cmp_eq_u32 vcc, {r}, v18", "s_nop 1", f"v_cndmask_b32 v{SEL+r}, 0, v19, vcc")
    lin += [Ins("", 1, "waitv", {("st", 6)})] + flag(6) + ST(1)
    resolve_waits(lin)
    verify(lin, steps, slot_of, xslots, c.nx)
    texts = [x.text for x in lin]
    T = lambda xs: [x.text for x in xs]
    if c.stamps:
        texts += [f"v_writelane_b32 v{V_STAMP}, s{S_OK}, 62", f"v_writelane_b32 v{V_STAMP}, s{S_TOT}, 63"]
    texts += [f"s_mov_b32 s{S_T1}, 0", f"s_mov_b32 s{S_SPIN}, 0"]
    for r in range(3):
        if r < 2:
            texts += [f"s_cmp_eq_u32 s{S_OK+r}, 0", f"s_cbranch_scc1 L_have{r}"]
        ld = T(rloads(r, S_SRC + r))
        for g in range(0, 16, c.gs):
            lb = f"L_g{r}_{g}"
            texts += [f"s_bitcmp1_b32 s{S_SPIN}, 29", f"s_cbranch_scc1 {lb}x", f"{lb}:"] + T(poll(0)) + \
                     ["s_waitcnt vmcnt(0)", f"v_readfirstlane_b32 s{S_SPIN}, v{V_POLL}"]
            if g == 0:
                texts += [f"s_add_u32 s{S_T1}, s{S_T1}, 1", f"s_cmp_ge_u32 s{S_T1}, {c.spin_max}", f"s_cselect_b32 s{S_SPIN}, -1, s{S_SPIN}",
                          f"s_andn2_b32 s{S_T0}, s{S_NEED+r}, s{S_SPIN}", f"s_cbranch_scc1 {lb}"]
            texts += [f"{lb}x:"] + ld[2 * g:2 * (g + c.gs)]
        texts += [f"L_have{r}:"]
    texts += T(ST(2))
    for r in range(3):
        a = ACC + 8 * r
        for h in range(16):
            if r == 2 or h % 4 == 0:
                texts += [f"s_waitcnt vmcnt({(15-h if r == 2 else 12-h) + r + (16 if r < 2 else 0) + (16 if r == 0 and c.early[1] is None else 0)})"]
            for e in range(2):
                d = vr(a + 4 * e, 4)
                texts += [f"{MF} {d}, {vr(SEL+4*e,4)}, {ar(64*r+4*h,4)}, {d if h else 0}"]
        texts += ["s_nop 6"] + [f"v_cvt_pk_bf16_f32 v{40+4*r+k}, v{a+2*k}, v{a+2*k+1}" for k in range(4)]
        texts += [f"buffer_store_dwordx4 {vr(40+4*r,4)}, v{V_OUT}, {sq(S_OUT)}, s{S_DST+r} offen {c.pol_out}"]
    if c.stamps:
        texts += stamp(ns + 3) + ["s_waitcnt vmcnt(0)"] + stamp(ns + 4)
        if c.diag is not None:
            lane = c.diag if c.diag >= 0 else ns + 5 + c.diag
            texts += ["s_nop 1", f"v_readlane_b32 s40, v{V_STAMP}, {lane}", f"v_readlane_b32 s41, v{V_STAMP}, 0", "s_nop 3",
                      "s_sub_u32 s40, s40, s41", "s_lshl_b32 s40, s40, 2", "s_add_u32 s40, s40, 10000",
                      "L_diag:", "s_sleep 1", "s_memrealtime s[42:43]", "s_waitcnt lgkmcnt(0)", "s_sub_u32 s42, s42, s41",
                      "s_cmp_lt_u32 s42, s40", "s_cbranch_scc1 L_diag"]
        texts += [
                  f"v_lshrrev_b32 v8, 2, v{V_ST}", "s_lshl_b32 s3, s2, 8", f"s_add_u32 s3, s3, {STAMP_AT}",
                  f"s_cmp_lg_u32 s{S_W}, 0", "s_cbranch_scc1 L_end", f"buffer_store_dword v{V_STAMP}, v8, {sq(S_ALL)}, s3 offen"]
    texts, probs = check_hazards(texts, fix=True)
    stats = dict(n=len(texts), nops=len(probs), cost=[tl.cost(beg(n), end(n)) for n in range(NS)], margin=[margin.get(m) for m in range(2, NS)],
                 defer=round(defer_end / 48, 2), stl=[round((st_last[k] - beg(nO0)) / 96, 2) for k in range(6)])
    texts += ["L_end:", "s_endpgm"]
    texts += ["L_dbgspin:", f"s_mov_b32 s{S_SPIN}, 0", "L_dspin:", f"buffer_load_dword v{V_PUB}, off, {sq(S_DBG)}, s{S_GRP} sc1",
              "s_waitcnt vmcnt(0)", f"v_cmp_gt_u32 vcc, 1, v{V_PUB}", f"s_add_u32 s{S_SPIN}, s{S_SPIN}, 1",
              f"s_cmp_ge_u32 s{S_SPIN}, {c.spin_max}", "s_cbranch_scc1 L_dbgback", "s_cbranch_vccnz L_dspin", "s_branch L_dbgback"]
    texts += ["L_stub0:"] + rare_path(0) + ["s_branch L_back0"]
    for j in range(1, 16):
        texts += [f"L_stub{j}:", f"s_call_b64 s[{S_RET}:{S_RET+1}], L_rare{j&1}", f"s_branch L_back{j}"]
    for par in range(2):
        texts += [f"L_rare{par}:"] + rare_path(par + 2) + [f"s_setpc_b64 s[{S_RET}:{S_RET+1}]"]
    return texts, stats, probs

def verify(lin, steps, slot_of, xslots, nx):
    pending, lq, vq = {}, [], []
    issued, landed, visible = {}, set(), set()
    last_epoch, epoch, in_slot, cnt = {}, 0, {}, {}
    def refill(m):
        s = slot_of[m]
        old = in_slot.get(s)
        if old is None:
            for kc in xslots.get(s, ()):
                assert cnt.get(("X", kc), 0) == 6 and last_epoch[("X", kc)] < epoch, ("slot under x", m)
        elif old != m:
            assert cnt.get(old, 0) == (16 if steps[old][0] == "K" else 32), ("slot reused early", m, old)
            assert last_epoch[old] < epoch, ("slot reuse without barrier", m, old)
        in_slot[s] = m
    for ins in lin:
        t = ins.text
        if ins.tag == "ds" and t.startswith("ds_write"):
            m = ins.meta[1]
            assert ("G", m) in landed and issued[("G", m)] == 4
            refill(m)
            lq.append(([], ins.meta))
        elif ins.tag == "vm":
            vq.append(ins.meta)
            issued[ins.meta] = issued.get(ins.meta, 0) + 1
            landed.discard(ins.meta)
            if isinstance(ins.meta, tuple) and ins.meta[0] == "X" and ins.meta[1] >= nx:
                assert cnt.get(("X", ins.meta[1] - nx), 0) == 6, ("x region reused early", ins.meta)
            if isinstance(ins.meta, tuple) and ins.meta[0] == "fl":
                assert ("st", ins.meta[1]) in landed and issued[("st", ins.meta[1])] == 6, ins.meta
            if isinstance(ins.meta, tuple) and ins.meta[0] == "S":
                refill(ins.meta[1])
        elif t.startswith("s_waitcnt"):
            mv = re.search(r"vmcnt\((\d+)\)", t)
            if mv:
                k = max(0, len(vq) - int(mv.group(1)))
                done, vq = vq[:k], vq[k:]
                landed |= {d for d in done if d not in vq}
            ml = re.search(r"lgkmcnt\((\d+)\)", t)
            if ml:
                k = max(0, len(lq) - int(ml.group(1)))
                done, lq = lq[:k], lq[k:]
                for rs, tok in done:
                    for r in rs:
                        pending.pop(r, None)
                    key = tok // 16 if isinstance(tok, int) else tok
                    cnt[key] = cnt.get(key, 0) + 1
                    last_epoch[key] = epoch
                    if isinstance(tok, tuple) and tok[0] == "SW" and cnt[key] == 4:
                        landed.add(("S", tok[1]))
                        issued[("S", tok[1])] = 4
        elif t == "s_barrier":
            visible |= {d for d in landed if not (isinstance(d, tuple) and d[0] == "S") or issued[d] == 4}
            epoch += 1
        elif ins.tag == "ds":
            wr, tok = rw(t)[1], ins.meta
            if isinstance(tok, int):
                assert ("S", tok // 16) in visible, ("read before visible", tok)
            else:
                assert tok in landed and issued[tok] == 6, ("x read before landed", tok)
            lq.append((wr, tok))
            for r in wr:
                pending[r] = tok
        elif t.startswith("v_mfma"):
            for r in rw(t)[2]:
                assert r not in pending, ("mfma reads in-flight fragment", t)
        assert len(vq) <= 63, "vmcnt overflow"

def emit(c, path):
    main, stats, probs = build_main(c)
    K1 = NAME + "_kernel"
    s = "; @launch grid=(256,1,1) block=(256,1,1) lds=163840\n"
    s += '.amdgcn_target "amdgcn-amd-amdhsa--gfx950"\n.text\n'
    s += f".globl {K1}\n.p2align 8\n.type {K1},@function\n{K1}:\n"
    s += "\n".join(x if x.endswith(":") else "    " + " ".join(x.split()) for x in main) + "\n"
    if c.code_pf:
        s += ".fill 2048, 4, 0xbf810000\n"
    s += f""".section .rodata,"a"
.p2align 6
.amdhsa_kernel {K1}
  .amdhsa_next_free_vgpr 512
  .amdhsa_next_free_sgpr 102
  .amdhsa_accum_offset 256
  .amdhsa_group_segment_fixed_size 0
  .amdhsa_kernarg_size 104
  .amdhsa_user_sgpr_count 2
  .amdhsa_user_sgpr_kernarg_segment_ptr 1
  .amdhsa_system_sgpr_workgroup_id_x 1
  .amdhsa_float_denorm_mode_32 3
.end_amdhsa_kernel
"""
    open(path, "w").write(s)
    return stats, probs

if __name__ == "__main__":
    c = Cfg()
    if "R1" in sys.argv:
        sys.argv.remove("R1")
        c.rot, c.nx, c.pro_order, c.nW = 1, 3, "X0 S0 S1 X1 X2 S2", 2
        c.x_issue = {3: 0.6, 4: 2.3, 5: 3.62, 6: 4.62}
        c.x_read = {1: 1.2, 2: 1.56, 3: 3.25, 4: 4.25, 5: 5.25, 6: 6.25}
        c.kv_early = [5.7, 6.9, 8.1, 9.3, 10.7, 11.8, 12.9]
    for kv in sys.argv[2:]:
        k, v = kv.split("=", 1)
        setattr(c, k, eval(v))
    stats, probs = emit(c, sys.argv[1])
    print(stats, "total cost", sum(stats["cost"]))
    for p in probs[:30]:
        print("  nop", p)
```

```python
import sys
from core2 import *

NAME = "concat_heads__mha_block_cached__gqa_block_cached__near_ridge"
BLK, SLOT = 8448, 16896
WPOS = [0, 1032, 2112, 3144]
MF = "v_mfma_f32_16x16x32_bf16"
OOB = 0x10000000
AUX = 0x1C0000
STAMP_AT = 0xF800000

class Cfg:
    D = 6
    NF = 12
    pol_x = ""
    pol_wq = ""
    pol_kv = "nt"
    pol_wo = ""
    pol_out = ""
    rot = 0
    nW = 10
    nx = 2
    w_la = 3
    pro_order = "X0 S0 S1 X1 S2"
    pro_first = 10
    pro_hop = 12
    pro_n = 22
    x_issue = {2: 0.5, 3: 2.3, 4: 4.3, 5: 6.0, 6: 7.2}
    x_read = {1: 1.25, 2: 3.25, 3: 5.0, 4: 6.25, 5: 8.25, 6: 9.25}
    kv_early = [3.5, 9.7, 10.4, 11.1, 11.8, 12.5, 13.2]
    kv_step = 12
    kv_last = 42.0
    kv_knee = None
    staged = []
    wo_at = None
    wo_la = 6
    back = 20
    slack = 40
    bar_q = 1
    bar_a = 2
    bar_o = 2
    chain = True
    ones_at = 12
    TH = 0x4B800000
    TL = 0x33800000
    code_pf = True
    pads = True
    wo_rate = 1.0
    wo_rate2 = 0.5
    wo_gap = 3
    wo_rot = 1
    races = 6
    race_at = 2.6
    race_skip = 10
    race_len = 40
    race_step = 2
    race_clamp = 4
    force = None
    flags = (1, 2, 3, 4, 5)
    flag_delay = 80
    sleep = 0
    tlb = ''
    early = None
    early_wait = 0.6
    load_gap = 12
    claim_at = 8
    st_group = 1
    st_pace = 0
    touch_wo = ()
    spin_max = 40000
    stamps = False
    pstamps = False
    diag = None

S_X, S_WQ, S_K, S_V, S_WO, S_ALL, S_OUT, S_DBG = 8, 12, 16, 20, 24, 28, 76, 80
S_GRP, S_LEAD = 6, 7
S_W, S_LDSW, S_TL, S_LDSX = 32, 33, 34, 35
S_WQOFF, S_XOFF, S_WOOFF = 36, 43, 56
S_T0, S_T1, S_C, S_TH, S_RET = 50, 51, 52, 53, 54
S_SB, S_ST0, S_ST1, S_PRB, S_ACC, S_TOT = 63, 65, 66, 67, 68, 69
S_T2, S_SPIN, S_STAMP = 70, 71, 72
S_RA, S_RB, S_D0, S_D1 = 84, 85, 86, 87
S_PG, S_OUTB, S_ROT, S_SRC, S_NEED, S_DST, S_TKT, S_FLR, S_PEND = 88, 90, 91, 92, 93, 94, 96, 97, 100
V_P, V_E, V_L, V_CHK, V_OV = 96, 120, 128, 136, 144
V_S, V_NEGM, V_SALT = 192, 216, 228
V_DWQ, V_DWU, V_DX, V_RW, V_RU, V_RX, V_SWQ, V_INI, V_DUM = 192, 193, 194, 195, 197, 199, 201, 201, 202
VL, VH5, VC31, VM, VG, V7, VA, VB, VC, VQ, VC4, VROW = range(204, 216)
V_DKV, V_RK, V_RT, V_DWO, V_RO, V_ST, V_FLW, V_OUT, V_STAMP = 240, 241, 244, 247, 248, 251, 252, 254, 255
V_RINV, V_FV, V_POLL, V_SW, V_PUB = 228, 231, 232, 143, 253
A_ONE, A_FR = 192, 208

def steps_list(c):
    st = [("W", k) for k in range(c.nW)] + [("U", k) for k in range(14 - c.nW)] + [("K", 0)]
    for j in range(1, 16):
        st += [("K", j), ("V", j - 1)]
    return st + [("V", 15)] + [("O", k) for k in range(14)]

def sq(d):
    return f"s[{d}:{d+3}]"
def srd_tail(d, nbytes):
    return [f"s_mov_b32 s{d+2}, {nbytes}", f"s_mov_b32 s{d+3}, 0x00020000"]

def stamp(k):
    return [f"s_memrealtime s[{S_STAMP}:{S_STAMP+1}]", f"s_memtime s[{S_STAMP+2}:{S_STAMP+3}]", "s_waitcnt lgkmcnt(0)",
            f"v_writelane_b32 v{V_STAMP}, s{S_STAMP}, {k}", f"v_writelane_b32 v{V_STAMP}, s{S_STAMP+2}, {32+k}"]

def rot7(dst, src):
    a, b = S_RET, S_RET + 1
    return [f"s_mov_b32 s{a}, 0x06543210", f"s_mov_b32 s{b}, 0x10654321", f"s_lshl_b32 s{dst}, s{src}, 2",
            f"s_lshr_b64 s[{a}:{b}], s[{a}:{b}], s{dst}", f"s_mov_b32 s{dst}, s{a}"]

def prologue1(c):
    T0, T1 = f"s{S_T0}", f"s{S_T1}"
    o = ["s_cmp_ge_u32 s2, 256", "s_cbranch_scc1 L_end"]
    if c.stamps:
        o += [f"v_mov_b32 v{V_STAMP}, 0"] + stamp(0)
    o += ["s_bfe_u32 s3, s2, 0x10002", f"s_mul_i32 {T0}, s3, 40"]
    o += [f"s_load_dwordx8 s[88:95], s[0:1], {T0}", f"s_mov_b32 s7, {T0}"]
    if c.code_pf:
        o += ["s_getpc_b64 s[70:71]", "L_pc:", f"s_lshr_b32 {T1}, s2, 3", f"s_mul_i32 {T1}, {T1}, 2304", f"v_min_u32 v{VA}, 17, v0",
              f"v_lshlrev_b32 v{VA}, 7, v{VA}", f"s_add_u32 s70, s70, {T1}", "s_addc_u32 s71, s71, 0",
              Ins(f"global_load_dword v239, v{VA}, s[70:71]", 1, "vm", "dum")]
    o += [f"v_lshrrev_b32 v{VA}, 6, v0", f"v_and_b32 v{VL}, 63, v0", f"v_readfirstlane_b32 s{S_W}, v{VA}",
          "s_and_b32 s5, s2, 3", "s_lshl_b32 s5, s5, 2", "s_bfe_u32 s6, s2, 0x20003", "s_add_u32 s5, s5, s6", "s_lshr_b32 s4, s2, 5",
          f"v_lshrrev_b32 v{VH5}, 5, v{VL}", f"v_and_b32 v{VC31}, 31, v{VL}", f"v_lshlrev_b32 v{VC31}, 4, v{VC31}",
          f"v_lshrrev_b32 v{VM}, 3, v{VL}", f"v_lshrrev_b32 v{VG}, 4, v{VL}", f"v_and_b32 v{V7}, 7, v{VL}",
          f"s_lshr_b32 s98, s{S_W}, 1", f"s_and_b32 s99, s{S_W}, 1",
          f"v_lshlrev_b32 v{VA}, 1, v{VG}", f"v_xor_b32 v{VA}, v{VA}, v{V7}", f"v_lshlrev_b32 v{VA}, 4, v{VA}",
          f"s_lshl_b32 {T0}, s4, 2", f"s_add_u32 {T0}, {T0}, s{S_W}", f"s_mul_i32 {T0}, {T0}, 43008",
          f"v_mul_u32_u24 v{VB}, 896, v{VM}", f"v_add3_u32 v{V_DX}, v{VB}, v{VA}, {T0}",
          f"s_lshl_b32 {T0}, s99, 16", f"s_lshl_b32 {T1}, s5, 9", f"s_add_u32 s{S_D0}, {T0}, {T1}",
          f"s_lshl_b32 {T1}, s98, 15", f"s_add_u32 {T0}, s{S_D0}, {T1}",
          f"v_lshlrev_b32 v{VB}, 17, v{VH5}", f"v_add3_u32 v{V_DWQ}, v{VB}, v{VC31}, {T0}",
          f"s_mul_i32 s{S_LDSW}, s{S_W}, 4224", f"s_mul_i32 s{S_LDSX}, s{S_W}, 6144"]
    o += srd_tail(S_X, 8 * 172032) + srd_tail(S_WQ, 448 * 8192)
    if c.rot:
        o += [f"s_lshl_b32 {T0}, s6, 1", f"s_add_u32 {T0}, {T0}, s4", f"s_mul_i32 {T1}, {T0}, 37", f"s_lshr_b32 {T1}, {T1}, 8",
              f"s_mul_i32 {T1}, {T1}, 7", f"s_sub_u32 {T0}, {T0}, {T1}"] + rot7(S_D1, S_T0)
        for k in range(7):
            o += [f"s_bfe_u32 {T0}, s{S_D1}, {0x40000 + 4*k}", f"s_lshl_b32 s{S_XOFF+k}, {T0}, 7"]
            if k < c.nW // 2:
                o += [f"s_lshl_b32 s{S_WQOFF+k}, {T0}, 19"]
        o += [f"s_lshl_b32 {T0}, s98, 2", f"s_lshr_b32 s{S_D1}, s{S_D1}, {T0}"]
        for k in range(c.nW // 2, 7, 2):
            o += [f"s_bfe_u32 {T0}, s{S_D1}, {0x40000 + 4*k}", f"s_lshl_b32 s{S_WQOFF+k}, {T0}, 19"]
    return o + ["s_waitcnt lgkmcnt(0)", f"s_mov_b64 s[{S_X}:{S_X+1}], s[88:89]", f"s_mov_b64 s[{S_WQ}:{S_WQ+1}], s[94:95]"]

def dwu(c):
    o = [f"v_lshlrev_b32 v{VB}, 4, v{V7}", f"v_lshl_add_u32 v{VB}, v{VH5}, 18, v{VB}", f"v_and_b32 v{VA}, 1, v{VM}",
         f"v_lshl_add_u32 v{VB}, v{VA}, 17, v{VB}", f"v_and_b32 v{VA}, 1, v{VG}", f"v_lshl_add_u32 v{VB}, v{VA}, 15, v{VB}"]
    if not c.rot:
        o += [f"s_lshl_b32 s{S_D1}, s98, 19", f"s_add_u32 s{S_D0}, s{S_D0}, s{S_D1}"]
    return o + [f"v_add_u32 v{V_DWU}, s{S_D0}, v{VB}"]

def prologue2(c):
    o = [f"s_load_dwordx2 s[{S_WO}:{S_WO+1}], s[0:1], s7 offset:32", f"s_load_dwordx2 s[{S_OUT}:{S_OUT+1}], s[0:1], 80",
         f"s_load_dwordx2 s[{S_DBG}:{S_DBG+1}], s[0:1], 88",
         f"s_load_dwordx2 s[{S_ALL}:{S_ALL+1}], s[0:1], 96",
         f"s_mov_b64 s[{S_K}:{S_K+1}], s[90:91]", f"s_mov_b64 s[{S_V}:{S_V+1}], s[92:93]",
         f"v_lshrrev_b32 v{VROW}, 2, v{VL}", f"v_and_b32 v{VROW}, 7, v{VROW}", f"v_and_b32 v{VC4}, 3, v{VL}",
         f"v_lshlrev_b32 v{VA}, 10, v{VROW}", f"v_and_b32 v{VB}, 1, v{VROW}", f"v_lshl_add_u32 v{VA}, v{VB}, 3, v{VA}",
         f"v_lshrrev_b32 v{VB}, 1, v{VROW}", f"v_lshl_add_u32 v{VA}, v{VB}, 6, v{VA}", f"v_lshl_add_u32 v{VA}, v{VC4}, 4, v{VA}",
         f"v_lshl_add_u32 v{V_RW}, v{VH5}, 9, v{VA}", f"v_lshl_add_u32 v{V_RU}, v{VH5}, 7, v{VA}",
         f"v_add_u32 v{V_RW+1}, {3*SLOT}, v{V_RW}", f"v_add_u32 v{V_RU+1}, {3*SLOT}, v{V_RU}",
         f"v_and_b32 v{VQ}, 15, v{VL}", f"v_lshlrev_b32 v{VA}, 7, v{VQ}", f"v_and_b32 v{VB}, 6, v{VL}", f"v_xor_b32 v{VB}, v{VB}, v{VG}",
         f"v_lshl_add_u32 v{VA}, v{VB}, 4, v{VA}", f"s_add_u32 s{S_T0}, s{S_LDSX}, {10*BLK}",
         f"v_add_u32 v{V_RX}, s{S_T0}, v{VA}", f"v_xor_b32 v{VA}, 64, v{VA}", f"v_add_u32 v{V_RX+1}, s{S_T0}, v{VA}"]
    o += srd_tail(S_K, 1 << 25) + srd_tail(S_V, 1 << 25) + srd_tail(S_ALL, OOB) + srd_tail(S_DBG, 256)
    o += srd_tail(S_WO, 4096 * 896) + srd_tail(S_OUT, 8 * 192 * 896 * 2)
    return o + dwu(c)

def deferred(c):
    D0, D1, T2 = f"s{S_D0}", f"s{S_D1}", f"s{S_T2}"
    kv = [
        f"s_lshl_b32 {D0}, s4, 4", f"s_add_u32 {D0}, {D0}, s5", f"s_lshl_b32 {D0}, {D0}, 18",
        f"s_lshl_b32 {D1}, s98, 13", f"s_add_u32 {D0}, {D0}, {D1}", f"s_lshl_b32 {D1}, s99, 11", f"s_add_u32 {D0}, {D0}, {D1}",
        f"v_lshlrev_b32 v{VA}, 12, v{VH5}", f"v_add3_u32 v{V_DKV}, v{VA}, v{VC31}, {D0}", f"v_lshlrev_b32 v{V_ST}, 4, v{VL}"]
    ini = [
        f"s_lshl_b32 {D0}, s3, 3", f"s_add_u32 {D0}, {D0}, s4", f"s_lshl_b32 {D0}, {D0}, 2", f"s_add_u32 {D0}, {D0}, s{S_W}",
        f"s_lshl_b32 s{S_PG}, {D0}, 21", f"s_lshr_b32 {D0}, {D0}, 2", f"s_lshl_b32 s{S_GRP}, {D0}, 4", f"s_add_u32 s{S_FLR}, s{S_PG}, {AUX}",
        f"s_min_u32 {D1}, s5, 1", f"s_lshl_b32 {D0}, {D1}, 28", f"s_add_u32 {T2}, s{S_FLR}, {D0}",
        f"s_or_b32 {D1}, s5, s{S_W}", f"s_min_u32 {D1}, {D1}, 1", f"s_lshl_b32 {D0}, {D1}, 28", f"s_add_u32 s{S_LEAD}, s{S_GRP}, {D0}",
        f"s_add_u32 s{S_PRB}, s{S_FLR}, {D0}",
        f"v_lshrrev_b32 v{VA}, 1, v{VL}", f"v_mul_u32_u24 v{VB}, {0x4000+256}, v{VA}", f"v_min_u32 v{V_DUM}, 1, v{VA}", f"v_min_u32 v{V_DUM+1}, 1, v{VA}",
        f"v_and_b32 v{VA}, 3, v{VL}", f"v_lshrrev_b32 v{VC}, 1, v{VA}", f"v_lshl_add_u32 v{VB}, v{VC}, 12, v{VB}",
        f"v_and_b32 v{VA}, 1, v{VL}", f"v_lshl_add_u32 v{VB}, v{VA}, 13, v{VB}",
        f"v_cmp_gt_u32 vcc, {2+2*c.races}, v{VL}", f"v_mov_b32 v{VC}, {OOB}", f"v_min_u32 v{VA}, 1, v{VL}",
        f"v_lshlrev_b32 v{V_FLW}, 28, v{VA}", f"v_cndmask_b32 v{V_INI}, v{VC}, v{VB}, vcc"]
    att = [f"s_mov_b32 s{S_C}, 0x3db8aa3b", f"s_mov_b32 s{S_TH}, {c.TH}", f"s_mov_b32 s{S_TL}, {c.TL}",
           f"v_mul_u32_u24 v{VA}, 1056, v{VROW}", f"v_lshl_add_u32 v{VA}, v{VC4}, 3, v{VA}",
           f"v_lshl_add_u32 v{V_RT}, v{VH5}, 9, v{VA}", f"v_lshl_add_u32 v{V_RO}, v{VH5}, 7, v{VA}",
           f"v_mul_u32_u24 v{VA}, 1056, v{V7}", f"v_and_b32 v{VB}, 1, v{VM}", f"v_lshl_add_u32 v{VA}, v{VB}, 9, v{VA}",
           f"v_lshl_add_u32 v{V_RK}, v{VG}, 4, v{VA}"]
    for base in (V_RK, V_RT, V_RO):
        att += [f"v_add_u32 v{base+1}, {3*SLOT}, v{base}", f"v_add_u32 v{base+2}, {6*SLOT}, v{base}"]
    att += [f"v_mov_b32 v{VB}, 0x3f803f80"]
    for t in range(3):
        att += [f"v_cmp_eq_u32 vcc, {t}, v{VC4}"] + [f"v_mov_b32 v{V_NEGM+4*t+r}, 0" for r in range(4)]
        att += [f"v_cndmask_b32 v{VA}, 0, v{VB}, vcc"] + [f"v_accvgpr_write_b32 a{A_ONE+4*t+r}, v{VA}" for r in range(4)]
    out = [
        f"s_lshl_b32 {D0}, s5, 2", f"s_add_u32 {D0}, {D0}, s98", f"s_lshl_b32 {D0}, {D0}, 4", f"s_add_u32 {D0}, {D0}, s99",
        f"s_mul_i32 {D0}, {D0}, {4*896}", f"v_mul_u32_u24 v{VA}, 7168, v{VM}", f"v_lshlrev_b32 v{VB}, 4, v{V7}",
        f"v_add3_u32 v{V_DWO}, v{VA}, v{VB}, {D0}",
        f"v_mul_u32_u24 v{VA}, 1792, v{VQ}", f"v_lshl_add_u32 v{V_OUT}, v{VG}, 4, v{VA}"]
    if c.wo_rot == 1:
        out += rot7(S_ROT, 4)
    else:
        tabl = {2: 0x64206420, 3: 0x20520520}[c.wo_rot]
        out += [f"s_lshl_b32 {D0}, s4, 2", f"s_lshr_b32 {D0}, {tabl}, {D0}", f"s_and_b32 {D0}, {D0}, 15"] + rot7(S_ROT, S_D0)
    for k in range(7):
        out += [f"s_bfe_u32 {D0}, s{S_ROT}, {0x40000 + 4*k}", f"s_lshl_b32 s{S_WOOFF+k}, {D0}, 7"]
    out += [f"s_mul_i32 s{S_OUTB}, s4, 344064", f"s_mul_i32 {D0}, s3, 896", f"s_add_u32 s{S_OUTB}, s{S_OUTB}, {D0}",
            f"s_mul_i32 {D0}, s{S_W}, {3*28672}", f"s_add_u32 s{S_OUTB}, s{S_OUTB}, {D0}",
            f"s_lshl_b32 s{S_SB}, s5, 14", f"s_and_b32 {D0}, s5, 2", f"s_lshl_b32 {D0}, {D0}, 10", f"s_add_u32 s{S_SB}, s{S_SB}, {D0}"]
    return kv, ini, att, out

def qacc(t, q):
    return ((t >> 1) * 3 + q) * 8 + (t & 1) * 4
def sreg(j, kt, q):
    return (V_SALT if (j == 0 and kt == 0) else V_S + 12 * kt) + q * 4
def preg(j, q):
    return V_P + (j & 1) * 12 + q * 4
def lreg(j):
    return V_L + (j & 1) * 4
def oreg(t, q):
    return ("v", V_OV + (t * 3 + q) * 4) if t < 4 else ("a", (t * 3 + q) * 4)
def oacc(ch, nt, q):
    return (96 if ch % 2 == 0 else 144) + (q * 4 + nt) * 4

def softmax_items(j, kt, tmp, qorder=(0, 1, 2)):
    out, pend = [], None
    for q in qorder:
        for hf in range(2):
            e = V_E + 2 * (tmp[0] % 4)
            tmp[0] += 1
            out.append(Ins(f"v_exp_f32 v{e}, v{sreg(j,kt,q)+2*hf}", 2, meta=q))
            if pend:
                out.append(pend)
            out.append(Ins(f"v_exp_f32 v{e+1}, v{sreg(j,kt,q)+2*hf+1}", 2, meta=q))
            pend = Ins(f"v_cvt_pk_bf16_f32 v{preg(j,q)+2*kt+hf}, v{e}, v{e+1}", 1, meta=q)
    return out, pend

def ones_mfma(j):
    o = []
    for q in range(3):
        cin = vr(lreg(j), 4) if q else (vr(lreg(j - 1), 4) if j else "0")
        o.append(f"{MF} {vr(lreg(j),4)}, {ar(A_ONE+4*q,4)}, {vr(preg(j,q),4)}, {cin}")
    return o

def rare_path(j):
    D, F, T = (138, None, 141) if j == 0 else (228, 231, 234)
    o = ["s_nop 7", "s_nop 7"]
    for q in range(3):
        a, b = sreg(j, 0, q), sreg(j, 1, q)
        o += [f"v_max3_f32 v{D+q}, v{a}, v{a+1}, v{a+2}", f"v_max3_f32 v{D+q}, v{D+q}, v{a+3}, v{b}",
              f"v_max3_f32 v{D+q}, v{D+q}, v{b+1}, v{b+2}", f"v_max_f32 v{D+q}, v{D+q}, v{b+3}"]
    for op in ("v_permlane32_swap_b32", "v_permlane16_swap_b32"):
        o += [f"v_mov_b32 v{T+q}, v{D+q}" for q in range(3)] + ["s_nop 1"]
        o += [f"{op} v{T+q}, v{D+q}" for q in range(3)]
        o += [f"v_max_f32 v{D+q}, v{D+q}, v{T+q}" for q in range(3)]
    if j:
        o += [f"v_max_f32 v{D+q}, 0, v{D+q}" for q in range(3)]
        o += [f"v_exp_f32 v{F+q}, -v{D+q}" for q in range(3)]
    for q in range(3):
        tgt = [V_NEGM + 4 * q, sreg(j, 0, q), sreg(j, 1, q)] + ([sreg(1, 0, q)] if j == 0 else [])
        for a in tgt:
            o += [f"v_sub_f32 v{a+r}, v{a+r}, v{D+q}" for r in range(4)]
        if j:
            o += [f"v_mul_f32 v{lreg(j-1)+q}, v{lreg(j-1)+q}, v{F+q}"]
    tmp = [0]
    for kt in range(2):
        it, pend = softmax_items(j, kt, tmp)
        o += [x.text for x in it] + ["s_nop 0", pend.text]
    if j:
        for t in range(16):
            for q in range(3):
                f, a = oreg(t, q)
                if f == "v":
                    o += [f"v_mul_f32 v{a+r}, v{a+r}, v{F+q}" for r in range(4)]
                else:
                    o += [f"v_accvgpr_read_b32 v{T+r}, a{a+r}" for r in range(4)]
                    o += [f"v_mul_f32 v{T+r}, v{T+r}, v{F+q}" for r in range(4)]
                    o += [f"v_accvgpr_write_b32 a{a+r}, v{T+r}" for r in range(4)]
    o += ["s_nop 1"] + ones_mfma(j) + ["s_nop 7", "s_nop 7"]
    return check_hazards(o, fix=True)[0]

def order(mode):
    if mode == "A3":
        return [(f, q if f % 2 == 0 else 2 - q) for f in range(16) for q in range(3)]
    out = []
    for b in range(4):
        for qi in range(3):
            q = qi if b % 2 == 0 else 2 - qi
            rng = range(4) if qi % 2 == 0 else range(3, -1, -1)
            out += [(4 * b + i, q) for i in rng]
    return out

def build_main(c):
    steps = steps_list(c)
    NS = len(steps)
    idx = {s: n for n, s in enumerate(steps)}
    tl = Timeline()
    G, USE, LAST, ONES, FIN = {}, {}, {}, {}, {}
    fb = lambda F: A_FR + 4 * (F % c.NF)
    def mode(n):
        ty, k = steps[n]
        return "CH" if c.chain and (ty in "UK" or (ty == "O" and k >= 2)) else "A3"
    def ki(n, f):
        return (f & 3, f >> 2) if (mode(n) == "CH" or steps[n][0] == "U") else (f >> 2, f & 3)
    started = set()
    for n, (ty, k) in enumerate(steps):
        for m, (f, q) in enumerate(order(mode(n))):
            F = 16 * n + f
            if ty == "W":
                key, d, b, c0 = ("Q", f, q), vr(qacc(f, q), 4), ar((k * 3 + q) * 4, 4), "0"
            elif ty == "U":
                i, nt = ki(n, f)
                t = 4 * (k & 3) + nt
                key, d, b, c0 = ("Q", t, q), vr(qacc(t, q), 4), ar(((4 * (k >> 2) + c.nW + i) * 3 + q) * 4, 4), "0"
            elif ty == "K":
                kt, s = f >> 3, f & 7
                key, d, b, c0 = ("S", k, kt, q), vr(sreg(k, kt, q), 4), vr((s * 3 + q) * 4, 4), vr(V_NEGM + 4 * q, 4)
            elif ty == "V":
                fl, a = oreg(f, q)
                key, d, b, c0 = ("O", f, q), vr(a, 4, fl), vr(preg(k, q), 4), "0"
            else:
                i, nt = ki(n, f)
                s = (k & 1) * 4 + i
                key, d, b, c0 = ("P", k >> 1, nt, q), vr(oacc(k >> 1, nt, q), 4), vr((s * 3 + q) * 4, 4), "0"
            i_m = tl.add_mfma(f"{MF} {d}, {ar(fb(F),4)}, {b}, {d if key in started else c0}")
            started.add(key)
            FIN[key] = i_m
            if m % 3 == 0:
                G[16 * n + m // 3] = i_m
            USE.setdefault(F, i_m)
            LAST[F] = i_m
            if ty == "O":
                USE.setdefault(("B", s), i_m)
            if (ty, k) == ("K", 0):
                USE.setdefault(("QB", s), i_m)
            jn = None
            if ty == "V" and k < 15 and m == 3 * c.ones_at + 2:
                jn = k + 1
            if (ty, k) == ("K", 1) and m == 11:
                jn = 0
            if jn is not None:
                for t in ones_mfma(jn):
                    ONES[jn] = tl.add_mfma(t)
    NM = len(tl.mf)
    beg = lambda n: G[16 * n]
    end = lambda n: (G[16 * (n + 1)] - 1) if n + 1 < NS else NM - 1
    at = lambda x: min(NM - 1, beg(int(x)) + int((x - int(x)) * (end(int(x)) - beg(int(x)) + 1)))
    nK0, nV15, nO0 = idx[("K", 0)], idx[("V", 15)], idx[("O", 0)]

    bsteps = [n for n in range(0, nK0, c.bar_q)]
    if c.bar_q == 2:
        bsteps = [0] + list(range(1, nK0, 2))
    bsteps += [nK0] + list(range(nK0 + c.bar_a, nV15, c.bar_a))
    bsteps += list(range(nV15, NS - 1, c.bar_o))
    bsteps = sorted(set(bsteps))
    bgap = {n: G[16 * (n + 1) - c.D] for n in bsteps}
    covers = {n: list(range(n + 1, (bsteps[i + 1] if i + 1 < len(bsteps) else NS - 1) + 1)) for i, n in enumerate(bsteps)}
    def freed(m):
        later = [n for n in bsteps if n >= m + 1]
        return bgap[later[0]] + 1 if later else NM

    xreg = lambda kc: [16, 13, 10][kc % c.nx] * BLK
    x_read = c.x_read
    def xfreed(kc):
        g = at(x_read[kc]) + 20 + 3 * (c.D + 2)
        return min(bgap[n] for n in bsteps if bgap[n] >= g) + 1
    xslots = {5: (5,), 6: (4, 5), 7: (4,), 8: (6,)} if c.nx == 3 else {6: (5,), 7: (5,), 8: (6,)}
    free_at = {s: max([-1] + [xfreed(kc) for kc in xslots.get(s, ())]) for s in range(9)}
    pro = [(t[0], int(t[1:]), p) for t in c.pro_order.split() for p in range(6 if t[0] == "X" else 4)]
    pro_s = [int(t[1:]) for t in c.pro_order.split() if t[0] == "S"]
    units = []
    def add(kind, i, x, pieces, step=4):
        units.append([at(x), step, kind, i, list(pieces)])
    rest = {}
    for kind, i, p in pro[c.pro_n:]:
        rest.setdefault((kind, i), []).append(p)
    for (kind, i), ps in rest.items():
        add(kind, i, 0.0, ps, 3)
    for m in range(max(pro_s) + 1, 14):
        add("S", m, max(0.03, m - c.w_la), range(4), 3)
    for kc, x in c.x_issue.items():
        add("X", kc, x, range(6), 3)
        if kc > c.nx:
            units[-1][0] = max(units[-1][0], at(x_read[kc - c.nx]) + 20 + 3 * (c.D + 2))
    staged = {m: r for x, m, r in c.staged}
    for x, m, r in c.staged:
        ks = (r + 15) // 12
        assert r + 16 <= 192 and (r >= 168 or x >= (ks + 1 if ks < c.nW else c.nW + 4 * ((ks - c.nW) // 4 + 1)))
        assert r + 16 <= 48 or m < 14 + len(c.kv_early)
        add("G", m, x, range(4), c.kv_step)
    for m, x in zip(range(14, 14 + len(c.kv_early)), c.kv_early):
        add("S", m, x, range(4), 6 if m in staged else c.kv_step)
    m0 = 14 + len(c.kv_early)
    knots = [(m0, 14.0)] + ([c.kv_knee] if c.kv_knee else []) + [(46, c.kv_last + 1)]
    for (ma, xa), (mb, xb) in zip(knots, knots[1:]):
        w = (xb - xa) / len([m for m in range(ma, mb) if m not in staged])
        x = xa
        for m in range(ma, mb):
            if m in staged:
                add("S", m, x + 0.01, range(4), 6)
            else:
                add("S", m, x, range(4), int(w * 12))
                x += w
    x = c.kv_last + 1
    for m in range(46, 60):
        x = c.wo_at[m - 46] if c.wo_at else max(x, m - c.wo_la)
        add("S", m, x, range(4), 3)
        x += c.wo_rate if x < 45 else c.wo_rate2
    units.sort(key=lambda u: u[0])
    slot_of, slot_lo = {}, {}
    def alloc(m):
        if m < 14:
            pool = list(range(c.w_la + 2))
        elif 13 not in slot_of:
            pool = list(range(c.w_la + 2, 9))
        else:
            pool = list(range(9))
        s = min(pool, key=lambda s: (free_at[s], s))
        slot_of[m], slot_lo[m] = s, free_at[s]
        free_at[s] = freed(m)
    for m in pro_s:
        alloc(m)
    for u in units:
        if u[2] == "S" and u[3] not in slot_of:
            alloc(u[3])
            u[0] = max(u[0], slot_lo[u[3]])
    units.sort(key=lambda u: u[0])

    def soff(reg, fixed, off):
        return Ins(f"s_add_u32 s{S_T0}, s{reg}, {off}" if c.rot else f"s_mov_b32 s{S_T0}, {fixed + off}")
    def dma(kind, i, p):
        if kind == "X":
            return [Ins(f"s_add_u32 m0, s{S_LDSX}, {xreg(i) + 1024*p}"), soff(S_XOFF + i, 128 * i, 7168 * p),
                    Ins(f"buffer_load_dwordx4 v{V_DX}, {sq(S_X)}, s{S_T0} offen {c.pol_x} lds", 1, "vm", ("X", i))]
        ty, k = steps[i]
        if kind == "G":
            o = [Ins(f"s_mov_b32 s{S_T1}, {k*16384}")] if p == 0 else []
            off = f" offset:{512*p}" if p else ""
            return o + [Ins(f"buffer_load_dwordx4 {ar(staged[i]+4*p,4)}, v{V_DKV}, {sq(S_K if ty == 'K' else S_V)}, s{S_T1} offen{off} {c.pol_kv}", 1, "vm", ("G", i))]
        base = slot_of[i] * SLOT
        if i in staged:
            sw = V_SW if i >= 14 + len(c.kv_early) else V_SWQ
            o = [Ins("", 1, "waitv", {("G", i)}), Ins(f"s_add_u32 s{S_T0}, s{S_LDSW}, {base}"), Ins(f"v_add_u32 v{sw}, s{S_T0}, v{V_ST}")] if p == 0 else []
            return o + [Ins(f"ds_write_b128 v{sw}, {ar(staged[i]+4*p,4)} offset:{1056*p}", 1, "ds", ("SW", i))]
        if ty in "WU":
            pos, off, v = (k >> 1, ((k & 1) * 32 + p) * 8192, V_DWQ) if ty == "W" else (c.nW // 2 + 2 * (k >> 2), p * 8192 + (k & 3) * 128, V_DWU)
            return [Ins(f"s_add_u32 m0, s{S_LDSW}, {base + WPOS[p]}"), soff(S_WQOFF + pos, pos << 19, off),
                    Ins(f"buffer_load_dwordx4 v{v}, {sq(S_WQ)}, s{S_T0} offen {c.pol_wq} lds", 1, "vm", ("S", i))]
        o = []
        if ty in "KV":
            g, sr, v, pol = 512 * p, (S_K if ty == "K" else S_V), V_DKV, c.pol_kv
            if p == 0:
                o.append(Ins(f"s_mov_b32 s{S_T1}, {k*16384}"))
        else:
            g, sr, v, pol = 896 * p, S_WO, V_DWO, c.pol_wo
            if p == 0:
                o.append(Ins(f"s_add_u32 s{S_T1}, s{S_WOOFF+(k>>1)}, {(k&1)*128*896}"))
        o.append(Ins(f"s_add_u32 m0, s{S_LDSW}, {base + 1056*p - g}"))
        off = f" offset:{g}" if g else ""
        o.append(Ins(f"buffer_load_dwordx4 v{v}, {sq(sr)}, s{S_T1} offen{off} {pol} lds", 1, "vm", ("S", i)))
        return o

    def reads(F):
        n, f = F // 16, F % 16
        ty, k = steps[n]
        s, r = slot_of[n], fb(F)
        win, base = s // 3, (s % 3) * SLOT
        if ty == "K":
            return [Ins(f"ds_read_b128 {ar(r,4)}, v{V_RK+win} offset:{base + (f>>3)*BLK + (f&7)*64}", 1, "ds", F)]
        if ty == "V":
            v, o0, dd = V_RT + win, base + f * 32, BLK
        elif ty == "W":
            v, o0, dd = V_RW + win, base + (f >> 1) * 64 + (f & 1) * 8, BLK
        else:
            i, nt = ki(n, f)
            o0, dd = (i >> 1) * BLK + (i & 1) * 512, 256
            if ty == "U":
                v, o0 = V_RU + win, o0 + base + (nt >> 1) * 64 + (nt & 1) * 8
            else:
                v, o0 = V_RO + win, o0 + base + nt * 32
        assert o0 + dd < 65536
        return [Ins(f"ds_read_b64_tr_b16 {ar(r,2)}, v{v} offset:{o0}", 1, "ds", F),
                Ins(f"ds_read_b64_tr_b16 {ar(r+2,2)}, v{v} offset:{o0+dd}", 1, "ds", F)]
    def xreads(kc):
        return [Ins(f"ds_read_b128 {ar(((2*kc+s)*3+q)*4,4)}, v{V_RX+s} offset:{xreg(kc) - 10*BLK + q*2048}", 1, "ds", ("X", kc))
                for s in range(2) for q in range(3)]

    P = lambda t: tl.put(-1, Ins(t) if isinstance(t, str) else t)
    PS = lambda k: [P(t) for t in stamp(k)] if c.pstamps else None
    for t in prologue1(c):
        P(t)
    PS(1)
    for e in pro[:c.pro_first]:
        for x in dma(*e):
            P(x)
    PS(2)
    for t in prologue2(c):
        P(t)
    PS(3)
    for e in pro[c.pro_first:c.pro_hop]:
        for x in dma(*e):
            P(x)
    if c.pads:
        for t in ["s_mov_b64 exec, 0"] + [x for w in range(3) for x in (f"s_cmp_eq_u32 s{S_W}, {w}", f"s_cbranch_scc1 L_pad{w}")] + \
                 ["s_branch L_pad3", ".p2align 12", "L_main:", "s_mov_b64 exec, -1"]:
            P(t)
    for e in pro[c.pro_hop:c.pro_n]:
        for x in dma(*e):
            P(x)
    PS(4)
    P(Ins("", 1, "waitv", {("X", 0), ("S", 0)}))
    P("s_waitcnt lgkmcnt(0)")
    PS(5)
    P("s_barrier")
    PS(6)
    for x in xreads(0):
        P(x)
    for F in range(c.D):
        for x in reads(F):
            P(x)
    P(Ins("", 1, "waitl", {0, ("X", 0)}))

    NFR = 16 * NS
    for F in range(c.D, NFR):
        g = G[F - c.D]
        assert F < c.NF or LAST[F - c.NF] <= g
        for k, x in enumerate(reads(F)):
            tl.put(g + k, x)
    hasread = lambda g: bool(tl.gaps[g].mem)
    def lead_before(ins, g, span=3):
        for i in range(g, g - span, -1):
            if i >= 0 and hasread(i) and not tl.gaps[i].lead:
                tl.gaps[i].lead.append(ins)
                return i
        return tl.back(ins, g, max(0, g - span))
    for n in bsteps:
        tl.gaps[bgap[n]].lead.append(Ins("s_barrier"))
        need = {("S", m) for m in covers[n]}
        if n == max(b for b in bsteps if b < nK0):
            need.add("dum")
        lead_before(Ins("", 1, "waitv", need), bgap[n] - 1)
    for kc, r in x_read.items():
        g = lead_before(Ins("", 1, "waitv", {("X", kc)}), at(r) + 1)
        tl.chain(xreads(kc), g + 1, at(r) + 20)
    F = 1
    while F < NFR:
        grp = [F]
        if mode(F // 16) == "CH" and F % 4 == 1:
            grp = [F, F + 1, F + 2]
        need = set(grp)
        ty, k = steps[F // 16]
        if F % 16 == 0 and ((ty == "U" and k % 4 == 0) or (ty == "W" and k % 2 == 0)):
            need |= {("X", k // 2)} if ty == "W" else {("X", c.nW // 2 + k // 2), ("X", c.nW // 2 + k // 2 + 1)}
            tl.back(Ins("", 1, "waitl", need), USE[F] - 1, USE[F] - 1)
        else:
            lead_before(Ins("", 1, "waitl", need), min(USE[x] for x in grp) - 1)
        F += len(grp)

    pieces, last_t = [], {}
    for seq, (g0, step, kind, i, ps) in enumerate(units):
        stream = "sw" if (kind == "S" and i in staged) else "kv" if (kind == "G" or (kind == "S" and i >= 14)) else "w"
        for n_p, p in enumerate(ps):
            tgt = max(g0 + n_p * step, last_t.get(stream, -1))
            last_t[stream] = tgt
            pieces.append((tgt, seq, n_p, kind, i, p))
    pieces.sort()
    state = dict(prev=-1, k=0)
    margin = {}
    def place_units(upto, back, slack):
        while state["k"] < len(pieces) and pieces[state["k"]][0] < upto:
            tgt, _, _, kind, i, p = pieces[state["k"]]
            state["k"] += 1
            ins = dma(kind, i, p)
            prev = state["prev"]
            lo = max(tgt - back, prev + (c.wo_gap if kind == 'S' and i >= 48 else 3), prev + len(ins))
            if kind == "S":
                lo = max(lo, slot_lo[i] + len(ins) - 1)
            g = lo
            while tl.gaps[g].seq() and g < lo + slack:
                g += 1
            if tl.gaps[g].seq():
                g = min(range(lo, lo + slack), key=lambda k: (tl.gaps[k].added(ins[-1], 1), k))
            tl.gaps[g].mem.append(ins[-1])
            if ins[:-1]:
                tl.chain(ins[:-1], max(prev + 1, g - 6), g - 1)
            state["prev"] = g
            if kind == "G" or (kind == "S" and i >= 14):
                state.setdefault("kv0", g)
            if kind == "S" and i > 0:
                margin[i] = round((min(bgap[n] for n in bsteps if i in covers[n]) - g) / 49.5, 1)
    place_units(beg(nK0), 0, 8)

    kv, ini, att, out = deferred(c)
    L = lambda ts: [Ins(t) for t in ts]
    init = Ins(f"buffer_store_dwordx2 {vr(V_DUM,2)}, v{V_INI}, {sq(S_ALL)}, s{S_T2} offen sc1", 1, "vm", "reset")
    pre = []
    if "k" in c.tlb:
        pre += [f"s_lshl_b32 s{S_D0}, s4, 4", f"s_add_u32 s{S_D0}, s{S_D0}, s5", f"s_lshl_b32 s{S_D0}, s{S_D0}, 18",
                f"s_buffer_load_dword s{S_PEND+1}, {sq(S_K)}, s{S_D0}", f"s_buffer_load_dword s{S_PEND+1}, {sq(S_V)}, s{S_D0}"]
    if "o" in c.tlb:
        pre += [f"s_mul_i32 s{S_D0}, s5, 229376", f"s_buffer_load_dword s{S_PEND+1}, {sq(S_WO)}, s{S_D0}"]
    post = [f"s_buffer_load_dword s{S_PEND+1}, {sq(S_ALL)}, s{S_FLR} offset:0x3f000"] if "w" in c.tlb else []
    ps = tl.chain(L(pre + ini + post) + [init], 0, at(c.race_at) - 62)
    ps = tl.chain(L(kv), ps[-1][0] + 1, state["kv0"] - 2)
    if c.touch_wo:
        it = [f"s_lshl_b32 s{S_D0}, s5, 4", f"s_add_u32 s{S_D0}, s{S_D0}, s{S_W}", f"s_mul_i32 s{S_D0}, s{S_D0}, {16*896}",
              f"s_min_u32 s{S_D1}, s4, 6", f"s_lshl_b32 s{S_D1}, s{S_D1}, 7", f"s_add_u32 s{S_D0}, s{S_D0}, s{S_D1}",
              f"v_min_u32 v{VA}, 1, v{VG}", f"v_lshlrev_b32 v{VA}, 28, v{VA}", f"v_mul_u32_u24 v{VB}, 896, v{VL}",
              f"v_add3_u32 v238, v{VA}, v{VB}, s{S_D0}"]
        ps = tl.chain(L(it), ps[-1][0] + 1, at(c.touch_wo[0]) - 1)
        for k, x in enumerate(c.touch_wo):
            tl.chain([Ins(f"s_mov_b32 s{S_ST1}, {k*64*896}"),
                      Ins(f"buffer_load_dword v239, v238, {sq(S_WO)}, s{S_ST1} offen", 1, "vm", "dum")], at(x), at(x) + 12)
    ini_end = ps[-1][0]
    def fill(ts, g):
        sec = 0
        for t in ts:
            ins = t if isinstance(t, Ins) else Ins(t)
            while True:
                gp = tl.gaps[g]
                if gp.mem and cls(gp.mem[0]) == "d":
                    k = gp.section(ins, sec)
                    if gp.added(ins, k) <= 0:
                        break
                g, sec = g + 1, 0
            gp.add(ins, k)
            sec = 2
        return g
    A, Tt = f"s{S_ACC}", f"s{S_TOT}"
    g = fill([Ins("", 1, "waitv", {"reset"}), f"s_mov_b32 {Tt}, 0", f"s_mov_b64 s[{S_RA}:{S_RB}], 0", f"s_mov_b32 {A}, 0"], at(c.race_at))
    reset_seen = g
    for i in range(c.races):
        off = (i + 1) * (0x4000 + 256) + ((i + 1) & 1) * 4096
        ld = [f"s_buffer_load_dword s{S_RA}, {sq(S_ALL)}, s{S_PRB} offset:{off}",
              f"s_buffer_load_dword s{S_RB}, {sq(S_ALL)}, s{S_PRB} offset:{off+8192}"]
        sm = [f"s_add_u32 {A}, {A}, s{S_RA}", f"s_sub_u32 {A}, {A}, s{S_RB}"]
        first = (i + i // 2) % 2
        g0 = fill(ld[::-1 if first else 1], g + 1)
        g = g0 + c.race_skip
        while g < g0 + c.race_len:
            g = max(fill(sm[::-1 if first else 1], g) + 1, g + c.race_step)
        if c.stamps:
            tl.put(g, Ins(f"v_writelane_b32 v{V_STAMP}, {A}, {50+i}"), 2)
            g += 1
        g = fill([f"s_min_i32 {A}, {A}, {c.race_clamp}", f"s_max_i32 {A}, {A}, {-c.race_clamp}", f"s_add_u32 {Tt}, {Tt}, {A}",
                  f"s_mov_b32 {A}, 0", f"s_mov_b64 s[{S_RA}:{S_RB}], 0"], g)
    fin = [f"s_lshr_b32 {A}, {Tt}, 31", f"s_mul_i32 {A}, {A}, 3", f"s_add_u32 {A}, {A}, 4"]
    if c.force is not None:
        fin += [f"s_mov_b32 {A}, {4 + c.force}"]
    g = fill(fin, g + 1)
    g = max(g, min(b for b in bgap.values() if b > reset_seen))
    pub_at = tl.chain([Ins(f"v_mov_b32 v{V_PUB}, {A}"),
                       Ins(f"buffer_store_dword v{V_PUB}, v{V_FLW}, {sq(S_DBG)}, s{S_LEAD} offen sc1", 1, "vm", "cnt")], g + 1, g + 30)[-1][0]
    ps = tl.chain(L(att + out), ini_end + 1, beg(10))
    defer_end = ps[-1][0]

    cur = 0
    for s in range(8):
        it = []
        for q in sorted(range(3), key=lambda q: FIN[("Q", 2 * s + 1, q)]):
            src, dst = (s * 3 + q) * 8, (s * 3 + q) * 4
            rdy = FIN[("Q", 2 * s + 1, q)] + 4
            it += [(Ins(f"v_mul_f32 v{src+r}, s{S_C}, v{src+r}"), FIN[("Q", 2 * s + (r >> 2), q)] + 4) for r in range(8)]
            if s:
                it += [(Ins(f"v_cvt_pk_bf16_f32 v{dst+r}, v{src+2*r}, v{src+2*r+1}"), rdy) for r in range(4)]
        if s == 0:
            for q in range(3):
                it += [Ins(f"v_cvt_pk_bf16_f32 v{q*4+r}, v{q*8+2*r}, v{q*8+2*r+1}") for r in range(4)]
        lo = max(cur, it[0][1])
        hi = min(USE[("QB", s)] - 2, max(FIN[("Q", 2 * s + 1, q)] for q in range(3)) + 26)
        cur = tl.chain(it, lo, hi)[-1][0]
    q_done = cur

    tmp = [0]
    prev_branch = 0
    for j in range(16):
        it, pend = [], None
        for kt in range(2):
            qo = sorted(range(3), key=lambda q: FIN[("S", j, kt, q)])
            items, p = softmax_items(j, kt, tmp, qo)
            xs = [(x, FIN[("S", j, kt, x.meta)] + 5) for x in items]
            if pend:
                xs.insert(1, (pend, 0))
            it += xs
            pend = p
        lo = max(it[0][1], prev_branch + 1, q_done + 1)
        ps = tl.chain(it, lo, ONES[j] - 6)
        tl.chain([pend], ps[-1][0] + 1, ONES[j] - 5)
        l = lreg(j)
        br = (G[16 * idx[("K", 1)] + 8] - 1) if j == 0 else end(idx[("V", j - 1)])
        chk = [Ins(f"v_max3_f32 v{V_CHK}, v{l}, v{l+1}, v{l+2}"), Ins(f"v_cmp_nge_f32 vcc, s{S_TH}, v{V_CHK}")]
        if j == 0:
            chk = [Ins(f"v_min3_f32 v{V_CHK+1}, v{l}, v{l+1}, v{l+2}"), Ins(f"v_cmp_nle_f32 s[{S_RET}:{S_RET+1}], s{S_TL}, v{V_CHK+1}")] + chk
            chk += [Ins(f"s_or_b64 vcc, vcc, s[{S_RET}:{S_RET+1}]")]
        tl.chain(chk, ONES[j] + 5, br - 1)
        g = tl.gaps[br]
        sec = g.lead if not g.lead else g.rest
        sec += [Ins(f"s_cbranch_vccnz L_stub{j}"), Ins(f"L_back{j}:", 0)]
        prev_branch = br

    place_units(beg(nV15), c.back, c.slack)
    place_units(NM, 0, 8)

    nK14 = idx[("K", 15)]
    assert pub_at + 150 < beg(nK14 - 4)
    tl.chain([Ins(f"buffer_load_dword v{V_PUB}, off, {sq(S_DBG)}, s{S_GRP} sc1", 1, "vm", "dbg")], beg(nK14 - 4), beg(nK14 - 4) + 30)
    ps = tl.chain([Ins("", 1, "waitv", {"dbg"}), Ins(f"v_cmp_gt_u32 vcc, 1, v{V_PUB}")], beg(nK14), beg(nK14) + 9)
    gi = ps[-1][0] + 2
    g = tl.gaps[gi]
    (g.lead if not g.lead else g.rest).extend([Ins("s_cbranch_vccnz L_dbgspin"), Ins("L_dbgback:", 0)])
    D0, M = f"s{S_D0}", f"s{S_D1}"
    ps = tl.chain([Ins(f"v_readfirstlane_b32 {M}, v{V_PUB}")], gi + 1, gi + 6)
    fix = [f"s_mul_i32 {D0}, s99, 3", f"s_xor_b32 {M}, {M}, {D0}",
           f"s_and_b32 {D0}, {M}, 2", f"s_lshl_b32 {D0}, {D0}, 12", f"s_add_u32 s{S_PG+1}, s{S_PG}, {D0}",
           f"s_and_b32 {D0}, {M}, 1", f"s_lshl_b32 {D0}, {D0}, 13", f"s_add_u32 s{S_PG}, s{S_PG}, {D0}", f"s_add_u32 s{S_FLR}, s{S_FLR}, {D0}",
           f"s_add_u32 s{S_SB+1}, s{S_SB}, s{S_PG+1}", f"s_add_u32 s{S_SB}, s{S_SB}, s{S_PG}", f"s_sub_u32 s{S_PG+1}, s{S_PG+1}, s{S_PG}"]
    tl.chain(L(fix), ps[-1][0] + 1, beg(nV15))

    tl.chain([Ins(f"v_rcp_f32 v{V_RINV+q}, v{lreg(15)+q}", 2) for q in range(3)], beg(nV15), beg(nV15) + 9)
    cur, rot = beg(nV15), 0
    for s in range(8):
        it = []
        for tp in range(2):
            for q in sorted(range(3), key=lambda q: FIN[("O", 2 * s + tp, q)]):
                fl, a = oreg(2 * s + tp, q)
                rdy = FIN[("O", 2 * s + tp, q)] + 4
                if fl == "a":
                    T = 216 + 4 * (rot % 2)
                    rot += 1
                    it += [(Ins(f"v_accvgpr_read_b32 v{T+r}, a{a+r}"), rdy) for r in range(4)]
                    a = T
                it += [(Ins(f"v_cvt_pk_bf16_f32 v{(s*3+q)*4+2*tp+h}, v{a+2*h}, v{a+2*h+1}"), rdy) for h in range(2)]
        lo = max(cur, it[0][1])
        dead = USE[("B", s)] - 2
        left = sum(12 if x < 2 else 36 for x in range(s, 8))
        share = lo + int((USE[("B", 7)] - 2 - lo) * (12 if s < 2 else 36) / left) + 1
        cur = tl.chain(it, lo, max(min(dead, share), min(dead, it[-1][1] + 2)))[-1][0]

    def chunk_out(ch):
        pcs = sorted(range(6), key=lambda pc: FIN[("P", ch, 2 * (pc & 1) + 1, pc >> 1)])
        it = [(Ins(f"s_add_u32 s{S_ST0}, s{S_SB+(ch&1)}, {ch << 18}"), 0), (Ins(f"s_add_u32 s{S_ST1}, s{S_SB+(ch&1)}, {(ch << 18) + 4096}"), 0)]
        held = []
        for n_p, pc in enumerate(pcs):
            q, p = pc >> 1, pc & 1
            a, T = oacc(ch, 2 * p, q), 192 + 4 * pc
            rdy = FIN[("P", ch, 2 * p + 1, q)] + 4
            v = [(Ins(f"v_mul_f32 v{a+r}, v{a+r}, v{V_RINV+q}"), FIN[("P", ch, 2 * p + (r >> 2), q)] + 4) for r in range(8)]
            v += [(Ins(f"v_cvt_pk_bf16_f32 v{T+r}, v{a+2*r}, v{a+2*r+1}"), rdy) for r in range(4)]
            if n_p % c.st_group == c.st_group - 1:
                for k, x in enumerate(held):
                    v.insert(len(v) - 2 * (len(held) - k), x)
                held = []
            it += v
            st = (Ins(f"buffer_store_dwordx4 {vr(T,4)}, v{V_ST}, {sq(S_ALL)}, s{S_ST0 if pc < 4 else S_ST1} offen offset:{(pc&3)*1024} sc1", 1, "vm", ("st", ch)), rdy)
            if n_p % c.st_group == c.st_group - 1:
                it.append(st)
            else:
                held.append(st)
        return it
    tail = []
    st_last = {}
    for ch in range(7):
        it = chunk_out(ch)
        lo = max(cur + 1, it[2][1])
        if ch < 6:
            for k in range(6):
                x, e = it[2 + 13 * k]
                it[2 + 13 * k] = (x, max(e, lo + min(c.st_pace, (end(nO0 + 2 * ch + 3) - 36 - lo) // 5) * k))
            cur = tl.chain(it, lo, end(nO0 + 2 * ch + 3) - (26 if not c.st_pace else 22))[-1][0]
            st_last[ch] = cur
        else:
            early = it[:2 + 3 * 13]
            if c.chain:
                tl.chain(early, lo, NM - 1)
                tail = [x for x, _ in it[len(early):]]
            else:
                tail = [x for x, _ in it]

    sig = sorted(set(c.flags) | {6})
    assert len(sig) <= 6
    LASTBIT = 1 << (5 * sig.index(6))
    tab = sum(sig.index(min(x for x in sig if x >= ch)) << (4 * ch) for ch in range(7))
    VF2, VTK, VAT = 233, 234, 235
    PRG, T0, T1, T2, CNT = f"s{S_SPIN}", f"s{S_ACC}", f"s{S_D1}", f"s{S_T2}", f"s{S_D0}"
    claim = f"buffer_atomic_add v{VAT}, v{VF2}, {sq(S_ALL)}, s{S_FLR} offen sc0 sc1"
    read2 = [f"v_readlane_b32 {PRG}, v{VAT}, 0", f"v_readlane_b32 s{S_TKT}, v{VAT}, 1"]
    lanes2 = [f"v_lshrrev_b32 v{VTK}, 4, v{V_ST}", f"v_lshrrev_b32 v{VF2}, 5, v{V_ST}", f"v_min_u32 v{VF2}, 1, v{VF2}",
              f"v_lshlrev_b32 v{VF2}, 28, v{VF2}", f"v_lshl_add_u32 v{VF2}, v{VTK}, 2, v{VF2}", f"v_mov_b32 v{VAT}, v{VTK}"]
    def decode(b):
        dst = f"s{S_DST+b}"
        return [f"s_mul_i32 {T1}, s{S_TKT}, 43", f"s_lshr_b32 {T1}, {T1}, 8", f"s_mul_i32 {T0}, {T1}, 6", f"s_sub_u32 {T0}, s{S_TKT}, {T0}",
                f"s_and_b32 {T2}, {T1}, 1", f"s_mul_i32 {T2}, {T2}, s{S_PG+1}", f"s_add_u32 s{S_SRC}, s{S_PG}, {T2}", f"s_lshl_b32 {T2}, {T1}, 18",
                f"s_add_u32 s{S_SRC}, s{S_SRC}, {T2}", f"s_lshl_b32 {T2}, {T0}, 10", f"s_add_u32 s{S_SRC}, s{S_SRC}, {T2}",
                f"s_lshl_b32 {T1}, {T1}, 2", f"s_lshr_b32 {T2}, {tab}, {T1}", f"s_and_b32 {T2}, {T2}, 15", f"s_mul_i32 {T2}, {T2}, 5",
                f"s_lshl_b32 s{S_NEED}, 16, {T2}",
                f"s_lshr_b32 {T2}, s{S_ROT}, {T1}", f"s_and_b32 {T2}, {T2}, 15", f"s_lshl_b32 {T2}, {T2}, 7", f"s_add_u32 {dst}, s{S_OUTB}, {T2}",
                f"s_and_b32 {T2}, {T0}, 1", f"s_lshl_b32 {T2}, {T2}, 6", f"s_add_u32 {dst}, {dst}, {T2}",
                f"s_lshr_b32 {T2}, {T0}, 1", f"s_mul_i32 {T2}, {T2}, 28672", f"s_add_u32 {dst}, {dst}, {T2}"]
    def loads(b):
        o = []
        for h in range(16):
            o.append(f"buffer_load_dwordx4 {ar(64*b+4*h,4)}, v{V_ST}, {sq(S_ALL)}, s{S_SRC} offen sc1")
            if h < 15:
                o.append(f"s_add_u32 s{S_SRC}, s{S_SRC}, {16384 + 1024 * (((h + 1) & 2) - (h & 2))}")
        return o
    def flag(ch):
        return [Ins(f"v_mov_b32 v{V_FV}, {1 << (5 * sig.index(ch))}"),
                Ins(f"buffer_atomic_add v{V_FV}, v{V_FLW}, {sq(S_ALL)}, s{S_FLR} offen sc1", 1, "vm", ("fl", ch))]
    tail_flags = []
    for ch in c.flags:
        g = st_last[ch] + c.flag_delay
        if g + 10 < NM:
            tl.chain([Ins("", 1, "waitv", {("st", ch)})] + flag(ch), g, g + 20)
        else:
            tail_flags.append(ch)
    tail_loads = []
    if c.early is not None:
        tO = lambda t: at(nO0 + 2 * t)
        tl.chain(L(lanes2), tO(c.early - 0.6), tO(c.early) - 1)
        tl.chain([Ins(claim, 1, "vm", "claim")], tO(c.early), tO(c.early + 0.15))
        g = tO(c.early + c.early_wait)
        ps = tl.chain([Ins("", 1, "waitv", {"claim"})] + L(read2), g, g + 12)
        dec = decode(0)
        rdy = [f"s_andn2_b32 {T2}, s{S_NEED}, {PRG}", f"s_min_u32 {T2}, {T2}, 1", f"s_sub_u32 s{S_PEND}, 1, {T2}",
               f"s_lshl_b32 {T2}, {T2}, 28", f"s_add_u32 s{S_SRC}, s{S_SRC}, {T2}"]
        ps = tl.chain(L(dec[:16] + rdy + dec[16:]), ps[-1][0] + 1, ps[-1][0] + 60)
        cur = ps[20][0] - c.load_gap + 1
        ld = [Ins(t, 1, "vm", "R") if t.startswith("buffer") else Ins(t) for t in loads(0)]
        while ld:
            lo = cur + c.load_gap
            if lo >= NM - 3:
                tail_loads = ld
                break
            rng = range(lo, min(lo + 6, NM - 2))
            cur = min(rng, key=lambda k: (tl.gaps[k].added(ld[0], 1), k))
            tl.gaps[cur].mem.append(ld[0])
            if len(ld) > 1:
                tl.chain([ld[1]], cur + 1, min(cur + c.load_gap - 1, NM - 1))
            ld = ld[2:]

    if c.stamps:
        for k, n in enumerate(c.stamps):
            tl.gaps[beg(n)].lead[0:0] = [Ins(t) for t in stamp(k + 1 + 6 * c.pstamps)]
    lin = tl.linear()
    ns = len(c.stamps) + 1 + 6 * c.pstamps if c.stamps else 0
    ST = lambda k: [Ins(t) for t in stamp(ns + k)] if c.stamps else []

    I = lambda *ts: [Ins(t) for t in ts]
    lin += I("s_nop 7") + tail + I("s_waitcnt lgkmcnt(0)") + ST(0) + tail_loads
    for ch in tail_flags:
        lin += [Ins("", 1, "waitv", {("st", ch)})] + flag(ch)
    SEL, ACC = 0, 24
    lin += I(f"v_bfe_u32 v16, v{V_ST}, 4, 4", f"v_lshrrev_b32 v17, 8, v{V_ST}",
             "v_and_b32 v18, 1, v16", "v_lshlrev_b32 v18, 4, v18", "v_mov_b32 v19, 0x3f80", "v_lshlrev_b32 v19, v18, v19",
             "v_lshrrev_b32 v18, 1, v16", "v_and_b32 v20, 2, v18", "v_sub_u32 v17, v17, v20",
             "v_and_b32 v18, 1, v18", "v_lshrrev_b32 v20, 3, v16", "v_lshl_add_u32 v18, v20, 1, v18",
             "v_lshl_add_u32 v18, v17, 2, v18")
    for r in range(8):
        lin += I(f"v_cmp_eq_u32 vcc, {r}, v18", "s_nop 1", f"v_cndmask_b32 v{SEL+r}, 0, v19, vcc")
    if c.early is None:
        lin += I(*lanes2) + I(f"s_mov_b32 s{S_PEND}, 0")
    else:
        lin += I(f"v_mov_b32 v{VAT}, s{S_PEND}")
    lin += I(f"s_mov_b32 {T0}, {LASTBIT}", f"v_writelane_b32 v{VAT}, {T0}, 0")
    lin += [Ins("", 1, "waitv", {("st", 6)}), Ins(claim, 1, "vm", ("fl", 6))] + ST(1)
    resolve_waits(lin)
    verify(lin, steps, slot_of, xslots, c.nx)
    texts = [x.text for x in lin]
    T = lambda xs: [x.text for x in xs]
    def reduce(b, wait):
        a, o = ACC + 16 * b, []
        for h in range(16):
            if wait:
                o += [f"s_waitcnt vmcnt({15-h})"]
            for e in range(2):
                d = vr(a + 4 * e, 4)
                o += [f"{MF} {d}, {vr(SEL+4*e,4)}, {ar(64*b+4*h,4)}, {d if h else 0}"]
        o += ["s_nop 6"] + [f"v_cvt_pk_bf16_f32 v{a+8+k}, v{a+2*k}, v{a+2*k+1}" for k in range(4)]
        return o + [f"buffer_store_dwordx4 {vr(a+8,4)}, v{V_OUT}, {sq(S_OUT)}, s{S_DST+b} offen {c.pol_out}"]
    texts += [f"s_mov_b32 {CNT}, 0", f"s_lshl_b32 s{S_PEND+1}, s{S_PEND}, 8", f"s_mov_b32 {T1}, s{S_TKT}", "s_waitcnt vmcnt(0)"] + read2 + \
             ["s_nop 0", f"s_add_u32 {PRG}, {PRG}, {LASTBIT}"]
    if c.early is not None:
        texts += [f"s_cmp_eq_u32 s{S_PEND}, 1", "s_cbranch_scc1 L_take1", f"s_mov_b32 s{S_TKT}, {T1}"]
    for b in range(2):
        y = 1 - b
        texts += [f"L_take{b}:", f"s_cmp_ge_u32 s{S_TKT}, 42", f"s_cbranch_scc1 L_last{y}"] + decode(b)
        texts += [f"s_andn2_b32 {T0}, s{S_NEED}, {PRG}", f"s_cbranch_scc0 L_go{b}",
                  f"s_cmp_eq_u32 s{S_PEND}, 0", f"s_cbranch_scc1 L_poll{b}"] + reduce(y, True) + [f"s_mov_b32 s{S_PEND}, 0"]
        texts += [f"L_poll{b}:"] + ([f"s_sleep {c.sleep}"] if c.sleep else []) + [
                  f"v_mov_b32 v{V_POLL}, 0", f"buffer_atomic_add v{V_POLL}, v{V_FLW}, {sq(S_ALL)}, s{S_FLR} offen sc0 sc1",
                  "s_waitcnt vmcnt(0)", f"v_readfirstlane_b32 {PRG}, v{V_POLL}", f"s_add_u32 {CNT}, {CNT}, 1",
                  f"s_cmp_ge_u32 {CNT}, {c.spin_max}", f"s_cselect_b32 {PRG}, -1, {PRG}",
                  f"s_andn2_b32 {T0}, s{S_NEED}, {PRG}", f"s_cbranch_scc1 L_poll{b}"]
        ld = loads(b)
        texts += [f"L_go{b}:", f"v_mov_b32 v{VAT}, v{VTK}"] + ld[:2 * c.claim_at] + [claim] + ld[2 * c.claim_at:]
        if c.stamps:
            texts += [f"s_add_u32 s{S_PEND+1}, s{S_PEND+1}, 1"]
        texts += [f"s_cmp_eq_u32 s{S_PEND}, 0", f"s_mov_b32 s{S_PEND}, 1", f"s_cbranch_scc1 L_got{b}", "s_waitcnt vmcnt(17)"] + reduce(y, False)
        texts += [f"s_waitcnt vmcnt({17 - c.claim_at})", f"s_branch L_rd{b}", f"L_got{b}:", f"s_waitcnt vmcnt({16 - c.claim_at})", f"L_rd{b}:"] + read2 + ["s_nop 1"]
        if b == 1:
            texts += ["s_branch L_take0"]
    for y in range(2):
        texts += [f"L_last{y}:", f"s_cmp_eq_u32 s{S_PEND}, 0", "s_cbranch_scc1 L_done"] + reduce(y, True)
        if y == 0:
            texts += ["s_branch L_done"]
    texts += ["L_done:"]
    if c.stamps:
        texts += [f"v_writelane_b32 v{V_STAMP}, s{S_PEND+1}, 62", f"v_writelane_b32 v{V_STAMP}, s{S_TOT}, 63"] + T(ST(2))
    if c.stamps:
        texts += stamp(ns + 3) + ["s_waitcnt vmcnt(0)"] + stamp(ns + 4)
        if c.diag is not None:
            lane = c.diag if c.diag >= 0 else ns + 5 + c.diag
            texts += ["s_nop 1", f"v_readlane_b32 s40, v{V_STAMP}, {lane}", f"v_readlane_b32 s41, v{V_STAMP}, 0", "s_nop 3",
                      "s_sub_u32 s40, s40, s41", "s_lshl_b32 s40, s40, 2", "s_add_u32 s40, s40, 10000",
                      "L_diag:", "s_sleep 1", "s_memrealtime s[42:43]", "s_waitcnt lgkmcnt(0)", "s_sub_u32 s42, s42, s41",
                      "s_cmp_lt_u32 s42, s40", "s_cbranch_scc1 L_diag"]
        texts += [
                  f"v_lshrrev_b32 v8, 2, v{V_ST}", "s_lshl_b32 s3, s2, 8", f"s_add_u32 s3, s3, {STAMP_AT}",
                  f"s_cmp_lg_u32 s{S_W}, 0", "s_cbranch_scc1 L_end", f"buffer_store_dword v{V_STAMP}, v8, {sq(S_ALL)}, s3 offen"]
    texts, probs = check_hazards(texts, fix=True)
    stats = dict(n=len(texts), nops=len(probs), cost=[tl.cost(beg(n), end(n)) for n in range(NS)], margin=[margin.get(m) for m in range(2, NS)],
                 defer=round(defer_end / 48, 2), stl=[round((st_last[k] - beg(nO0)) / 96, 2) for k in range(6)])
    texts += ["L_end:", "s_endpgm"]
    texts += ["L_dbgspin:", f"s_mov_b32 s{S_SPIN}, 0", "L_dspin:", f"buffer_load_dword v{V_PUB}, off, {sq(S_DBG)}, s{S_GRP} sc1",
              "s_waitcnt vmcnt(0)", f"v_cmp_gt_u32 vcc, 1, v{V_PUB}", f"s_add_u32 s{S_SPIN}, s{S_SPIN}, 1",
              f"s_cmp_ge_u32 s{S_SPIN}, {c.spin_max}", "s_cbranch_scc1 L_dbgback", "s_cbranch_vccnz L_dspin", "s_branch L_dbgback"]
    texts += ["L_stub0:"] + rare_path(0) + ["s_branch L_back0"]
    for j in range(1, 16):
        texts += [f"L_stub{j}:", f"s_call_b64 s[{S_RET}:{S_RET+1}], L_rare{j&1}", f"s_branch L_back{j}"]
    for par in range(2):
        texts += [f"L_rare{par}:"] + rare_path(par + 2) + [f"s_setpc_b64 s[{S_RET}:{S_RET+1}]"]
    return texts, stats, probs

def verify(lin, steps, slot_of, xslots, nx):
    pending, lq, vq = {}, [], []
    issued, landed, visible = {}, set(), set()
    last_epoch, epoch, in_slot, cnt = {}, 0, {}, {}
    def refill(m):
        s = slot_of[m]
        old = in_slot.get(s)
        if old is None:
            for kc in xslots.get(s, ()):
                assert cnt.get(("X", kc), 0) == 6 and last_epoch[("X", kc)] < epoch, ("slot under x", m)
        elif old != m:
            assert cnt.get(old, 0) == (16 if steps[old][0] == "K" else 32), ("slot reused early", m, old)
            assert last_epoch[old] < epoch, ("slot reuse without barrier", m, old)
        in_slot[s] = m
    for ins in lin:
        t = ins.text
        if ins.tag == "ds" and t.startswith("ds_write"):
            m = ins.meta[1]
            assert ("G", m) in landed and issued[("G", m)] == 4
            refill(m)
            lq.append(([], ins.meta))
        elif ins.tag == "vm":
            vq.append(ins.meta)
            issued[ins.meta] = issued.get(ins.meta, 0) + 1
            landed.discard(ins.meta)
            if isinstance(ins.meta, tuple) and ins.meta[0] == "X" and ins.meta[1] >= nx:
                assert cnt.get(("X", ins.meta[1] - nx), 0) == 6, ("x region reused early", ins.meta)
            if isinstance(ins.meta, tuple) and ins.meta[0] == "fl":
                assert ("st", ins.meta[1]) in landed and issued[("st", ins.meta[1])] == 6, ins.meta
            if isinstance(ins.meta, tuple) and ins.meta[0] == "S":
                refill(ins.meta[1])
        elif t.startswith("s_waitcnt"):
            mv = re.search(r"vmcnt\((\d+)\)", t)
            if mv:
                k = max(0, len(vq) - int(mv.group(1)))
                done, vq = vq[:k], vq[k:]
                landed |= {d for d in done if d not in vq}
            ml = re.search(r"lgkmcnt\((\d+)\)", t)
            if ml:
                k = max(0, len(lq) - int(ml.group(1)))
                done, lq = lq[:k], lq[k:]
                for rs, tok in done:
                    for r in rs:
                        pending.pop(r, None)
                    key = tok // 16 if isinstance(tok, int) else tok
                    cnt[key] = cnt.get(key, 0) + 1
                    last_epoch[key] = epoch
                    if isinstance(tok, tuple) and tok[0] == "SW" and cnt[key] == 4:
                        landed.add(("S", tok[1]))
                        issued[("S", tok[1])] = 4
        elif t == "s_barrier":
            visible |= {d for d in landed if not (isinstance(d, tuple) and d[0] == "S") or issued[d] == 4}
            epoch += 1
        elif ins.tag == "ds":
            wr, tok = rw(t)[1], ins.meta
            if isinstance(tok, int):
                assert ("S", tok // 16) in visible, ("read before visible", tok)
            else:
                assert tok in landed and issued[tok] == 6, ("x read before landed", tok)
            lq.append((wr, tok))
            for r in wr:
                pending[r] = tok
        elif t.startswith("v_mfma"):
            for r in rw(t)[2]:
                assert r not in pending, ("mfma reads in-flight fragment", t)
        assert len(vq) <= 63, "vmcnt overflow"

def add_pads(main):
    import subprocess, tempfile, os
    i0, i1 = main.index("L_main:"), main.index("L_done:")
    with tempfile.TemporaryDirectory() as d:
        labels = sorted({x for t in main for x in re.findall(r"\bL_\w+", t)} - {t[:-1] for t in main[i0:i1] if t.endswith(":")})
        open(d + "/a.s", "w").write('.amdgcn_target "amdgcn-amd-amdhsa--gfx950"\n.text\n' + "\n".join(main[i0:i1]) + "\n" + "".join(x + ":\n" for x in labels))
        subprocess.run(["clang", "-x", "assembler", "-target", "amdgcn-amd-amdhsa", "-mcpu=gfx950", "-c", d + "/a.s", "-o", d + "/a.o"], check=True)
        dis = subprocess.run(["llvm-objdump", "-d", d + "/a.o"], capture_output=True, text=True).stdout
    addr = [int(x, 16) for x in re.findall(r"// ([0-9A-F]{12}):", dis)]
    body = [k for k in range(i0, i1) if not main[k].endswith(":")]
    assert len(addr) == len(body)
    where, shift, page = [], 0, 1
    for n, k in enumerate(body):
        a = addr[n] + shift
        if a < page * 4096:
            continue
        free = main[k - 1].startswith("v_mfma") and not main[k].startswith(("s_", "buffer_"))
        nxt = addr[n + 1] + shift if n + 1 < len(body) else a + 64
        if free or nxt > page * 4096 + 56:
            where.append(k)
            shift += 4
            page += 1
    out, n = [], 0
    for k, t in enumerate(main):
        if n < len(where) and k == where[n]:
            out += [f"L_pad{n}:", "s_cbranch_execz " + (f"L_pad{n+4}" if n + 4 < len(where) else "L_main")]
            n += 1
        out.append(t)
    return out, len(where)

def emit(c, path):
    main, stats, probs = build_main(c)
    if c.pads:
        main, stats["pads"] = add_pads(main)
    K1 = NAME + "_kernel"
    s = "; @launch grid=(256,1,1) block=(256,1,1) lds=163840\n"
    s += '.amdgcn_target "amdgcn-amd-amdhsa--gfx950"\n.text\n'
    s += f".globl {K1}\n.p2align 8\n.type {K1},@function\n{K1}:\n"
    s += "\n".join(x if x.endswith(":") else "    " + " ".join(x.split()) for x in main) + "\n"
    if c.code_pf:
        s += ".fill 2048, 4, 0xbf810000\n"
    s += f""".section .rodata,"a"
.p2align 6
.amdhsa_kernel {K1}
  .amdhsa_next_free_vgpr 512
  .amdhsa_next_free_sgpr 102
  .amdhsa_accum_offset 256
  .amdhsa_group_segment_fixed_size 0
  .amdhsa_kernarg_size 104
  .amdhsa_user_sgpr_count 2
  .amdhsa_user_sgpr_kernarg_segment_ptr 1
  .amdhsa_system_sgpr_workgroup_id_x 1
  .amdhsa_float_denorm_mode_32 3
.end_amdhsa_kernel
"""
    open(path, "w").write(s)
    return stats, probs

if __name__ == "__main__":
    c = Cfg()
    if "R1" in sys.argv:
        sys.argv.remove("R1")
        c.rot, c.nx, c.pro_order, c.nW = 1, 3, "X0 S0 S1 X1 X2 S2", 2
        c.x_issue = {3: 0.6, 4: 2.3, 5: 3.62, 6: 4.62}
        c.x_read = {1: 1.2, 2: 1.56, 3: 3.25, 4: 4.25, 5: 5.25, 6: 6.25}
        c.kv_early = [5.7, 6.9, 8.1, 9.3, 10.7, 11.8, 12.9]
    if "R2" in sys.argv:
        sys.argv.remove("R2")
        c.rot, c.nx, c.pro_order, c.nW = 1, 3, "X0 S0 S1 X1 X2 S2", 2
        c.x_issue = {3: 0.6, 4: 2.0, 5: 2.5, 6: 3.1}
        c.x_read = {1: 1.15, 2: 1.5, 3: 2.15, 4: 3.3, 5: 3.65, 6: 4.3}
        c.kv_early = [4.8, 6.2, 7.6, 9.0, 10.6, 11.8, 13.0]
        c.kv_step, c.st_pace, c.flag_delay, c.wo_rot = 14, 16, 60, 2
    for kv in sys.argv[2:]:
        k, v = kv.split("=", 1)
        setattr(c, k, eval(v))
    stats, probs = emit(c, sys.argv[1])
    print(stats, "total cost", sum(stats["cost"]))
    for p in probs[:30]:
        print("  nop", p)
```

```python
import sys
from core2 import *

NAME = "concat_heads__mha_block_cached__gqa_block_cached__near_ridge"
BLK, SLOT = 8448, 16896
WPOS = [0, 1032, 2112, 3144]
MF = "v_mfma_f32_16x16x32_bf16"
OOB = 0x10000000
AUX = 0x1C0000
STAMP_AT = 0xF800000

class Cfg:
    D = 6
    NF = 12
    pol_x = ""
    pol_wq = ""
    pol_kv = "nt"
    pol_wo = ""
    pol_out = ""
    rot = 0
    nW = 10
    nx = 2
    w_la = 3
    pro_order = "X0 S0 S1 X1 S2"
    pro_first = 10
    pro_hop = 12
    pro_n = 22
    x_issue = {2: 0.5, 3: 2.3, 4: 4.3, 5: 6.0, 6: 7.2}
    x_read = {1: 1.25, 2: 3.25, 3: 5.0, 4: 6.25, 5: 8.25, 6: 9.25}
    kv_early = [3.5, 9.7, 10.4, 11.1, 11.8, 12.5, 13.2]
    kv_step = 12
    kv_last = 42.0
    kv_knee = None
    staged = []
    wo_at = None
    wo_la = 6
    back = 20
    slack = 40
    bar_q = 1
    bar_a = 2
    bar_o = 2
    bar_late = 99
    clump = None
    pro_setup = False
    chain = True
    ones_at = 12
    TH = 0x4B800000
    TL = 0x33800000
    code_pf = True
    pads = True
    wo_rate = 1.0
    wo_rate2 = 0.5
    wo_gap = 3
    wo_rot = 1
    races = 6
    race_at = 2.6
    race_skip = 10
    race_len = 40
    race_step = 2
    race_clamp = 4
    force = None
    flags = (1, 2, 3, 4, 5)
    flag_delay = 80
    sleep = 0
    early = None
    early_wait = 0.6
    load_gap = 12
    claim_at = 8
    st_group = 1
    st_pace = 0
    touch_wo = ()
    spin_max = 40000
    stamps = False
    pstamps = False
    diag = None

S_X, S_WQ, S_K, S_V, S_WO, S_ALL, S_OUT, S_DBG = 8, 12, 16, 20, 24, 28, 76, 80
S_GRP, S_LEAD = 6, 7
S_W, S_LDSW, S_TL, S_LDSX = 32, 33, 34, 35
S_WQOFF, S_XOFF, S_WOOFF = 36, 43, 56
S_T0, S_T1, S_C, S_TH, S_RET = 50, 51, 52, 53, 54
S_SB, S_ST0, S_ST1, S_PRB, S_ACC, S_TOT = 63, 65, 66, 67, 68, 69
S_T2, S_SPIN, S_STAMP = 70, 71, 72
S_RA, S_RB, S_D0, S_D1 = 84, 85, 86, 87
S_PG, S_OUTB, S_ROT, S_SRC, S_NEED, S_DST, S_TKT, S_FLR, S_PEND = 88, 90, 91, 92, 93, 94, 96, 97, 100
V_P, V_E, V_L, V_CHK, V_OV = 96, 120, 128, 136, 144
V_S, V_NEGM, V_SALT = 192, 216, 228
V_DWQ, V_DWU, V_DX, V_RW, V_RU, V_RX, V_SWQ, V_INI, V_DUM = 192, 193, 194, 195, 197, 199, 201, 201, 202
VL, VH5, VC31, VM, VG, V7, VA, VB, VC, VQ, VC4, VROW = range(204, 216)
V_DKV, V_RK, V_RT, V_DWO, V_RO, V_ST, V_FLW, V_OUT, V_STAMP = 240, 241, 244, 247, 248, 251, 252, 254, 255
V_RINV, V_FV, V_POLL, V_SW, V_PUB = 228, 231, 232, 143, 253
A_ONE, A_FR = 192, 208

def steps_list(c):
    st = [("W", k) for k in range(c.nW)] + [("U", k) for k in range(14 - c.nW)] + [("K", 0)]
    for j in range(1, 16):
        st += [("K", j), ("V", j - 1)]
    return st + [("V", 15)] + [("O", k) for k in range(14)]

def sq(d):
    return f"s[{d}:{d+3}]"
def srd_tail(d, nbytes):
    return [f"s_mov_b32 s{d+2}, {nbytes}", f"s_mov_b32 s{d+3}, 0x00020000"]

def stamp(k):
    return [f"s_memrealtime s[{S_STAMP}:{S_STAMP+1}]", f"s_memtime s[{S_STAMP+2}:{S_STAMP+3}]", "s_waitcnt lgkmcnt(0)",
            f"v_writelane_b32 v{V_STAMP}, s{S_STAMP}, {k}", f"v_writelane_b32 v{V_STAMP}, s{S_STAMP+2}, {32+k}"]

def rot7(dst, src):
    a, b = S_RET, S_RET + 1
    return [f"s_mov_b32 s{a}, 0x06543210", f"s_mov_b32 s{b}, 0x10654321", f"s_lshl_b32 s{dst}, s{src}, 2",
            f"s_lshr_b64 s[{a}:{b}], s[{a}:{b}], s{dst}", f"s_mov_b32 s{dst}, s{a}"]

def prologue1(c):
    T0, T1 = f"s{S_T0}", f"s{S_T1}"
    o = ["s_cmp_ge_u32 s2, 256", "s_cbranch_scc1 L_end"]
    if c.stamps:
        o += [f"v_mov_b32 v{V_STAMP}, 0"] + stamp(0)
    o += ["s_bfe_u32 s3, s2, 0x10002", f"s_mul_i32 {T0}, s3, 40"]
    o += [f"s_load_dwordx8 s[88:95], s[0:1], {T0}", f"s_mov_b32 s7, {T0}"]
    if c.code_pf:
        o += ["s_getpc_b64 s[70:71]", "L_pc:", f"s_lshr_b32 {T1}, s2, 3", f"s_mul_i32 {T1}, {T1}, 2304", f"v_min_u32 v{VA}, 17, v0",
              f"v_lshlrev_b32 v{VA}, 7, v{VA}", f"s_add_u32 s70, s70, {T1}", "s_addc_u32 s71, s71, 0",
              Ins(f"global_load_dword v239, v{VA}, s[70:71]", 1, "vm", "dum")]
    o += [f"v_lshrrev_b32 v{VA}, 6, v0", f"v_and_b32 v{VL}, 63, v0", f"v_readfirstlane_b32 s{S_W}, v{VA}",
          "s_and_b32 s5, s2, 3", "s_lshl_b32 s5, s5, 2", "s_bfe_u32 s6, s2, 0x20003", "s_add_u32 s5, s5, s6", "s_lshr_b32 s4, s2, 5",
          f"v_lshrrev_b32 v{VH5}, 5, v{VL}", f"v_and_b32 v{VC31}, 31, v{VL}", f"v_lshlrev_b32 v{VC31}, 4, v{VC31}",
          f"v_lshrrev_b32 v{VM}, 3, v{VL}", f"v_lshrrev_b32 v{VG}, 4, v{VL}", f"v_and_b32 v{V7}, 7, v{VL}",
          f"s_lshr_b32 s98, s{S_W}, 1", f"s_and_b32 s99, s{S_W}, 1",
          f"v_lshlrev_b32 v{VA}, 1, v{VG}", f"v_xor_b32 v{VA}, v{VA}, v{V7}", f"v_lshlrev_b32 v{VA}, 4, v{VA}",
          f"s_lshl_b32 {T0}, s4, 2", f"s_add_u32 {T0}, {T0}, s{S_W}", f"s_mul_i32 {T0}, {T0}, 43008",
          f"v_mul_u32_u24 v{VB}, 896, v{VM}", f"v_add3_u32 v{V_DX}, v{VB}, v{VA}, {T0}",
          f"s_lshl_b32 {T0}, s99, 16", f"s_lshl_b32 {T1}, s5, 9", f"s_add_u32 s{S_D0}, {T0}, {T1}",
          f"s_lshl_b32 {T1}, s98, 15", f"s_add_u32 {T0}, s{S_D0}, {T1}",
          f"v_lshlrev_b32 v{VB}, 17, v{VH5}", f"v_add3_u32 v{V_DWQ}, v{VB}, v{VC31}, {T0}",
          f"s_mul_i32 s{S_LDSW}, s{S_W}, 4224", f"s_mul_i32 s{S_LDSX}, s{S_W}, 6144"]
    o += srd_tail(S_X, 8 * 172032) + srd_tail(S_WQ, 448 * 8192)
    if c.rot:
        o += [f"s_mul_i32 {T0}, s6, {(0, 2, 1, 0)[c.rot]}", f"s_add_u32 {T0}, {T0}, s4", f"s_mul_i32 {T1}, {T0}, 37", f"s_lshr_b32 {T1}, {T1}, 8",
              f"s_mul_i32 {T1}, {T1}, 7", f"s_sub_u32 {T0}, {T0}, {T1}"] + rot7(S_D1, S_T0)
        for k in range(7):
            o += [f"s_bfe_u32 {T0}, s{S_D1}, {0x40000 + 4*k}", f"s_lshl_b32 s{S_XOFF+k}, {T0}, 7"]
            if k < c.nW // 2:
                o += [f"s_lshl_b32 s{S_WQOFF+k}, {T0}, 19"]
        o += [f"s_lshl_b32 {T0}, s98, 2", f"s_lshr_b32 s{S_D1}, s{S_D1}, {T0}"]
        for k in range(c.nW // 2, 7, 2):
            o += [f"s_bfe_u32 {T0}, s{S_D1}, {0x40000 + 4*k}", f"s_lshl_b32 s{S_WQOFF+k}, {T0}, 19"]
    return o + ["s_waitcnt lgkmcnt(0)", f"s_mov_b64 s[{S_X}:{S_X+1}], s[88:89]", f"s_mov_b64 s[{S_WQ}:{S_WQ+1}], s[94:95]"]

def dwu(c):
    o = [f"v_lshlrev_b32 v{VB}, 4, v{V7}", f"v_lshl_add_u32 v{VB}, v{VH5}, 18, v{VB}", f"v_and_b32 v{VA}, 1, v{VM}",
         f"v_lshl_add_u32 v{VB}, v{VA}, 17, v{VB}", f"v_and_b32 v{VA}, 1, v{VG}", f"v_lshl_add_u32 v{VB}, v{VA}, 15, v{VB}"]
    if not c.rot:
        o += [f"s_lshl_b32 s{S_D1}, s98, 19", f"s_add_u32 s{S_D0}, s{S_D0}, s{S_D1}"]
    return o + [f"v_add_u32 v{V_DWU}, s{S_D0}, v{VB}"]

def prologue2(c):
    o = [f"s_load_dwordx2 s[{S_WO}:{S_WO+1}], s[0:1], s7 offset:32", f"s_load_dwordx2 s[{S_OUT}:{S_OUT+1}], s[0:1], 80",
         f"s_load_dwordx2 s[{S_DBG}:{S_DBG+1}], s[0:1], 88",
         f"s_load_dwordx2 s[{S_ALL}:{S_ALL+1}], s[0:1], 96",
         f"s_mov_b64 s[{S_K}:{S_K+1}], s[90:91]", f"s_mov_b64 s[{S_V}:{S_V+1}], s[92:93]",
         f"v_lshrrev_b32 v{VROW}, 2, v{VL}", f"v_and_b32 v{VROW}, 7, v{VROW}", f"v_and_b32 v{VC4}, 3, v{VL}",
         f"v_lshlrev_b32 v{VA}, 10, v{VROW}", f"v_and_b32 v{VB}, 1, v{VROW}", f"v_lshl_add_u32 v{VA}, v{VB}, 3, v{VA}",
         f"v_lshrrev_b32 v{VB}, 1, v{VROW}", f"v_lshl_add_u32 v{VA}, v{VB}, 6, v{VA}", f"v_lshl_add_u32 v{VA}, v{VC4}, 4, v{VA}",
         f"v_lshl_add_u32 v{V_RW}, v{VH5}, 9, v{VA}", f"v_lshl_add_u32 v{V_RU}, v{VH5}, 7, v{VA}",
         f"v_add_u32 v{V_RW+1}, {3*SLOT}, v{V_RW}", f"v_add_u32 v{V_RU+1}, {3*SLOT}, v{V_RU}",
         f"v_and_b32 v{VQ}, 15, v{VL}", f"v_lshlrev_b32 v{VA}, 7, v{VQ}", f"v_and_b32 v{VB}, 6, v{VL}", f"v_xor_b32 v{VB}, v{VB}, v{VG}",
         f"v_lshl_add_u32 v{VA}, v{VB}, 4, v{VA}", f"s_add_u32 s{S_T0}, s{S_LDSX}, {10*BLK}",
         f"v_add_u32 v{V_RX}, s{S_T0}, v{VA}", f"v_xor_b32 v{VA}, 64, v{VA}", f"v_add_u32 v{V_RX+1}, s{S_T0}, v{VA}"]
    o += srd_tail(S_K, 1 << 25) + srd_tail(S_V, 1 << 25) + srd_tail(S_ALL, OOB) + srd_tail(S_DBG, 256)
    o += srd_tail(S_WO, 4096 * 896) + srd_tail(S_OUT, 8 * 192 * 896 * 2)
    return o + dwu(c)

def deferred(c):
    D0, D1, T2 = f"s{S_D0}", f"s{S_D1}", f"s{S_T2}"
    kv = [
        f"s_lshl_b32 {D0}, s4, 4", f"s_add_u32 {D0}, {D0}, s5", f"s_lshl_b32 {D0}, {D0}, 18",
        f"s_lshl_b32 {D1}, s98, 13", f"s_add_u32 {D0}, {D0}, {D1}", f"s_lshl_b32 {D1}, s99, 11", f"s_add_u32 {D0}, {D0}, {D1}",
        f"v_lshlrev_b32 v{VA}, 12, v{VH5}", f"v_add3_u32 v{V_DKV}, v{VA}, v{VC31}, {D0}", f"v_lshlrev_b32 v{V_ST}, 4, v{VL}"]
    ini = [
        f"s_lshl_b32 {D0}, s3, 3", f"s_add_u32 {D0}, {D0}, s4", f"s_lshl_b32 {D0}, {D0}, 2", f"s_add_u32 {D0}, {D0}, s{S_W}",
        f"s_lshl_b32 s{S_PG}, {D0}, 21", f"s_lshr_b32 {D0}, {D0}, 2", f"s_lshl_b32 s{S_GRP}, {D0}, 4", f"s_add_u32 s{S_FLR}, s{S_PG}, {AUX}",
        f"s_min_u32 {D1}, s5, 1", f"s_lshl_b32 {D0}, {D1}, 28", f"s_add_u32 {T2}, s{S_FLR}, {D0}",
        f"s_or_b32 {D1}, s5, s{S_W}", f"s_min_u32 {D1}, {D1}, 1", f"s_lshl_b32 {D0}, {D1}, 28", f"s_add_u32 s{S_LEAD}, s{S_GRP}, {D0}",
        f"s_add_u32 s{S_PRB}, s{S_FLR}, {D0}",
        f"v_lshrrev_b32 v{VA}, 1, v{VL}", f"v_mul_u32_u24 v{VB}, {0x4000+256}, v{VA}", f"v_min_u32 v{V_DUM}, 1, v{VA}", f"v_min_u32 v{V_DUM+1}, 1, v{VA}",
        f"v_and_b32 v{VA}, 3, v{VL}", f"v_lshrrev_b32 v{VC}, 1, v{VA}", f"v_lshl_add_u32 v{VB}, v{VC}, 12, v{VB}",
        f"v_and_b32 v{VA}, 1, v{VL}", f"v_lshl_add_u32 v{VB}, v{VA}, 13, v{VB}",
        f"v_cmp_gt_u32 vcc, {2+2*c.races}, v{VL}", f"v_mov_b32 v{VC}, {OOB}", f"v_min_u32 v{VA}, 1, v{VL}",
        f"v_lshlrev_b32 v{V_FLW}, 28, v{VA}", f"v_cndmask_b32 v{V_INI}, v{VC}, v{VB}, vcc"]
    att = [f"s_mov_b32 s{S_C}, 0x3db8aa3b", f"s_mov_b32 s{S_TH}, {c.TH}", f"s_mov_b32 s{S_TL}, {c.TL}",
           f"v_mul_u32_u24 v{VA}, 1056, v{VROW}", f"v_lshl_add_u32 v{VA}, v{VC4}, 3, v{VA}",
           f"v_lshl_add_u32 v{V_RT}, v{VH5}, 9, v{VA}", f"v_lshl_add_u32 v{V_RO}, v{VH5}, 7, v{VA}",
           f"v_mul_u32_u24 v{VA}, 1056, v{V7}", f"v_and_b32 v{VB}, 1, v{VM}", f"v_lshl_add_u32 v{VA}, v{VB}, 9, v{VA}",
           f"v_lshl_add_u32 v{V_RK}, v{VG}, 4, v{VA}"]
    for base in (V_RK, V_RT, V_RO):
        att += [f"v_add_u32 v{base+1}, {3*SLOT}, v{base}", f"v_add_u32 v{base+2}, {6*SLOT}, v{base}"]
    att += [f"v_mov_b32 v{VB}, 0x3f803f80"]
    for t in range(3):
        att += [f"v_cmp_eq_u32 vcc, {t}, v{VC4}"] + [f"v_mov_b32 v{V_NEGM+4*t+r}, 0" for r in range(4)]
        att += [f"v_cndmask_b32 v{VA}, 0, v{VB}, vcc"] + [f"v_accvgpr_write_b32 a{A_ONE+4*t+r}, v{VA}" for r in range(4)]
    out = [
        f"s_lshl_b32 {D0}, s5, 2", f"s_add_u32 {D0}, {D0}, s98", f"s_lshl_b32 {D0}, {D0}, 4", f"s_add_u32 {D0}, {D0}, s99",
        f"s_mul_i32 {D0}, {D0}, {4*896}", f"v_mul_u32_u24 v{VA}, 7168, v{VM}", f"v_lshlrev_b32 v{VB}, 4, v{V7}",
        f"v_add3_u32 v{V_DWO}, v{VA}, v{VB}, {D0}",
        f"v_mul_u32_u24 v{VA}, 1792, v{VQ}", f"v_lshl_add_u32 v{V_OUT}, v{VG}, 4, v{VA}"]
    if c.wo_rot == 1:
        out += rot7(S_ROT, 4)
    else:
        tabl = {2: 0x64206420, 3: 0x20520520}[c.wo_rot]
        out += [f"s_lshl_b32 {D0}, s4, 2", f"s_lshr_b32 {D0}, {tabl}, {D0}", f"s_and_b32 {D0}, {D0}, 15"] + rot7(S_ROT, S_D0)
    for k in range(7):
        out += [f"s_bfe_u32 {D0}, s{S_ROT}, {0x40000 + 4*k}", f"s_lshl_b32 s{S_WOOFF+k}, {D0}, 7"]
    out += [f"s_mul_i32 s{S_OUTB}, s4, 344064", f"s_mul_i32 {D0}, s3, 896", f"s_add_u32 s{S_OUTB}, s{S_OUTB}, {D0}",
            f"s_mul_i32 {D0}, s{S_W}, {3*28672}", f"s_add_u32 s{S_OUTB}, s{S_OUTB}, {D0}",
            f"s_lshl_b32 s{S_SB}, s5, 14", f"s_and_b32 {D0}, s5, 2", f"s_lshl_b32 {D0}, {D0}, 10", f"s_add_u32 s{S_SB}, s{S_SB}, {D0}"]
    return kv, ini, att, out

def qacc(t, q):
    return ((t >> 1) * 3 + q) * 8 + (t & 1) * 4
def sreg(j, kt, q):
    return (V_SALT if (j == 0 and kt == 0) else V_S + 12 * kt) + q * 4
def preg(j, q):
    return V_P + (j & 1) * 12 + q * 4
def lreg(j):
    return V_L + (j & 1) * 4
def oreg(t, q):
    return ("v", V_OV + (t * 3 + q) * 4) if t < 4 else ("a", (t * 3 + q) * 4)
def oacc(ch, nt, q):
    return (96 if ch % 2 == 0 else 144) + (q * 4 + nt) * 4

def softmax_items(j, kt, tmp, qorder=(0, 1, 2)):
    out, pend = [], None
    for q in qorder:
        for hf in range(2):
            e = V_E + 2 * (tmp[0] % 4)
            tmp[0] += 1
            out.append(Ins(f"v_exp_f32 v{e}, v{sreg(j,kt,q)+2*hf}", 2, meta=q))
            if pend:
                out.append(pend)
            out.append(Ins(f"v_exp_f32 v{e+1}, v{sreg(j,kt,q)+2*hf+1}", 2, meta=q))
            pend = Ins(f"v_cvt_pk_bf16_f32 v{preg(j,q)+2*kt+hf}, v{e}, v{e+1}", 1, meta=q)
    return out, pend

def ones_mfma(j):
    o = []
    for q in range(3):
        cin = vr(lreg(j), 4) if q else (vr(lreg(j - 1), 4) if j else "0")
        o.append(f"{MF} {vr(lreg(j),4)}, {ar(A_ONE+4*q,4)}, {vr(preg(j,q),4)}, {cin}")
    return o

def rare_path(j):
    D, F, T = (138, None, 141) if j == 0 else (228, 231, 234)
    o = ["s_nop 7", "s_nop 7"]
    for q in range(3):
        a, b = sreg(j, 0, q), sreg(j, 1, q)
        o += [f"v_max3_f32 v{D+q}, v{a}, v{a+1}, v{a+2}", f"v_max3_f32 v{D+q}, v{D+q}, v{a+3}, v{b}",
              f"v_max3_f32 v{D+q}, v{D+q}, v{b+1}, v{b+2}", f"v_max_f32 v{D+q}, v{D+q}, v{b+3}"]
    for op in ("v_permlane32_swap_b32", "v_permlane16_swap_b32"):
        o += [f"v_mov_b32 v{T+q}, v{D+q}" for q in range(3)] + ["s_nop 1"]
        o += [f"{op} v{T+q}, v{D+q}" for q in range(3)]
        o += [f"v_max_f32 v{D+q}, v{D+q}, v{T+q}" for q in range(3)]
    if j:
        o += [f"v_max_f32 v{D+q}, 0, v{D+q}" for q in range(3)]
        o += [f"v_exp_f32 v{F+q}, -v{D+q}" for q in range(3)]
    for q in range(3):
        tgt = [V_NEGM + 4 * q, sreg(j, 0, q), sreg(j, 1, q)] + ([sreg(1, 0, q)] if j == 0 else [])
        for a in tgt:
            o += [f"v_sub_f32 v{a+r}, v{a+r}, v{D+q}" for r in range(4)]
        if j:
            o += [f"v_mul_f32 v{lreg(j-1)+q}, v{lreg(j-1)+q}, v{F+q}"]
    tmp = [0]
    for kt in range(2):
        it, pend = softmax_items(j, kt, tmp)
        o += [x.text for x in it] + ["s_nop 0", pend.text]
    if j:
        for t in range(16):
            for q in range(3):
                f, a = oreg(t, q)
                if f == "v":
                    o += [f"v_mul_f32 v{a+r}, v{a+r}, v{F+q}" for r in range(4)]
                else:
                    o += [f"v_accvgpr_read_b32 v{T+r}, a{a+r}" for r in range(4)]
                    o += [f"v_mul_f32 v{T+r}, v{T+r}, v{F+q}" for r in range(4)]
                    o += [f"v_accvgpr_write_b32 a{a+r}, v{T+r}" for r in range(4)]
    o += ["s_nop 1"] + ones_mfma(j) + ["s_nop 7", "s_nop 7"]
    return check_hazards(o, fix=True)[0]

def order(mode):
    if mode == "A3":
        return [(f, q if f % 2 == 0 else 2 - q) for f in range(16) for q in range(3)]
    out = []
    for b in range(4):
        for qi in range(3):
            q = qi if b % 2 == 0 else 2 - qi
            rng = range(4) if qi % 2 == 0 else range(3, -1, -1)
            out += [(4 * b + i, q) for i in rng]
    return out

def build_main(c):
    steps = steps_list(c)
    NS = len(steps)
    idx = {s: n for n, s in enumerate(steps)}
    tl = Timeline()
    G, USE, LAST, ONES, FIN = {}, {}, {}, {}, {}
    fb = lambda F: A_FR + 4 * (F % c.NF)
    def mode(n):
        ty, k = steps[n]
        return "CH" if c.chain and (ty in "UK" or (ty == "O" and k >= 2)) else "A3"
    def ki(n, f):
        return (f & 3, f >> 2) if (mode(n) == "CH" or steps[n][0] == "U") else (f >> 2, f & 3)
    started = set()
    for n, (ty, k) in enumerate(steps):
        for m, (f, q) in enumerate(order(mode(n))):
            F = 16 * n + f
            if ty == "W":
                key, d, b, c0 = ("Q", f, q), vr(qacc(f, q), 4), ar((k * 3 + q) * 4, 4), "0"
            elif ty == "U":
                i, nt = ki(n, f)
                t = 4 * (k & 3) + nt
                key, d, b, c0 = ("Q", t, q), vr(qacc(t, q), 4), ar(((4 * (k >> 2) + c.nW + i) * 3 + q) * 4, 4), "0"
            elif ty == "K":
                kt, s = f >> 3, f & 7
                key, d, b, c0 = ("S", k, kt, q), vr(sreg(k, kt, q), 4), vr((s * 3 + q) * 4, 4), vr(V_NEGM + 4 * q, 4)
            elif ty == "V":
                fl, a = oreg(f, q)
                key, d, b, c0 = ("O", f, q), vr(a, 4, fl), vr(preg(k, q), 4), "0"
            else:
                i, nt = ki(n, f)
                s = (k & 1) * 4 + i
                key, d, b, c0 = ("P", k >> 1, nt, q), vr(oacc(k >> 1, nt, q), 4), vr((s * 3 + q) * 4, 4), "0"
            i_m = tl.add_mfma(f"{MF} {d}, {ar(fb(F),4)}, {b}, {d if key in started else c0}")
            started.add(key)
            FIN[key] = i_m
            if m % 3 == 0:
                G[16 * n + m // 3] = i_m
            USE.setdefault(F, i_m)
            LAST[F] = i_m
            if ty == "O":
                USE.setdefault(("B", s), i_m)
            if (ty, k) == ("K", 0):
                USE.setdefault(("QB", s), i_m)
            jn = None
            if ty == "V" and k < 15 and m == 3 * c.ones_at + 2:
                jn = k + 1
            if (ty, k) == ("K", 1) and m == 11:
                jn = 0
            if jn is not None:
                for t in ones_mfma(jn):
                    ONES[jn] = tl.add_mfma(t)
    NM = len(tl.mf)
    beg = lambda n: G[16 * n]
    end = lambda n: (G[16 * (n + 1)] - 1) if n + 1 < NS else NM - 1
    at = lambda x: min(NM - 1, beg(int(x)) + int((x - int(x)) * (end(int(x)) - beg(int(x)) + 1)))
    nK0, nV15, nO0 = idx[("K", 0)], idx[("V", 15)], idx[("O", 0)]

    bsteps = [n for n in range(0, nK0, c.bar_q)]
    if c.bar_q == 2:
        bsteps = [0] + list(range(1, nK0, 2))
    bsteps += [nK0] + list(range(nK0 + c.bar_a, nV15, c.bar_a))
    bsteps += list(range(nV15, NS - 1, c.bar_o)) + list(range(c.bar_late, nV15))
    bsteps = sorted(set(bsteps))
    bgap = {n: G[16 * (n + 1) - c.D] for n in bsteps}
    covers = {n: list(range(n + 1, (bsteps[i + 1] if i + 1 < len(bsteps) else NS - 1) + 1)) for i, n in enumerate(bsteps)}
    def freed(m):
        later = [n for n in bsteps if n >= m + 1]
        return bgap[later[0]] + 1 if later else NM

    xreg = lambda kc: [16, 13, 10][kc % c.nx] * BLK
    x_read = c.x_read
    def xfreed(kc):
        g = at(x_read[kc]) + 20 + 3 * (c.D + 2)
        return min(bgap[n] for n in bsteps if bgap[n] >= g) + 1
    xslots = {5: (5,), 6: (4, 5), 7: (4,), 8: (6,)} if c.nx == 3 else {6: (5,), 7: (5,), 8: (6,)}
    free_at = {s: max([-1] + [xfreed(kc) for kc in xslots.get(s, ())]) for s in range(9)}
    pro = [(t[0], int(t[1:]), p) for t in c.pro_order.split() for p in range(6 if t[0] == "X" else 4)]
    pro_s = [int(t[1:]) for t in c.pro_order.split() if t[0] == "S"]
    units = []
    def add(kind, i, x, pieces, step=4):
        units.append([at(x), step, kind, i, list(pieces)])
    rest = {}
    for kind, i, p in pro[c.pro_n:]:
        rest.setdefault((kind, i), []).append(p)
    for (kind, i), ps in rest.items():
        add(kind, i, 0.0, ps, 3)
    for m in range(max(pro_s) + 1, 14):
        add("S", m, max(0.03, m - c.w_la), range(4), 3)
    for kc, x in c.x_issue.items():
        add("X", kc, x, range(6), 3)
        if kc > c.nx:
            units[-1][0] = max(units[-1][0], at(x_read[kc - c.nx]) + 20 + 3 * (c.D + 2))
    staged = {m: r for x, m, r in c.staged}
    for x, m, r in c.staged:
        ks = (r + 15) // 12
        assert r + 16 <= 192 and (r >= 168 or x >= (ks + 1 if ks < c.nW else c.nW + 4 * ((ks - c.nW) // 4 + 1)))
        assert r + 16 <= 48 or m < 14 + len(c.kv_early)
        add("G", m, x, range(4), c.kv_step)
    for m, x in zip(range(14, 14 + len(c.kv_early)), c.kv_early):
        add("S", m, x, range(4), 6 if m in staged else c.kv_step)
    m0 = 14 + len(c.kv_early)
    knots = [(m0, 14.0)] + ([c.kv_knee] if c.kv_knee else []) + [(46, c.kv_last + 1)]
    for (ma, xa), (mb, xb) in zip(knots, knots[1:]):
        w = (xb - xa) / len([m for m in range(ma, mb) if m not in staged])
        x = xa
        for m in range(ma, mb):
            if m in staged:
                add("S", m, x + 0.01, range(4), 6)
            else:
                add("S", m, x, range(4), int(w * 12))
                x += w
    x = c.kv_last + 1
    for m in range(46, 60):
        x = c.wo_at[m - 46] if c.wo_at else max(x, m - c.wo_la)
        add("S", m, x, range(4), 3)
        x += c.wo_rate if x < 45 else c.wo_rate2
    units.sort(key=lambda u: u[0])
    slot_of, slot_lo = {}, {}
    def alloc(m):
        if m < 14:
            pool = list(range(c.w_la + 2))
        elif 13 not in slot_of:
            pool = list(range(c.w_la + 2, 9))
        else:
            pool = list(range(9))
        s = min(pool, key=lambda s: (free_at[s], s))
        slot_of[m], slot_lo[m] = s, free_at[s]
        free_at[s] = freed(m)
    for m in pro_s:
        alloc(m)
    for u in units:
        if u[2] == "S" and u[3] not in slot_of:
            alloc(u[3])
            u[0] = max(u[0], slot_lo[u[3]])
    units.sort(key=lambda u: u[0])

    def soff(reg, fixed, off):
        return Ins(f"s_add_u32 s{S_T0}, s{reg}, {off}" if c.rot else f"s_mov_b32 s{S_T0}, {fixed + off}")
    def dma(kind, i, p):
        if kind == "X":
            return [Ins(f"s_add_u32 m0, s{S_LDSX}, {xreg(i) + 1024*p}"), soff(S_XOFF + i, 128 * i, 7168 * p),
                    Ins(f"buffer_load_dwordx4 v{V_DX}, {sq(S_X)}, s{S_T0} offen {c.pol_x} lds", 1, "vm", ("X", i))]
        ty, k = steps[i]
        if kind == "G":
            o = [Ins(f"s_mov_b32 s{S_T1}, {k*16384}")] if p == 0 else []
            off = f" offset:{512*p}" if p else ""
            return o + [Ins(f"buffer_load_dwordx4 {ar(staged[i]+4*p,4)}, v{V_DKV}, {sq(S_K if ty == 'K' else S_V)}, s{S_T1} offen{off} {c.pol_kv}", 1, "vm", ("G", i))]
        base = slot_of[i] * SLOT
        if i in staged:
            sw = V_SW if i >= 14 + len(c.kv_early) else V_SWQ
            o = [Ins("", 1, "waitv", {("G", i)}), Ins(f"s_add_u32 s{S_T0}, s{S_LDSW}, {base}"), Ins(f"v_add_u32 v{sw}, s{S_T0}, v{V_ST}")] if p == 0 else []
            return o + [Ins(f"ds_write_b128 v{sw}, {ar(staged[i]+4*p,4)} offset:{1056*p}", 1, "ds", ("SW", i))]
        if ty in "WU":
            pos, off, v = (k >> 1, ((k & 1) * 32 + p) * 8192, V_DWQ) if ty == "W" else (c.nW // 2 + 2 * (k >> 2), p * 8192 + (k & 3) * 128, V_DWU)
            return [Ins(f"s_add_u32 m0, s{S_LDSW}, {base + WPOS[p]}"), soff(S_WQOFF + pos, pos << 19, off),
                    Ins(f"buffer_load_dwordx4 v{v}, {sq(S_WQ)}, s{S_T0} offen {c.pol_wq} lds", 1, "vm", ("S", i))]
        o = []
        if ty in "KV":
            g, sr, v, pol = 512 * p, (S_K if ty == "K" else S_V), V_DKV, c.pol_kv
            if p == 0:
                o.append(Ins(f"s_mov_b32 s{S_T1}, {k*16384}"))
        else:
            g, sr, v, pol = 896 * p, S_WO, V_DWO, c.pol_wo
            if p == 0:
                o.append(Ins(f"s_add_u32 s{S_T1}, s{S_WOOFF+(k>>1)}, {(k&1)*128*896}"))
        o.append(Ins(f"s_add_u32 m0, s{S_LDSW}, {base + 1056*p - g}"))
        off = f" offset:{g}" if g else ""
        o.append(Ins(f"buffer_load_dwordx4 v{v}, {sq(sr)}, s{S_T1} offen{off} {pol} lds", 1, "vm", ("S", i)))
        return o

    def reads(F):
        n, f = F // 16, F % 16
        ty, k = steps[n]
        s, r = slot_of[n], fb(F)
        win, base = s // 3, (s % 3) * SLOT
        if ty == "K":
            return [Ins(f"ds_read_b128 {ar(r,4)}, v{V_RK+win} offset:{base + (f>>3)*BLK + (f&7)*64}", 1, "ds", F)]
        if ty == "V":
            v, o0, dd = V_RT + win, base + f * 32, BLK
        elif ty == "W":
            v, o0, dd = V_RW + win, base + (f >> 1) * 64 + (f & 1) * 8, BLK
        else:
            i, nt = ki(n, f)
            o0, dd = (i >> 1) * BLK + (i & 1) * 512, 256
            if ty == "U":
                v, o0 = V_RU + win, o0 + base + (nt >> 1) * 64 + (nt & 1) * 8
            else:
                v, o0 = V_RO + win, o0 + base + nt * 32
        assert o0 + dd < 65536
        return [Ins(f"ds_read_b64_tr_b16 {ar(r,2)}, v{v} offset:{o0}", 1, "ds", F),
                Ins(f"ds_read_b64_tr_b16 {ar(r+2,2)}, v{v} offset:{o0+dd}", 1, "ds", F)]
    def xreads(kc):
        return [Ins(f"ds_read_b128 {ar(((2*kc+s)*3+q)*4,4)}, v{V_RX+s} offset:{xreg(kc) - 10*BLK + q*2048}", 1, "ds", ("X", kc))
                for s in range(2) for q in range(3)]

    P = lambda t: tl.put(-1, Ins(t) if isinstance(t, str) else t)
    PS = lambda k: [P(t) for t in stamp(k)] if c.pstamps else None
    for t in prologue1(c):
        P(t)
    PS(1)
    for e in pro[:c.pro_first]:
        for x in dma(*e):
            P(x)
    PS(2)
    for t in prologue2(c):
        P(t)
    PS(3)
    for e in pro[c.pro_first:c.pro_hop]:
        for x in dma(*e):
            P(x)
    if c.pads:
        for t in ["s_mov_b64 exec, 0"] + [x for w in range(3) for x in (f"s_cmp_eq_u32 s{S_W}, {w}", f"s_cbranch_scc1 L_pad{w}")] + \
                 ["s_branch L_pad3", ".p2align 12", "L_main:", "s_mov_b64 exec, -1"]:
            P(t)
    kv, ini, att, out = deferred(c)
    init = Ins(f"buffer_store_dwordx2 {vr(V_DUM,2)}, v{V_INI}, {sq(S_ALL)}, s{S_T2} offen sc1", 1, "vm", "reset")
    setup = (ini if c.clump else ini + kv + att + out) if c.pro_setup else []
    share = -(-len(setup) // (c.pro_n - c.pro_hop))
    for e in pro[c.pro_hop:c.pro_n]:
        for x in dma(*e) + setup[:share]:
            P(x)
        setup = setup[share:]
    PS(4)
    P(Ins("", 1, "waitv", {("X", 0), ("S", 0)}))
    P("s_waitcnt lgkmcnt(0)")
    if c.pro_setup:
        P(init)
    PS(5)
    P("s_barrier")
    PS(6)
    for x in xreads(0):
        P(x)
    for F in range(c.D):
        for x in reads(F):
            P(x)
    P(Ins("", 1, "waitl", {0, ("X", 0)}))

    NFR = 16 * NS
    for F in range(c.D, NFR):
        g = G[F - c.D]
        assert F < c.NF or LAST[F - c.NF] <= g
        for k, x in enumerate(reads(F)):
            tl.put(g + k, x)
    hasread = lambda g: bool(tl.gaps[g].mem)
    def lead_before(ins, g, span=3):
        for i in range(g, g - span, -1):
            if i >= 0 and hasread(i) and not tl.gaps[i].lead:
                tl.gaps[i].lead.append(ins)
                return i
        return tl.back(ins, g, max(0, g - span))
    for n in bsteps:
        tl.gaps[bgap[n]].lead.append(Ins("s_barrier"))
        need = {("S", m) for m in covers[n]}
        if n == max(b for b in bsteps if b < nK0):
            need.add("dum")
        lead_before(Ins("", 1, "waitv", need), bgap[n] - 1)
    for kc, r in x_read.items():
        g = lead_before(Ins("", 1, "waitv", {("X", kc)}), at(r) + 1)
        tl.chain(xreads(kc), g + 1, at(r) + 20)
    F = 1
    while F < NFR:
        grp = [F]
        if mode(F // 16) == "CH" and F % 4 == 1:
            grp = [F, F + 1, F + 2]
        need = set(grp)
        ty, k = steps[F // 16]
        if F % 16 == 0 and ((ty == "U" and k % 4 == 0) or (ty == "W" and k % 2 == 0)):
            need |= {("X", k // 2)} if ty == "W" else {("X", c.nW // 2 + k // 2), ("X", c.nW // 2 + k // 2 + 1)}
            tl.back(Ins("", 1, "waitl", need), USE[F] - 1, USE[F] - 1)
        else:
            lead_before(Ins("", 1, "waitl", need), min(USE[x] for x in grp) - 1)
        F += len(grp)

    pieces, last_t = [], {}
    for seq, (g0, step, kind, i, ps) in enumerate(units):
        stream = "sw" if (kind == "S" and i in staged) else "kv" if (kind == "G" or (kind == "S" and i >= 14)) else "w"
        for n_p, p in enumerate(ps):
            tgt = max(g0 + n_p * step, last_t.get(stream, -1))
            last_t[stream] = tgt
            pieces.append((tgt, seq, n_p, kind, i, p))
    pieces.sort()
    state = dict(prev=-1, k=0)
    margin = {}
    def place_units(upto, back, slack):
        while state["k"] < len(pieces) and pieces[state["k"]][0] < upto:
            tgt, _, _, kind, i, p = pieces[state["k"]]
            state["k"] += 1
            ins = dma(kind, i, p)
            prev = state["prev"]
            lo = max(tgt - back, prev + (c.wo_gap if kind == 'S' and i >= 48 else 3), prev + len(ins))
            if kind == "S":
                lo = max(lo, slot_lo[i] + len(ins) - 1)
            g = lo
            while tl.gaps[g].seq() and g < lo + slack:
                g += 1
            if tl.gaps[g].seq():
                g = min(range(lo, lo + slack), key=lambda k: (tl.gaps[k].added(ins[-1], 1), k))
            tl.gaps[g].mem.append(ins[-1])
            if ins[:-1]:
                tl.chain(ins[:-1], max(prev + 1, g - 6), g - 1)
            state["prev"] = g
            if kind == "G" or (kind == "S" and i >= 14):
                state.setdefault("kv0", g)
            if kind == "S" and i > 0:
                margin[i] = round((min(bgap[n] for n in bsteps if i in covers[n]) - g) / 49.5, 1)
    place_units(beg(nK0), 0, 8)

    L = lambda ts: [Ins(t) for t in ts]
    if c.pro_setup:
        ps = [(0, 0)]
    else:
        ps = tl.chain(L(ini) + [init], 0, at(c.race_at) - 62)
        ps = tl.chain(L(kv), ps[-1][0] + 1, state["kv0"] - 2)
    if c.touch_wo:
        it = [f"s_lshl_b32 s{S_D0}, s5, 4", f"s_add_u32 s{S_D0}, s{S_D0}, s{S_W}", f"s_mul_i32 s{S_D0}, s{S_D0}, {16*896}",
              f"s_min_u32 s{S_D1}, s4, 6", f"s_lshl_b32 s{S_D1}, s{S_D1}, 7", f"s_add_u32 s{S_D0}, s{S_D0}, s{S_D1}",
              f"v_min_u32 v{VA}, 1, v{VG}", f"v_lshlrev_b32 v{VA}, 28, v{VA}", f"v_mul_u32_u24 v{VB}, 896, v{VL}",
              f"v_add3_u32 v238, v{VA}, v{VB}, s{S_D0}"]
        ps = tl.chain(L(it), ps[-1][0] + 1, at(c.touch_wo[0]) - 1)
        for k, x in enumerate(c.touch_wo):
            tl.chain([Ins(f"s_mov_b32 s{S_ST1}, {k*64*896}"),
                      Ins(f"buffer_load_dword v239, v238, {sq(S_WO)}, s{S_ST1} offen", 1, "vm", "dum")], at(x), at(x) + 12)
    ini_end = ps[-1][0]
    def fill(ts, g):
        sec = 0
        for t in ts:
            ins = t if isinstance(t, Ins) else Ins(t)
            while True:
                gp = tl.gaps[g]
                if gp.mem and cls(gp.mem[0]) == "d":
                    k = gp.section(ins, sec)
                    if gp.added(ins, k) <= 0:
                        break
                g, sec = g + 1, 0
            gp.add(ins, k)
            sec = 2
        return g
    A, Tt = f"s{S_ACC}", f"s{S_TOT}"
    g = fill([Ins("", 1, "waitv", {"reset"}), f"s_mov_b32 {Tt}, 0", f"s_mov_b64 s[{S_RA}:{S_RB}], 0", f"s_mov_b32 {A}, 0"], at(c.race_at))
    reset_seen = g
    for i in range(c.races):
        off = (i + 1) * (0x4000 + 256) + ((i + 1) & 1) * 4096
        ld = [f"s_buffer_load_dword s{S_RA}, {sq(S_ALL)}, s{S_PRB} offset:{off}",
              f"s_buffer_load_dword s{S_RB}, {sq(S_ALL)}, s{S_PRB} offset:{off+8192}"]
        sm = [f"s_add_u32 {A}, {A}, s{S_RA}", f"s_sub_u32 {A}, {A}, s{S_RB}"]
        first = (i + i // 2) % 2
        g0 = fill(ld[::-1 if first else 1], g + 1)
        g = g0 + c.race_skip
        while g < g0 + c.race_len:
            g = max(fill(sm[::-1 if first else 1], g) + 1, g + c.race_step)
        if c.stamps:
            tl.put(g, Ins(f"v_writelane_b32 v{V_STAMP}, {A}, {50+i}"), 2)
            g += 1
        g = fill([f"s_min_i32 {A}, {A}, {c.race_clamp}", f"s_max_i32 {A}, {A}, {-c.race_clamp}", f"s_add_u32 {Tt}, {Tt}, {A}",
                  f"s_mov_b32 {A}, 0", f"s_mov_b64 s[{S_RA}:{S_RB}], 0"], g)
    fin = [f"s_lshr_b32 {A}, {Tt}, 31", f"s_mul_i32 {A}, {A}, 3", f"s_add_u32 {A}, {A}, 4"]
    if c.force is not None:
        fin += [f"s_mov_b32 {A}, {4 + c.force}"]
    g = fill(fin, g + 1)
    g = max(g, min(b for b in bgap.values() if b > reset_seen))
    pub_at = tl.chain([Ins(f"v_mov_b32 v{V_PUB}, {A}"),
                       Ins(f"buffer_store_dword v{V_PUB}, v{V_FLW}, {sq(S_DBG)}, s{S_LEAD} offen sc1", 1, "vm", "cnt")], g + 1, g + 30)[-1][0]
    if c.clump:
        rest = kv + att + out
        n_c = -(-len(rest) // c.clump[2])
        for k in range(n_c):
            g = at(c.clump[0] + (c.clump[1] - c.clump[0]) * k / n_c)
            while not (tl.gaps[g].mem and cls(tl.gaps[g].mem[0]) == "d"):
                g += 1
            assert k * c.clump[2] >= len(kv) or g < state["kv0"] - 2
            for t in rest[k * c.clump[2]:(k + 1) * c.clump[2]]:
                tl.put(g, Ins(t), 2)
    elif not c.pro_setup:
        ps = tl.chain(L(att + out), ini_end + 1, beg(10))
    defer_end = ps[-1][0]

    cur = 0
    for s in range(8):
        it = []
        for q in sorted(range(3), key=lambda q: FIN[("Q", 2 * s + 1, q)]):
            src, dst = (s * 3 + q) * 8, (s * 3 + q) * 4
            rdy = FIN[("Q", 2 * s + 1, q)] + 4
            it += [(Ins(f"v_mul_f32 v{src+r}, s{S_C}, v{src+r}"), FIN[("Q", 2 * s + (r >> 2), q)] + 4) for r in range(8)]
            if s:
                it += [(Ins(f"v_cvt_pk_bf16_f32 v{dst+r}, v{src+2*r}, v{src+2*r+1}"), rdy) for r in range(4)]
        if s == 0:
            for q in range(3):
                it += [Ins(f"v_cvt_pk_bf16_f32 v{q*4+r}, v{q*8+2*r}, v{q*8+2*r+1}") for r in range(4)]
        lo = max(cur, it[0][1])
        hi = min(USE[("QB", s)] - 2, max(FIN[("Q", 2 * s + 1, q)] for q in range(3)) + 26)
        cur = tl.chain(it, lo, hi)[-1][0]
    q_done = cur

    tmp = [0]
    prev_branch = 0
    for j in range(16):
        it, pend = [], None
        for kt in range(2):
            qo = sorted(range(3), key=lambda q: FIN[("S", j, kt, q)])
            items, p = softmax_items(j, kt, tmp, qo)
            xs = [(x, FIN[("S", j, kt, x.meta)] + 5) for x in items]
            if pend:
                xs.insert(1, (pend, 0))
            it += xs
            pend = p
        lo = max(it[0][1], prev_branch + 1, q_done + 1)
        ps = tl.chain(it, lo, ONES[j] - 6)
        tl.chain([pend], ps[-1][0] + 1, ONES[j] - 5)
        l = lreg(j)
        br = (G[16 * idx[("K", 1)] + 8] - 1) if j == 0 else end(idx[("V", j - 1)])
        chk = [Ins(f"v_max3_f32 v{V_CHK}, v{l}, v{l+1}, v{l+2}"), Ins(f"v_cmp_nge_f32 vcc, s{S_TH}, v{V_CHK}")]
        if j == 0:
            chk = [Ins(f"v_min3_f32 v{V_CHK+1}, v{l}, v{l+1}, v{l+2}"), Ins(f"v_cmp_nle_f32 s[{S_RET}:{S_RET+1}], s{S_TL}, v{V_CHK+1}")] + chk
            chk += [Ins(f"s_or_b64 vcc, vcc, s[{S_RET}:{S_RET+1}]")]
        tl.chain(chk, ONES[j] + 5, br - 1)
        g = tl.gaps[br]
        sec = g.lead if not g.lead else g.rest
        sec += [Ins(f"s_cbranch_vccnz L_stub{j}"), Ins(f"L_back{j}:", 0)]
        prev_branch = br

    place_units(beg(nV15), c.back, c.slack)
    place_units(NM, 0, 8)

    nK14 = idx[("K", 15)]
    assert pub_at + 150 < beg(nK14 - 4)
    tl.chain([Ins(f"buffer_load_dword v{V_PUB}, off, {sq(S_DBG)}, s{S_GRP} sc1", 1, "vm", "dbg")], beg(nK14 - 4), beg(nK14 - 4) + 30)
    ps = tl.chain([Ins("", 1, "waitv", {"dbg"}), Ins(f"v_cmp_gt_u32 vcc, 1, v{V_PUB}")], beg(nK14), beg(nK14) + 9)
    gi = ps[-1][0] + 2
    g = tl.gaps[gi]
    (g.lead if not g.lead else g.rest).extend([Ins("s_cbranch_vccnz L_dbgspin"), Ins("L_dbgback:", 0)])
    D0, M = f"s{S_D0}", f"s{S_D1}"
    ps = tl.chain([Ins(f"v_readfirstlane_b32 {M}, v{V_PUB}")], gi + 1, gi + 6)
    fix = [f"s_mul_i32 {D0}, s99, 3", f"s_xor_b32 {M}, {M}, {D0}",
           f"s_and_b32 {D0}, {M}, 2", f"s_lshl_b32 {D0}, {D0}, 12", f"s_add_u32 s{S_PG+1}, s{S_PG}, {D0}",
           f"s_and_b32 {D0}, {M}, 1", f"s_lshl_b32 {D0}, {D0}, 13", f"s_add_u32 s{S_PG}, s{S_PG}, {D0}", f"s_add_u32 s{S_FLR}, s{S_FLR}, {D0}",
           f"s_add_u32 s{S_SB+1}, s{S_SB}, s{S_PG+1}", f"s_add_u32 s{S_SB}, s{S_SB}, s{S_PG}", f"s_sub_u32 s{S_PG+1}, s{S_PG+1}, s{S_PG}"]
    tl.chain(L(fix), ps[-1][0] + 1, beg(nV15))

    tl.chain([Ins(f"v_rcp_f32 v{V_RINV+q}, v{lreg(15)+q}", 2) for q in range(3)], beg(nV15), beg(nV15) + 9)
    cur, rot = beg(nV15), 0
    for s in range(8):
        it = []
        for tp in range(2):
            for q in sorted(range(3), key=lambda q: FIN[("O", 2 * s + tp, q)]):
                fl, a = oreg(2 * s + tp, q)
                rdy = FIN[("O", 2 * s + tp, q)] + 4
                if fl == "a":
                    T = 216 + 4 * (rot % 2)
                    rot += 1
                    it += [(Ins(f"v_accvgpr_read_b32 v{T+r}, a{a+r}"), rdy) for r in range(4)]
                    a = T
                it += [(Ins(f"v_cvt_pk_bf16_f32 v{(s*3+q)*4+2*tp+h}, v{a+2*h}, v{a+2*h+1}"), rdy) for h in range(2)]
        lo = max(cur, it[0][1])
        dead = USE[("B", s)] - 2
        left = sum(12 if x < 2 else 36 for x in range(s, 8))
        share = lo + int((USE[("B", 7)] - 2 - lo) * (12 if s < 2 else 36) / left) + 1
        cur = tl.chain(it, lo, max(min(dead, share), min(dead, it[-1][1] + 2)))[-1][0]

    def chunk_out(ch):
        pcs = sorted(range(6), key=lambda pc: FIN[("P", ch, 2 * (pc & 1) + 1, pc >> 1)])
        it = [(Ins(f"s_add_u32 s{S_ST0}, s{S_SB+(ch&1)}, {ch << 18}"), 0), (Ins(f"s_add_u32 s{S_ST1}, s{S_SB+(ch&1)}, {(ch << 18) + 4096}"), 0)]
        held = []
        for n_p, pc in enumerate(pcs):
            q, p = pc >> 1, pc & 1
            a, T = oacc(ch, 2 * p, q), 192 + 4 * pc
            rdy = FIN[("P", ch, 2 * p + 1, q)] + 4
            v = [(Ins(f"v_mul_f32 v{a+r}, v{a+r}, v{V_RINV+q}"), FIN[("P", ch, 2 * p + (r >> 2), q)] + 4) for r in range(8)]
            v += [(Ins(f"v_cvt_pk_bf16_f32 v{T+r}, v{a+2*r}, v{a+2*r+1}"), rdy) for r in range(4)]
            if n_p % c.st_group == c.st_group - 1:
                for k, x in enumerate(held):
                    v.insert(len(v) - 2 * (len(held) - k), x)
                held = []
            it += v
            st = (Ins(f"buffer_store_dwordx4 {vr(T,4)}, v{V_ST}, {sq(S_ALL)}, s{S_ST0 if pc < 4 else S_ST1} offen offset:{(pc&3)*1024} sc1", 1, "vm", ("st", ch)), rdy)
            if n_p % c.st_group == c.st_group - 1:
                it.append(st)
            else:
                held.append(st)
        return it
    tail = []
    st_last = {}
    for ch in range(7):
        it = chunk_out(ch)
        lo = max(cur + 1, it[2][1])
        if ch < 6:
            for k in range(6):
                x, e = it[2 + 13 * k]
                it[2 + 13 * k] = (x, max(e, lo + min(c.st_pace, (end(nO0 + 2 * ch + 3) - 36 - lo) // 5) * k))
            cur = tl.chain(it, lo, end(nO0 + 2 * ch + 3) - (26 if not c.st_pace else 22))[-1][0]
            st_last[ch] = cur
        else:
            early = it[:2 + 3 * 13]
            if c.chain:
                tl.chain(early, lo, NM - 1)
                tail = [x for x, _ in it[len(early):]]
            else:
                tail = [x for x, _ in it]

    sig = sorted(set(c.flags) | {6})
    assert len(sig) <= 6
    LASTBIT = 1 << (5 * sig.index(6))
    tab = sum(sig.index(min(x for x in sig if x >= ch)) << (4 * ch) for ch in range(7))
    VF2, VTK, VAT = 233, 234, 235
    PRG, T0, T1, T2, CNT = f"s{S_SPIN}", f"s{S_ACC}", f"s{S_D1}", f"s{S_T2}", f"s{S_D0}"
    claim = f"buffer_atomic_add v{VAT}, v{VF2}, {sq(S_ALL)}, s{S_FLR} offen sc0 sc1"
    read2 = [f"v_readlane_b32 {PRG}, v{VAT}, 0", f"v_readlane_b32 s{S_TKT}, v{VAT}, 1"]
    lanes2 = [f"v_lshrrev_b32 v{VTK}, 4, v{V_ST}", f"v_lshrrev_b32 v{VF2}, 5, v{V_ST}", f"v_min_u32 v{VF2}, 1, v{VF2}",
              f"v_lshlrev_b32 v{VF2}, 28, v{VF2}", f"v_lshl_add_u32 v{VF2}, v{VTK}, 2, v{VF2}", f"v_mov_b32 v{VAT}, v{VTK}"]
    def decode(b):
        dst = f"s{S_DST+b}"
        return [f"s_mul_i32 {T1}, s{S_TKT}, 43", f"s_lshr_b32 {T1}, {T1}, 8", f"s_mul_i32 {T0}, {T1}, 6", f"s_sub_u32 {T0}, s{S_TKT}, {T0}",
                f"s_and_b32 {T2}, {T1}, 1", f"s_mul_i32 {T2}, {T2}, s{S_PG+1}", f"s_add_u32 s{S_SRC}, s{S_PG}, {T2}", f"s_lshl_b32 {T2}, {T1}, 18",
                f"s_add_u32 s{S_SRC}, s{S_SRC}, {T2}", f"s_lshl_b32 {T2}, {T0}, 10", f"s_add_u32 s{S_SRC}, s{S_SRC}, {T2}",
                f"s_lshl_b32 {T1}, {T1}, 2", f"s_lshr_b32 {T2}, {tab}, {T1}", f"s_and_b32 {T2}, {T2}, 15", f"s_mul_i32 {T2}, {T2}, 5",
                f"s_lshl_b32 s{S_NEED}, 16, {T2}",
                f"s_lshr_b32 {T2}, s{S_ROT}, {T1}", f"s_and_b32 {T2}, {T2}, 15", f"s_lshl_b32 {T2}, {T2}, 7", f"s_add_u32 {dst}, s{S_OUTB}, {T2}",
                f"s_and_b32 {T2}, {T0}, 1", f"s_lshl_b32 {T2}, {T2}, 6", f"s_add_u32 {dst}, {dst}, {T2}",
                f"s_lshr_b32 {T2}, {T0}, 1", f"s_mul_i32 {T2}, {T2}, 28672", f"s_add_u32 {dst}, {dst}, {T2}"]
    def loads(b):
        o = []
        for h in range(16):
            o.append(f"buffer_load_dwordx4 {ar(64*b+4*h,4)}, v{V_ST}, {sq(S_ALL)}, s{S_SRC} offen sc1")
            if h < 15:
                o.append(f"s_add_u32 s{S_SRC}, s{S_SRC}, {16384 + 1024 * (((h + 1) & 2) - (h & 2))}")
        return o
    def flag(ch):
        return [Ins(f"v_mov_b32 v{V_FV}, {1 << (5 * sig.index(ch))}"),
                Ins(f"buffer_atomic_add v{V_FV}, v{V_FLW}, {sq(S_ALL)}, s{S_FLR} offen sc1", 1, "vm", ("fl", ch))]
    tail_flags = []
    for ch in c.flags:
        g = st_last[ch] + c.flag_delay
        if g + 10 < NM:
            tl.chain([Ins("", 1, "waitv", {("st", ch)})] + flag(ch), g, g + 20)
        else:
            tail_flags.append(ch)
    tail_loads = []
    if c.early is not None:
        tO = lambda t: at(nO0 + 2 * t)
        tl.chain(L(lanes2), tO(c.early - 0.6), tO(c.early) - 1)
        tl.chain([Ins(claim, 1, "vm", "claim")], tO(c.early), tO(c.early + 0.15))
        g = tO(c.early + c.early_wait)
        ps = tl.chain([Ins("", 1, "waitv", {"claim"})] + L(read2), g, g + 12)
        dec = decode(0)
        rdy = [f"s_andn2_b32 {T2}, s{S_NEED}, {PRG}", f"s_min_u32 {T2}, {T2}, 1", f"s_sub_u32 s{S_PEND}, 1, {T2}",
               f"s_lshl_b32 {T2}, {T2}, 28", f"s_add_u32 s{S_SRC}, s{S_SRC}, {T2}"]
        ps = tl.chain(L(dec[:16] + rdy + dec[16:]), ps[-1][0] + 1, ps[-1][0] + 60)
        cur = ps[20][0] - c.load_gap + 1
        ld = [Ins(t, 1, "vm", "R") if t.startswith("buffer") else Ins(t) for t in loads(0)]
        while ld:
            lo = cur + c.load_gap
            if lo >= NM - 3:
                tail_loads = ld
                break
            rng = range(lo, min(lo + 6, NM - 2))
            cur = min(rng, key=lambda k: (tl.gaps[k].added(ld[0], 1), k))
            tl.gaps[cur].mem.append(ld[0])
            if len(ld) > 1:
                tl.chain([ld[1]], cur + 1, min(cur + c.load_gap - 1, NM - 1))
            ld = ld[2:]

    if c.stamps:
        for k, n in enumerate(c.stamps):
            tl.gaps[beg(n)].lead[0:0] = [Ins(t) for t in stamp(k + 1 + 6 * c.pstamps)]
    lin = tl.linear()
    ns = len(c.stamps) + 1 + 6 * c.pstamps if c.stamps else 0
    ST = lambda k: [Ins(t) for t in stamp(ns + k)] if c.stamps else []

    I = lambda *ts: [Ins(t) for t in ts]
    lin += I("s_nop 7") + tail + I("s_waitcnt lgkmcnt(0)") + ST(0) + tail_loads
    for ch in tail_flags:
        lin += [Ins("", 1, "waitv", {("st", ch)})] + flag(ch)
    SEL, ACC = 0, 24
    lin += I(f"v_bfe_u32 v16, v{V_ST}, 4, 4", f"v_lshrrev_b32 v17, 8, v{V_ST}",
             "v_and_b32 v18, 1, v16", "v_lshlrev_b32 v18, 4, v18", "v_mov_b32 v19, 0x3f80", "v_lshlrev_b32 v19, v18, v19",
             "v_lshrrev_b32 v18, 1, v16", "v_and_b32 v20, 2, v18", "v_sub_u32 v17, v17, v20",
             "v_and_b32 v18, 1, v18", "v_lshrrev_b32 v20, 3, v16", "v_lshl_add_u32 v18, v20, 1, v18",
             "v_lshl_add_u32 v18, v17, 2, v18")
    for r in range(8):
        lin += I(f"v_cmp_eq_u32 vcc, {r}, v18", "s_nop 1", f"v_cndmask_b32 v{SEL+r}, 0, v19, vcc")
    if c.early is None:
        lin += I(*lanes2) + I(f"s_mov_b32 s{S_PEND}, 0")
    else:
        lin += I(f"v_mov_b32 v{VAT}, s{S_PEND}")
    lin += I(f"s_mov_b32 {T0}, {LASTBIT}", f"v_writelane_b32 v{VAT}, {T0}, 0")
    lin += [Ins("", 1, "waitv", {("st", 6)}), Ins(claim, 1, "vm", ("fl", 6))] + ST(1)
    resolve_waits(lin)
    verify(lin, steps, slot_of, xslots, c.nx)
    texts = [x.text for x in lin]
    T = lambda xs: [x.text for x in xs]
    def reduce(b, wait):
        a, o = ACC + 16 * b, []
        for h in range(16):
            if wait:
                o += [f"s_waitcnt vmcnt({15-h})"]
            for e in range(2):
                d = vr(a + 4 * e, 4)
                o += [f"{MF} {d}, {vr(SEL+4*e,4)}, {ar(64*b+4*h,4)}, {d if h else 0}"]
        o += ["s_nop 6"] + [f"v_cvt_pk_bf16_f32 v{a+8+k}, v{a+2*k}, v{a+2*k+1}" for k in range(4)]
        return o + [f"buffer_store_dwordx4 {vr(a+8,4)}, v{V_OUT}, {sq(S_OUT)}, s{S_DST+b} offen {c.pol_out}"]
    texts += [f"s_mov_b32 {CNT}, 0", f"s_lshl_b32 s{S_PEND+1}, s{S_PEND}, 8", f"s_mov_b32 {T1}, s{S_TKT}", "s_waitcnt vmcnt(0)"] + read2 + \
             ["s_nop 0", f"s_add_u32 {PRG}, {PRG}, {LASTBIT}"]
    if c.early is not None:
        texts += [f"s_cmp_eq_u32 s{S_PEND}, 1", "s_cbranch_scc1 L_take1", f"s_mov_b32 s{S_TKT}, {T1}"]
    for b in range(2):
        y = 1 - b
        texts += [f"L_take{b}:", f"s_cmp_ge_u32 s{S_TKT}, 42", f"s_cbranch_scc1 L_last{y}"] + decode(b)
        texts += [f"s_andn2_b32 {T0}, s{S_NEED}, {PRG}", f"s_cbranch_scc0 L_go{b}",
                  f"s_cmp_eq_u32 s{S_PEND}, 0", f"s_cbranch_scc1 L_poll{b}"] + reduce(y, True) + [f"s_mov_b32 s{S_PEND}, 0"]
        texts += [f"L_poll{b}:"] + ([f"s_sleep {c.sleep}"] if c.sleep else []) + [
                  f"v_mov_b32 v{V_POLL}, 0", f"buffer_atomic_add v{V_POLL}, v{V_FLW}, {sq(S_ALL)}, s{S_FLR} offen sc0 sc1",
                  "s_waitcnt vmcnt(0)", f"v_readfirstlane_b32 {PRG}, v{V_POLL}", f"s_add_u32 {CNT}, {CNT}, 1",
                  f"s_cmp_ge_u32 {CNT}, {c.spin_max}", f"s_cselect_b32 {PRG}, -1, {PRG}",
                  f"s_andn2_b32 {T0}, s{S_NEED}, {PRG}", f"s_cbranch_scc1 L_poll{b}"]
        ld = loads(b)
        texts += [f"L_go{b}:", f"v_mov_b32 v{VAT}, v{VTK}"] + ld[:2 * c.claim_at] + [claim] + ld[2 * c.claim_at:]
        if c.stamps:
            texts += [f"s_add_u32 s{S_PEND+1}, s{S_PEND+1}, 1"]
        texts += [f"s_cmp_eq_u32 s{S_PEND}, 0", f"s_mov_b32 s{S_PEND}, 1", f"s_cbranch_scc1 L_got{b}", "s_waitcnt vmcnt(17)"] + reduce(y, False)
        texts += [f"s_waitcnt vmcnt({17 - c.claim_at})", f"s_branch L_rd{b}", f"L_got{b}:", f"s_waitcnt vmcnt({16 - c.claim_at})", f"L_rd{b}:"] + read2 + ["s_nop 1"]
        if b == 1:
            texts += ["s_branch L_take0"]
    for y in range(2):
        texts += [f"L_last{y}:", f"s_cmp_eq_u32 s{S_PEND}, 0", "s_cbranch_scc1 L_done"] + reduce(y, True)
        if y == 0:
            texts += ["s_branch L_done"]
    texts += ["L_done:"]
    if c.stamps:
        texts += [f"v_writelane_b32 v{V_STAMP}, s{S_PEND+1}, 62", f"v_writelane_b32 v{V_STAMP}, s{S_TOT}, 63"] + T(ST(2))
    if c.stamps:
        texts += stamp(ns + 3) + ["s_waitcnt vmcnt(0)"] + stamp(ns + 4)
        if c.diag is not None:
            lane = c.diag if c.diag >= 0 else ns + 5 + c.diag
            texts += ["s_nop 1", f"v_readlane_b32 s40, v{V_STAMP}, {lane}", f"v_readlane_b32 s41, v{V_STAMP}, 0", "s_nop 3",
                      "s_sub_u32 s40, s40, s41", "s_lshl_b32 s40, s40, 2", "s_add_u32 s40, s40, 10000",
                      "L_diag:", "s_sleep 1", "s_memrealtime s[42:43]", "s_waitcnt lgkmcnt(0)", "s_sub_u32 s42, s42, s41",
                      "s_cmp_lt_u32 s42, s40", "s_cbranch_scc1 L_diag"]
        texts += [
                  f"v_lshrrev_b32 v8, 2, v{V_ST}", "s_lshl_b32 s3, s2, 8", f"s_add_u32 s3, s3, {STAMP_AT}",
                  f"s_cmp_lg_u32 s{S_W}, 0", "s_cbranch_scc1 L_end", f"buffer_store_dword v{V_STAMP}, v8, {sq(S_ALL)}, s3 offen"]
    texts, probs = check_hazards(texts, fix=True)
    stats = dict(n=len(texts), nops=len(probs), cost=[tl.cost(beg(n), end(n)) for n in range(NS)], margin=[margin.get(m) for m in range(2, NS)],
                 defer=round(defer_end / 48, 2), stl=[round((st_last[k] - beg(nO0)) / 96, 2) for k in range(6)])
    texts += ["L_end:", "s_endpgm"]
    texts += ["L_dbgspin:", f"s_mov_b32 s{S_SPIN}, 0", "L_dspin:", f"buffer_load_dword v{V_PUB}, off, {sq(S_DBG)}, s{S_GRP} sc1",
              "s_waitcnt vmcnt(0)", f"v_cmp_gt_u32 vcc, 1, v{V_PUB}", f"s_add_u32 s{S_SPIN}, s{S_SPIN}, 1",
              f"s_cmp_ge_u32 s{S_SPIN}, {c.spin_max}", "s_cbranch_scc1 L_dbgback", "s_cbranch_vccnz L_dspin", "s_branch L_dbgback"]
    texts += ["L_stub0:"] + rare_path(0) + ["s_branch L_back0"]
    for j in range(1, 16):
        texts += [f"L_stub{j}:", f"s_call_b64 s[{S_RET}:{S_RET+1}], L_rare{j&1}", f"s_branch L_back{j}"]
    for par in range(2):
        texts += [f"L_rare{par}:"] + rare_path(par + 2) + [f"s_setpc_b64 s[{S_RET}:{S_RET+1}]"]
    return texts, stats, probs

def verify(lin, steps, slot_of, xslots, nx):
    pending, lq, vq = {}, [], []
    issued, landed, visible = {}, set(), set()
    last_epoch, epoch, in_slot, cnt = {}, 0, {}, {}
    def refill(m):
        s = slot_of[m]
        old = in_slot.get(s)
        if old is None:
            for kc in xslots.get(s, ()):
                assert cnt.get(("X", kc), 0) == 6 and last_epoch[("X", kc)] < epoch, ("slot under x", m)
        elif old != m:
            assert cnt.get(old, 0) == (16 if steps[old][0] == "K" else 32), ("slot reused early", m, old)
            assert last_epoch[old] < epoch, ("slot reuse without barrier", m, old)
        in_slot[s] = m
    for ins in lin:
        t = ins.text
        if ins.tag == "ds" and t.startswith("ds_write"):
            m = ins.meta[1]
            assert ("G", m) in landed and issued[("G", m)] == 4
            refill(m)
            lq.append(([], ins.meta))
        elif ins.tag == "vm":
            vq.append(ins.meta)
            issued[ins.meta] = issued.get(ins.meta, 0) + 1
            landed.discard(ins.meta)
            if isinstance(ins.meta, tuple) and ins.meta[0] == "X" and ins.meta[1] >= nx:
                assert cnt.get(("X", ins.meta[1] - nx), 0) == 6, ("x region reused early", ins.meta)
            if isinstance(ins.meta, tuple) and ins.meta[0] == "fl":
                assert ("st", ins.meta[1]) in landed and issued[("st", ins.meta[1])] == 6, ins.meta
            if isinstance(ins.meta, tuple) and ins.meta[0] == "S":
                refill(ins.meta[1])
        elif t.startswith("s_waitcnt"):
            mv = re.search(r"vmcnt\((\d+)\)", t)
            if mv:
                k = max(0, len(vq) - int(mv.group(1)))
                done, vq = vq[:k], vq[k:]
                landed |= {d for d in done if d not in vq}
            ml = re.search(r"lgkmcnt\((\d+)\)", t)
            if ml:
                k = max(0, len(lq) - int(ml.group(1)))
                done, lq = lq[:k], lq[k:]
                for rs, tok in done:
                    for r in rs:
                        pending.pop(r, None)
                    key = tok // 16 if isinstance(tok, int) else tok
                    cnt[key] = cnt.get(key, 0) + 1
                    last_epoch[key] = epoch
                    if isinstance(tok, tuple) and tok[0] == "SW" and cnt[key] == 4:
                        landed.add(("S", tok[1]))
                        issued[("S", tok[1])] = 4
        elif t == "s_barrier":
            visible |= {d for d in landed if not (isinstance(d, tuple) and d[0] == "S") or issued[d] == 4}
            epoch += 1
        elif ins.tag == "ds":
            wr, tok = rw(t)[1], ins.meta
            if isinstance(tok, int):
                assert ("S", tok // 16) in visible, ("read before visible", tok)
            else:
                assert tok in landed and issued[tok] == 6, ("x read before landed", tok)
            lq.append((wr, tok))
            for r in wr:
                pending[r] = tok
        elif t.startswith("v_mfma"):
            for r in rw(t)[2]:
                assert r not in pending, ("mfma reads in-flight fragment", t)
        assert len(vq) <= 63, "vmcnt overflow"

HEADER = """;
; (query row = lane & 15), so each MFMA result feeds the next product as its B operand without shuffles:
; wq, K, V and wo stream through a ring of LDS slots (LDS-DMA, padded layouts, transposing reads).
; denominator is range-checked; when it leaves the safe range the tile is redone against the true row max
; and O and l are rescaled (L_stub*, L_rare*).
; counters that head 0 clears at the start of the launch (d_debug carries that announcement), and summed in
; fp32 by whichever wave claims the next piece. Head 0 also picks, by a race of scalar loads, the half of the
; scratch page that answers faster; either choice gives the same result.
; L_pad*: never-taken branches in the first line of each 4 KiB code page, visited once with EXEC = 0 while the
; first loads are in flight so that those lines are in the instruction cache.
"""

def add_pads(main):
    import subprocess, tempfile, os
    i0, i1 = main.index("L_main:"), main.index("L_done:")
    with tempfile.TemporaryDirectory() as d:
        labels = sorted({x for t in main for x in re.findall(r"\bL_\w+", t)} - {t[:-1] for t in main[i0:i1] if t.endswith(":")})
        open(d + "/a.s", "w").write('.amdgcn_target "amdgcn-amd-amdhsa--gfx950"\n.text\n' + "\n".join(main[i0:i1]) + "\n" + "".join(x + ":\n" for x in labels))
        subprocess.run(["clang", "-x", "assembler", "-target", "amdgcn-amd-amdhsa", "-mcpu=gfx950", "-c", d + "/a.s", "-o", d + "/a.o"], check=True)
        dis = subprocess.run(["llvm-objdump", "-d", d + "/a.o"], capture_output=True, text=True).stdout
    addr = [int(x, 16) for x in re.findall(r"// ([0-9A-F]{12}):", dis)]
    body = [k for k in range(i0, i1) if not main[k].endswith(":")]
    assert len(addr) == len(body)
    where, shift, page = [], 0, 1
    for n, k in enumerate(body):
        a = addr[n] + shift
        if a < page * 4096:
            continue
        free = main[k - 1].startswith("v_mfma") and not main[k].startswith(("s_", "buffer_"))
        nxt = addr[n + 1] + shift if n + 1 < len(body) else a + 64
        if free or nxt > page * 4096 + 56:
            where.append(k)
            shift += 4
            page += 1
    out, n = [], 0
    for k, t in enumerate(main):
        if n < len(where) and k == where[n]:
            out += [f"L_pad{n}:", "s_cbranch_execz " + (f"L_pad{n+4}" if n + 4 < len(where) else "L_main")]
            n += 1
        out.append(t)
    return out, len(where)

def emit(c, path):
    main, stats, probs = build_main(c)
    if c.pads:
        main, stats["pads"] = add_pads(main)
    K1 = NAME + "_kernel"
    ref = open("cdna_kernels/" + NAME + ".s.ref").read().split("\n")
    s = "\n".join(ref[:14]) + "\n" + HEADER + "; @launch grid=(256,1,1) block=(256,1,1) lds=163840\n"
    s += '.amdgcn_target "amdgcn-amd-amdhsa--gfx950"\n.text\n'
    s += f".globl {K1}\n.p2align 8\n.type {K1},@function\n{K1}:\n"
    s += "\n".join(x if x.endswith(":") else "    " + " ".join(x.split()) for x in main) + "\n"
    if c.code_pf:
        s += ".fill 2048, 4, 0xbf810000\n"
    s += f""".section .rodata,"a"
.p2align 6
.amdhsa_kernel {K1}
  .amdhsa_next_free_vgpr 512
  .amdhsa_next_free_sgpr 102
  .amdhsa_accum_offset 256
  .amdhsa_group_segment_fixed_size 0
  .amdhsa_kernarg_size 104
  .amdhsa_user_sgpr_count 2
  .amdhsa_user_sgpr_kernarg_segment_ptr 1
  .amdhsa_system_sgpr_workgroup_id_x 1
  .amdhsa_float_denorm_mode_32 3
.end_amdhsa_kernel
"""
    open(path, "w").write(s)
    if c.code_pf:
        import subprocess, tempfile
        with tempfile.TemporaryDirectory() as d:
            open(d + "/a.s", "w").write(s.replace(".p2align 12", ""))
            subprocess.run(["clang", "-x", "assembler", "-target", "amdgcn-amd-amdhsa", "-mcpu=gfx950", "-c", d + "/a.s", "-o", d + "/a.o"], check=True)
            hdr = subprocess.run(["llvm-objdump", "-h", d + "/a.o"], capture_output=True, text=True).stdout
        size = int(re.search(r"\.text\s+([0-9a-f]+)", hdr).group(1), 16)
        assert size >= 32 * 2304 + 512, "prefetched range runs past the code"
    return stats, probs

if __name__ == "__main__":
    c = Cfg()
    if "R1" in sys.argv:
        sys.argv.remove("R1")
        c.rot, c.nx, c.pro_order, c.nW = 1, 3, "X0 S0 S1 X1 X2 S2", 2
        c.x_issue = {3: 0.6, 4: 2.3, 5: 3.62, 6: 4.62}
        c.x_read = {1: 1.2, 2: 1.56, 3: 3.25, 4: 4.25, 5: 5.25, 6: 6.25}
        c.kv_early = [5.7, 6.9, 8.1, 9.3, 10.7, 11.8, 12.9]
    if "R2" in sys.argv:
        sys.argv.remove("R2")
        c.rot, c.nx, c.pro_order, c.nW = 1, 3, "X0 S0 S1 X1 X2 S2", 2
        c.x_issue = {3: 0.6, 4: 2.0, 5: 2.5, 6: 3.1}
        c.x_read = {1: 1.15, 2: 1.5, 3: 2.15, 4: 3.3, 5: 3.65, 6: 4.3}
        c.kv_early = [4.8, 6.2, 7.6, 9.0, 10.6, 11.8, 13.0]
        c.kv_step, c.st_pace, c.flag_delay, c.wo_rot = 14, 16, 60, 2
        c.early, c.load_gap, c.flags = 4.5, 9, (0, 1, 2, 4, 5)
    if "R3" in sys.argv:
        sys.argv.remove("R3")
        c.rot, c.nx, c.pro_order, c.nW = 1, 3, "X0 S0 S1 X1 X2 S2", 2
        c.x_issue = {3: 0.6, 4: 2.3, 5: 3.62, 6: 4.62}
        c.x_read = {1: 1.2, 2: 1.56, 3: 3.25, 4: 4.25, 5: 5.25, 6: 6.25}
        c.kv_early = [5.7, 6.9, 8.1, 9.3, 10.7, 11.8, 12.9]
        c.kv_step, c.st_pace, c.flag_delay, c.wo_rot = 12, 16, 60, 2
        c.early, c.load_gap, c.flags = 4.5, 9, (0, 1, 2, 4, 5)
    if "R4" in sys.argv:
        sys.argv.remove("R4")
        c.rot, c.nx, c.pro_order, c.nW, c.pro_setup = 1, 3, "X0 S0 S1 X1 X2 S2", 2, True
        c.x_issue = {3: 0.6, 4: 2.3, 5: 3.62, 6: 4.62}
        c.x_read = {1: 1.2, 2: 1.56, 3: 3.25, 4: 4.25, 5: 5.25, 6: 6.25}
        c.staged = [(5.0, 39, 0)]
        c.kv_early = [6.1, 7.2, 8.3, 9.4, 10.7, 11.8, 12.9]
        c.kv_knee = (35, 30.4)
        c.kv_step, c.st_pace, c.flag_delay, c.wo_rot = 12, 16, 60, 2
        c.early, c.load_gap, c.flags = 4.5, 9, (0, 1, 2, 4, 5)
    for kv in sys.argv[2:]:
        k, v = kv.split("=", 1)
        setattr(c, k, eval(v))
    stats, probs = emit(c, sys.argv[1])
    print(stats, "total cost", sum(stats["cost"]))
    for p in probs[:30]:
        print("  nop", p)
```

```python
import sys
from core2 import *

NAME = "concat_heads__mha_block_cached__gqa_block_cached__near_ridge"
BLK, SLOT = 8448, 16896
WPOS = [0, 1032, 2112, 3144]
MF = "v_mfma_f32_16x16x32_bf16"
OOB = 0x10000000
AUX = 0x1C0000
STAMP_AT = 0xF800000

class Cfg:
    D = 6
    NF = 12
    pol_x = ""
    pol_wq = ""
    pol_kv = "nt"
    pol_wo = ""
    pol_out = ""
    rot = 0
    nW = 10
    nx = 2
    w_la = 3
    pro_order = "X0 S0 S1 X1 S2"
    pro_first = 10
    pro_hop = 12
    pro_n = 22
    x_issue = {2: 0.5, 3: 2.3, 4: 4.3, 5: 6.0, 6: 7.2}
    x_read = {1: 1.25, 2: 3.25, 3: 5.0, 4: 6.25, 5: 8.25, 6: 9.25}
    kv_early = [3.5, 9.7, 10.4, 11.1, 11.8, 12.5, 13.2]
    kv_step = 12
    kv_last = 42.0
    kv_knee = None
    staged = []
    wo_at = None
    wo_la = 6
    back = 20
    slack = 40
    bar_q = 1
    bar_a = 2
    bar_o = 2
    bar_late = 99
    clump = None
    pro_setup = False
    chain = True
    ones_at = 12
    TH = 0x4B800000
    TL = 0x33800000
    code_pf = True
    pads = True
    wo_rate = 1.0
    wo_rate2 = 0.5
    wo_gap = 3
    wo_rot = 1
    races = 6
    race_at = 2.6
    race_skip = 10
    race_len = 40
    race_step = 2
    race_clamp = 4
    force = None
    flags = (1, 2, 3, 4, 5)
    flag_delay = 80
    sleep = 0
    early = ()
    early_wait = 0.6
    load_gap = 12
    claim_at = 0
    st_group = 1
    st_pace = 0
    touch_wo = ()
    spin_max = 40000
    stamps = False
    pstamps = False
    diag = None

S_X, S_WQ, S_K, S_V, S_WO, S_ALL, S_OUT, S_DBG = 8, 12, 16, 20, 24, 28, 76, 80
S_GRP, S_LEAD = 6, 7
S_W, S_LDSW, S_TL, S_LDSX = 32, 33, 34, 35
S_WQOFF, S_XOFF, S_WOOFF = 36, 43, 56
S_T0, S_T1, S_C, S_TH, S_RET = 50, 51, 52, 53, 54
S_SB, S_ST0, S_ST1, S_PRB, S_ACC, S_TOT = 63, 65, 66, 67, 68, 69
S_T2, S_SPIN, S_STAMP = 70, 71, 72
S_RA, S_RB, S_D0, S_D1 = 84, 85, 86, 87
S_PG, S_OUTB, S_ROT, S_SRC, S_NEED, S_NEW, S_TKT, S_FLR, S_PEND = 88, 90, 91, 92, 93, 94, 96, 97, 100
S_DST = 43
V_P, V_E, V_L, V_CHK, V_OV = 96, 120, 128, 136, 144
V_S, V_NEGM, V_SALT = 192, 216, 228
V_DWQ, V_DWU, V_DX, V_RW, V_RU, V_RX, V_SWQ, V_INI, V_DUM = 192, 193, 194, 195, 197, 199, 201, 201, 202
VL, VH5, VC31, VM, VG, V7, VA, VB, VC, VQ, VC4, VROW = range(204, 216)
V_DKV, V_RK, V_RT, V_DWO, V_RO, V_ST, V_FLW, V_OUT, V_STAMP = 240, 241, 244, 247, 248, 251, 252, 254, 255
V_RINV, V_FV, V_POLL, V_SW, V_PUB = 228, 231, 232, 143, 253
A_ONE, A_SEL, A_FR = 192, 204, 208

def steps_list(c):
    st = [("W", k) for k in range(c.nW)] + [("U", k) for k in range(14 - c.nW)] + [("K", 0)]
    for j in range(1, 16):
        st += [("K", j), ("V", j - 1)]
    return st + [("V", 15)] + [("O", k) for k in range(14)]

def sq(d):
    return f"s[{d}:{d+3}]"
def srd_tail(d, nbytes):
    return [f"s_mov_b32 s{d+2}, {nbytes}", f"s_mov_b32 s{d+3}, 0x00020000"]

def stamp(k):
    return [f"s_memrealtime s[{S_STAMP}:{S_STAMP+1}]", f"s_memtime s[{S_STAMP+2}:{S_STAMP+3}]", "s_waitcnt lgkmcnt(0)",
            f"v_writelane_b32 v{V_STAMP}, s{S_STAMP}, {k}", f"v_writelane_b32 v{V_STAMP}, s{S_STAMP+2}, {32+k}"]

def rot7(dst, src):
    a, b = S_RET, S_RET + 1
    return [f"s_mov_b32 s{a}, 0x06543210", f"s_mov_b32 s{b}, 0x10654321", f"s_lshl_b32 s{dst}, s{src}, 2",
            f"s_lshr_b64 s[{a}:{b}], s[{a}:{b}], s{dst}", f"s_mov_b32 s{dst}, s{a}"]

def prologue1(c):
    T0, T1 = f"s{S_T0}", f"s{S_T1}"
    o = ["s_cmp_ge_u32 s2, 256", "s_cbranch_scc1 L_end"]
    if c.stamps:
        o += [f"v_mov_b32 v{V_STAMP}, 0"] + stamp(0)
    o += ["s_bfe_u32 s3, s2, 0x10002", f"s_mul_i32 {T0}, s3, 40"]
    o += [f"s_load_dwordx8 s[88:95], s[0:1], {T0}", f"s_mov_b32 s7, {T0}"]
    if c.code_pf:
        o += ["s_getpc_b64 s[70:71]", "L_pc:", f"s_lshr_b32 {T1}, s2, 3", f"s_mul_i32 {T1}, {T1}, 2304", f"v_min_u32 v{VA}, 17, v0",
              f"v_lshlrev_b32 v{VA}, 7, v{VA}", f"s_add_u32 s70, s70, {T1}", "s_addc_u32 s71, s71, 0",
              Ins(f"global_load_dword v239, v{VA}, s[70:71]", 1, "vm", "dum")]
    o += [f"v_lshrrev_b32 v{VA}, 6, v0", f"v_and_b32 v{VL}, 63, v0", f"v_readfirstlane_b32 s{S_W}, v{VA}",
          "s_and_b32 s5, s2, 3", "s_lshl_b32 s5, s5, 2", "s_bfe_u32 s6, s2, 0x20003", "s_add_u32 s5, s5, s6", "s_lshr_b32 s4, s2, 5",
          f"v_lshrrev_b32 v{VH5}, 5, v{VL}", f"v_and_b32 v{VC31}, 31, v{VL}", f"v_lshlrev_b32 v{VC31}, 4, v{VC31}",
          f"v_lshrrev_b32 v{VM}, 3, v{VL}", f"v_lshrrev_b32 v{VG}, 4, v{VL}", f"v_and_b32 v{V7}, 7, v{VL}",
          f"s_lshr_b32 s98, s{S_W}, 1", f"s_and_b32 s99, s{S_W}, 1",
          f"v_lshlrev_b32 v{VA}, 1, v{VG}", f"v_xor_b32 v{VA}, v{VA}, v{V7}", f"v_lshlrev_b32 v{VA}, 4, v{VA}",
          f"s_lshl_b32 {T0}, s4, 2", f"s_add_u32 {T0}, {T0}, s{S_W}", f"s_mul_i32 {T0}, {T0}, 43008",
          f"v_mul_u32_u24 v{VB}, 896, v{VM}", f"v_add3_u32 v{V_DX}, v{VB}, v{VA}, {T0}",
          f"s_lshl_b32 {T0}, s99, 16", f"s_lshl_b32 {T1}, s5, 9", f"s_add_u32 s{S_D0}, {T0}, {T1}",
          f"s_lshl_b32 {T1}, s98, 15", f"s_add_u32 {T0}, s{S_D0}, {T1}",
          f"v_lshlrev_b32 v{VB}, 17, v{VH5}", f"v_add3_u32 v{V_DWQ}, v{VB}, v{VC31}, {T0}",
          f"s_mul_i32 s{S_LDSW}, s{S_W}, 4224", f"s_mul_i32 s{S_LDSX}, s{S_W}, 6144"]
    o += srd_tail(S_X, 8 * 172032) + srd_tail(S_WQ, 448 * 8192)
    if c.rot:
        o += [f"s_mul_i32 {T0}, s6, {(0, 2, 1, 0)[c.rot]}", f"s_add_u32 {T0}, {T0}, s4", f"s_mul_i32 {T1}, {T0}, 37", f"s_lshr_b32 {T1}, {T1}, 8",
              f"s_mul_i32 {T1}, {T1}, 7", f"s_sub_u32 {T0}, {T0}, {T1}"] + rot7(S_D1, S_T0)
        for k in range(7):
            o += [f"s_bfe_u32 {T0}, s{S_D1}, {0x40000 + 4*k}", f"s_lshl_b32 s{S_XOFF+k}, {T0}, 7"]
            if k < c.nW // 2:
                o += [f"s_lshl_b32 s{S_WQOFF+k}, {T0}, 19"]
        o += [f"s_lshl_b32 {T0}, s98, 2", f"s_lshr_b32 s{S_D1}, s{S_D1}, {T0}"]
        for k in range(c.nW // 2, 7, 2):
            o += [f"s_bfe_u32 {T0}, s{S_D1}, {0x40000 + 4*k}", f"s_lshl_b32 s{S_WQOFF+k}, {T0}, 19"]
    return o + ["s_waitcnt lgkmcnt(0)", f"s_mov_b64 s[{S_X}:{S_X+1}], s[88:89]", f"s_mov_b64 s[{S_WQ}:{S_WQ+1}], s[94:95]"]

def dwu(c):
    o = [f"v_lshlrev_b32 v{VB}, 4, v{V7}", f"v_lshl_add_u32 v{VB}, v{VH5}, 18, v{VB}", f"v_and_b32 v{VA}, 1, v{VM}",
         f"v_lshl_add_u32 v{VB}, v{VA}, 17, v{VB}", f"v_and_b32 v{VA}, 1, v{VG}", f"v_lshl_add_u32 v{VB}, v{VA}, 15, v{VB}"]
    if not c.rot:
        o += [f"s_lshl_b32 s{S_D1}, s98, 19", f"s_add_u32 s{S_D0}, s{S_D0}, s{S_D1}"]
    return o + [f"v_add_u32 v{V_DWU}, s{S_D0}, v{VB}"]

def prologue2(c):
    o = [f"s_load_dwordx2 s[{S_WO}:{S_WO+1}], s[0:1], s7 offset:32", f"s_load_dwordx2 s[{S_OUT}:{S_OUT+1}], s[0:1], 80",
         f"s_load_dwordx2 s[{S_DBG}:{S_DBG+1}], s[0:1], 88",
         f"s_load_dwordx2 s[{S_ALL}:{S_ALL+1}], s[0:1], 96",
         f"s_mov_b64 s[{S_K}:{S_K+1}], s[90:91]", f"s_mov_b64 s[{S_V}:{S_V+1}], s[92:93]",
         f"v_lshrrev_b32 v{VROW}, 2, v{VL}", f"v_and_b32 v{VROW}, 7, v{VROW}", f"v_and_b32 v{VC4}, 3, v{VL}",
         f"v_lshlrev_b32 v{VA}, 10, v{VROW}", f"v_and_b32 v{VB}, 1, v{VROW}", f"v_lshl_add_u32 v{VA}, v{VB}, 3, v{VA}",
         f"v_lshrrev_b32 v{VB}, 1, v{VROW}", f"v_lshl_add_u32 v{VA}, v{VB}, 6, v{VA}", f"v_lshl_add_u32 v{VA}, v{VC4}, 4, v{VA}",
         f"v_lshl_add_u32 v{V_RW}, v{VH5}, 9, v{VA}", f"v_lshl_add_u32 v{V_RU}, v{VH5}, 7, v{VA}",
         f"v_add_u32 v{V_RW+1}, {3*SLOT}, v{V_RW}", f"v_add_u32 v{V_RU+1}, {3*SLOT}, v{V_RU}",
         f"v_and_b32 v{VQ}, 15, v{VL}", f"v_lshlrev_b32 v{VA}, 7, v{VQ}", f"v_and_b32 v{VB}, 6, v{VL}", f"v_xor_b32 v{VB}, v{VB}, v{VG}",
         f"v_lshl_add_u32 v{VA}, v{VB}, 4, v{VA}", f"s_add_u32 s{S_T0}, s{S_LDSX}, {10*BLK}",
         f"v_add_u32 v{V_RX}, s{S_T0}, v{VA}", f"v_xor_b32 v{VA}, 64, v{VA}", f"v_add_u32 v{V_RX+1}, s{S_T0}, v{VA}"]
    o += srd_tail(S_K, 1 << 25) + srd_tail(S_V, 1 << 25) + srd_tail(S_ALL, OOB) + srd_tail(S_DBG, 256)
    o += srd_tail(S_WO, 4096 * 896) + srd_tail(S_OUT, 8 * 192 * 896 * 2)
    return o + dwu(c)

def deferred(c):
    D0, D1, T2 = f"s{S_D0}", f"s{S_D1}", f"s{S_T2}"
    kv = [
        f"s_lshl_b32 {D0}, s4, 4", f"s_add_u32 {D0}, {D0}, s5", f"s_lshl_b32 {D0}, {D0}, 18",
        f"s_lshl_b32 {D1}, s98, 13", f"s_add_u32 {D0}, {D0}, {D1}", f"s_lshl_b32 {D1}, s99, 11", f"s_add_u32 {D0}, {D0}, {D1}",
        f"v_lshlrev_b32 v{VA}, 12, v{VH5}", f"v_add3_u32 v{V_DKV}, v{VA}, v{VC31}, {D0}", f"v_lshlrev_b32 v{V_ST}, 4, v{VL}"]
    ini = [
        f"s_lshl_b32 {D0}, s3, 3", f"s_add_u32 {D0}, {D0}, s4", f"s_lshl_b32 {D0}, {D0}, 2", f"s_add_u32 {D0}, {D0}, s{S_W}",
        f"s_lshl_b32 s{S_PG}, {D0}, 21", f"s_lshr_b32 {D0}, {D0}, 2", f"s_lshl_b32 s{S_GRP}, {D0}, 4", f"s_add_u32 s{S_FLR}, s{S_PG}, {AUX}",
        f"s_min_u32 {D1}, s5, 1", f"s_lshl_b32 {D0}, {D1}, 28", f"s_add_u32 {T2}, s{S_FLR}, {D0}",
        f"s_or_b32 {D1}, s5, s{S_W}", f"s_min_u32 {D1}, {D1}, 1", f"s_lshl_b32 {D0}, {D1}, 28", f"s_add_u32 s{S_LEAD}, s{S_GRP}, {D0}",
        f"s_add_u32 s{S_PRB}, s{S_FLR}, {D0}",
        f"v_lshrrev_b32 v{VA}, 1, v{VL}", f"v_mul_u32_u24 v{VB}, {0x4000+256}, v{VA}", f"v_min_u32 v{V_DUM}, 1, v{VA}", f"v_min_u32 v{V_DUM+1}, 1, v{VA}",
        f"v_and_b32 v{VA}, 3, v{VL}", f"v_lshrrev_b32 v{VC}, 1, v{VA}", f"v_lshl_add_u32 v{VB}, v{VC}, 12, v{VB}",
        f"v_and_b32 v{VA}, 1, v{VL}", f"v_lshl_add_u32 v{VB}, v{VA}, 13, v{VB}",
        f"v_cmp_gt_u32 vcc, {2+2*c.races}, v{VL}", f"v_mov_b32 v{VC}, {OOB}", f"v_min_u32 v{VA}, 1, v{VL}",
        f"v_lshlrev_b32 v{V_FLW}, 28, v{VA}", f"v_cndmask_b32 v{V_INI}, v{VC}, v{VB}, vcc"]
    att = [f"s_mov_b32 s{S_C}, 0x3db8aa3b", f"s_mov_b32 s{S_TH}, {c.TH}", f"s_mov_b32 s{S_TL}, {c.TL}",
           f"v_mul_u32_u24 v{VA}, 1056, v{VROW}", f"v_lshl_add_u32 v{VA}, v{VC4}, 3, v{VA}",
           f"v_lshl_add_u32 v{V_RT}, v{VH5}, 9, v{VA}", f"v_lshl_add_u32 v{V_RO}, v{VH5}, 7, v{VA}",
           f"v_mul_u32_u24 v{VA}, 1056, v{V7}", f"v_and_b32 v{VB}, 1, v{VM}", f"v_lshl_add_u32 v{VA}, v{VB}, 9, v{VA}",
           f"v_lshl_add_u32 v{V_RK}, v{VG}, 4, v{VA}"]
    for base in (V_RK, V_RT, V_RO):
        att += [f"v_add_u32 v{base+1}, {3*SLOT}, v{base}", f"v_add_u32 v{base+2}, {6*SLOT}, v{base}"]
    att += [f"v_mov_b32 v{VB}, 0x3f803f80"]
    for t in range(3):
        att += [f"v_cmp_eq_u32 vcc, {t}, v{VC4}"] + [f"v_mov_b32 v{V_NEGM+4*t+r}, 0" for r in range(4)]
        att += [f"v_cndmask_b32 v{VA}, 0, v{VB}, vcc"] + [f"v_accvgpr_write_b32 a{A_ONE+4*t+r}, v{VA}" for r in range(4)]
    out = [
        f"s_lshl_b32 {D0}, s5, 2", f"s_add_u32 {D0}, {D0}, s98", f"s_lshl_b32 {D0}, {D0}, 4", f"s_add_u32 {D0}, {D0}, s99",
        f"s_mul_i32 {D0}, {D0}, {4*896}", f"v_mul_u32_u24 v{VA}, 7168, v{VM}", f"v_lshlrev_b32 v{VB}, 4, v{V7}",
        f"v_add3_u32 v{V_DWO}, v{VA}, v{VB}, {D0}",
        f"v_mul_u32_u24 v{VA}, 1792, v{V7}", f"v_lshl_add_u32 v{VA}, v{VH5}, 4, v{VA}", f"v_and_b32 v{VB}, 1, v{VG}",
        f"v_lshl_add_u32 v{VA}, v{VB}, 5, v{VA}", f"v_and_b32 v{VC}, 1, v{VM}", f"v_lshl_add_u32 v{V_OUT}, v{VC}, 3, v{VA}",
        f"v_xor_b32 v{VB}, v{VB}, v{VC}", f"v_lshrrev_b32 v{VA}, 1, v{V7}", f"v_lshl_add_u32 v{VA}, v{VB}, 2, v{VA}",
        f"v_and_b32 v{VB}, 1, v{VL}", f"v_lshlrev_b32 v{VB}, 4, v{VB}", f"v_mov_b32 v{VC}, 0x3f80", f"v_lshlrev_b32 v{VB}, v{VB}, v{VC}"]
    for r in range(4):
        out += [f"v_cmp_eq_u32 vcc, {r}, v{VA}", "s_nop 1", f"v_cndmask_b32 v{VC}, 0, v{VB}, vcc", f"v_accvgpr_write_b32 a{A_SEL+r}, v{VC}"]
    if c.wo_rot == 1:
        out += rot7(S_ROT, 4)
    else:
        tabl = {2: 0x64206420, 3: 0x20520520}[c.wo_rot]
        out += [f"s_lshl_b32 {D0}, s4, 2", f"s_lshr_b32 {D0}, {tabl}, {D0}", f"s_and_b32 {D0}, {D0}, 15"] + rot7(S_ROT, S_D0)
    for k in range(7):
        out += [f"s_bfe_u32 {D0}, s{S_ROT}, {0x40000 + 4*k}", f"s_lshl_b32 s{S_WOOFF+k}, {D0}, 7"]
    out += [f"s_mul_i32 s{S_OUTB}, s4, 344064", f"s_mul_i32 {D0}, s3, 896", f"s_add_u32 s{S_OUTB}, s{S_OUTB}, {D0}",
            f"s_mul_i32 {D0}, s{S_W}, {3*28672}", f"s_add_u32 s{S_OUTB}, s{S_OUTB}, {D0}",
            f"s_lshl_b32 s{S_SB}, s5, 14", f"s_and_b32 {D0}, s5, 2", f"s_lshl_b32 {D0}, {D0}, 10", f"s_add_u32 s{S_SB}, s{S_SB}, {D0}"]
    return kv, ini, att, out

def qacc(t, q):
    return ((t >> 1) * 3 + q) * 8 + (t & 1) * 4
def sreg(j, kt, q):
    return (V_SALT if (j == 0 and kt == 0) else V_S + 12 * kt) + q * 4
def preg(j, q):
    return V_P + (j & 1) * 12 + q * 4
def lreg(j):
    return V_L + (j & 1) * 4
def oreg(t, q):
    return ("v", V_OV + (t * 3 + q) * 4) if t < 4 else ("a", (t * 3 + q) * 4)
def oacc(ch, nt, q):
    return (96 if ch % 2 == 0 else 144) + (q * 4 + nt) * 4

def softmax_items(j, kt, tmp, qorder=(0, 1, 2)):
    out, pend = [], None
    for q in qorder:
        for hf in range(2):
            e = V_E + 2 * (tmp[0] % 4)
            tmp[0] += 1
            out.append(Ins(f"v_exp_f32 v{e}, v{sreg(j,kt,q)+2*hf}", 2, meta=q))
            if pend:
                out.append(pend)
            out.append(Ins(f"v_exp_f32 v{e+1}, v{sreg(j,kt,q)+2*hf+1}", 2, meta=q))
            pend = Ins(f"v_cvt_pk_bf16_f32 v{preg(j,q)+2*kt+hf}, v{e}, v{e+1}", 1, meta=q)
    return out, pend

def ones_mfma(j):
    o = []
    for q in range(3):
        cin = vr(lreg(j), 4) if q else (vr(lreg(j - 1), 4) if j else "0")
        o.append(f"{MF} {vr(lreg(j),4)}, {ar(A_ONE+4*q,4)}, {vr(preg(j,q),4)}, {cin}")
    return o

def rare_path(j):
    D, F, T = (138, None, 141) if j == 0 else (228, 231, 234)
    o = ["s_nop 7", "s_nop 7"]
    for q in range(3):
        a, b = sreg(j, 0, q), sreg(j, 1, q)
        o += [f"v_max3_f32 v{D+q}, v{a}, v{a+1}, v{a+2}", f"v_max3_f32 v{D+q}, v{D+q}, v{a+3}, v{b}",
              f"v_max3_f32 v{D+q}, v{D+q}, v{b+1}, v{b+2}", f"v_max_f32 v{D+q}, v{D+q}, v{b+3}"]
    for op in ("v_permlane32_swap_b32", "v_permlane16_swap_b32"):
        o += [f"v_mov_b32 v{T+q}, v{D+q}" for q in range(3)] + ["s_nop 1"]
        o += [f"{op} v{T+q}, v{D+q}" for q in range(3)]
        o += [f"v_max_f32 v{D+q}, v{D+q}, v{T+q}" for q in range(3)]
    if j:
        o += [f"v_max_f32 v{D+q}, 0, v{D+q}" for q in range(3)]
        o += [f"v_exp_f32 v{F+q}, -v{D+q}" for q in range(3)]
    for q in range(3):
        tgt = [V_NEGM + 4 * q, sreg(j, 0, q), sreg(j, 1, q)] + ([sreg(1, 0, q)] if j == 0 else [])
        for a in tgt:
            o += [f"v_sub_f32 v{a+r}, v{a+r}, v{D+q}" for r in range(4)]
        if j:
            o += [f"v_mul_f32 v{lreg(j-1)+q}, v{lreg(j-1)+q}, v{F+q}"]
    tmp = [0]
    for kt in range(2):
        it, pend = softmax_items(j, kt, tmp)
        o += [x.text for x in it] + ["s_nop 0", pend.text]
    if j:
        for t in range(16):
            for q in range(3):
                f, a = oreg(t, q)
                if f == "v":
                    o += [f"v_mul_f32 v{a+r}, v{a+r}, v{F+q}" for r in range(4)]
                else:
                    o += [f"v_accvgpr_read_b32 v{T+r}, a{a+r}" for r in range(4)]
                    o += [f"v_mul_f32 v{T+r}, v{T+r}, v{F+q}" for r in range(4)]
                    o += [f"v_accvgpr_write_b32 a{a+r}, v{T+r}" for r in range(4)]
    o += ["s_nop 1"] + ones_mfma(j) + ["s_nop 7", "s_nop 7"]
    return check_hazards(o, fix=True)[0]

def order(mode):
    if mode == "A3":
        return [(f, q if f % 2 == 0 else 2 - q) for f in range(16) for q in range(3)]
    out = []
    for b in range(4):
        for qi in range(3):
            q = qi if b % 2 == 0 else 2 - qi
            rng = range(4) if qi % 2 == 0 else range(3, -1, -1)
            out += [(4 * b + i, q) for i in rng]
    return out

def build_main(c):
    steps = steps_list(c)
    NS = len(steps)
    idx = {s: n for n, s in enumerate(steps)}
    tl = Timeline()
    G, USE, LAST, ONES, FIN = {}, {}, {}, {}, {}
    fb = lambda F: A_FR + 4 * (F % c.NF)
    def mode(n):
        ty, k = steps[n]
        return "CH" if c.chain and (ty in "UK" or (ty == "O" and k >= 2)) else "A3"
    def ki(n, f):
        return (f & 3, f >> 2) if (mode(n) == "CH" or steps[n][0] == "U") else (f >> 2, f & 3)
    started = set()
    for n, (ty, k) in enumerate(steps):
        for m, (f, q) in enumerate(order(mode(n))):
            F = 16 * n + f
            if ty == "W":
                key, d, b, c0 = ("Q", f, q), vr(qacc(f, q), 4), ar((k * 3 + q) * 4, 4), "0"
            elif ty == "U":
                i, nt = ki(n, f)
                t = 4 * (k & 3) + nt
                key, d, b, c0 = ("Q", t, q), vr(qacc(t, q), 4), ar(((4 * (k >> 2) + c.nW + i) * 3 + q) * 4, 4), "0"
            elif ty == "K":
                kt, s = f >> 3, f & 7
                key, d, b, c0 = ("S", k, kt, q), vr(sreg(k, kt, q), 4), vr((s * 3 + q) * 4, 4), vr(V_NEGM + 4 * q, 4)
            elif ty == "V":
                fl, a = oreg(f, q)
                key, d, b, c0 = ("O", f, q), vr(a, 4, fl), vr(preg(k, q), 4), "0"
            else:
                i, nt = ki(n, f)
                s = (k & 1) * 4 + i
                key, d, b, c0 = ("P", k >> 1, nt, q), vr(oacc(k >> 1, nt, q), 4), vr((s * 3 + q) * 4, 4), "0"
            i_m = tl.add_mfma(f"{MF} {d}, {ar(fb(F),4)}, {b}, {d if key in started else c0}")
            started.add(key)
            FIN[key] = i_m
            if m % 3 == 0:
                G[16 * n + m // 3] = i_m
            USE.setdefault(F, i_m)
            LAST[F] = i_m
            if ty == "O":
                USE.setdefault(("B", s), i_m)
            if (ty, k) == ("K", 0):
                USE.setdefault(("QB", s), i_m)
            jn = None
            if ty == "V" and k < 15 and m == 3 * c.ones_at + 2:
                jn = k + 1
            if (ty, k) == ("K", 1) and m == 11:
                jn = 0
            if jn is not None:
                for t in ones_mfma(jn):
                    ONES[jn] = tl.add_mfma(t)
    NM = len(tl.mf)
    beg = lambda n: G[16 * n]
    end = lambda n: (G[16 * (n + 1)] - 1) if n + 1 < NS else NM - 1
    at = lambda x: min(NM - 1, beg(int(x)) + int((x - int(x)) * (end(int(x)) - beg(int(x)) + 1)))
    nK0, nV15, nO0 = idx[("K", 0)], idx[("V", 15)], idx[("O", 0)]

    bsteps = [n for n in range(0, nK0, c.bar_q)]
    if c.bar_q == 2:
        bsteps = [0] + list(range(1, nK0, 2))
    bsteps += [nK0] + list(range(nK0 + c.bar_a, nV15, c.bar_a))
    bsteps += list(range(nV15, NS - 1, c.bar_o)) + list(range(c.bar_late, nV15))
    bsteps = sorted(set(bsteps))
    bgap = {n: G[16 * (n + 1) - c.D] for n in bsteps}
    covers = {n: list(range(n + 1, (bsteps[i + 1] if i + 1 < len(bsteps) else NS - 1) + 1)) for i, n in enumerate(bsteps)}
    def freed(m):
        later = [n for n in bsteps if n >= m + 1]
        return bgap[later[0]] + 1 if later else NM

    xreg = lambda kc: [16, 13, 10][kc % c.nx] * BLK
    x_read = c.x_read
    def xfreed(kc):
        g = at(x_read[kc]) + 20 + 3 * (c.D + 2)
        return min(bgap[n] for n in bsteps if bgap[n] >= g) + 1
    xslots = {5: (5,), 6: (4, 5), 7: (4,), 8: (6,)} if c.nx == 3 else {6: (5,), 7: (5,), 8: (6,)}
    free_at = {s: max([-1] + [xfreed(kc) for kc in xslots.get(s, ())]) for s in range(9)}
    pro = [(t[0], int(t[1:]), p) for t in c.pro_order.split() for p in range(6 if t[0] == "X" else 4)]
    pro_s = [int(t[1:]) for t in c.pro_order.split() if t[0] == "S"]
    units = []
    def add(kind, i, x, pieces, step=4):
        units.append([at(x), step, kind, i, list(pieces)])
    rest = {}
    for kind, i, p in pro[c.pro_n:]:
        rest.setdefault((kind, i), []).append(p)
    for (kind, i), ps in rest.items():
        add(kind, i, 0.0, ps, 3)
    for m in range(max(pro_s) + 1, 14):
        add("S", m, max(0.03, m - c.w_la), range(4), 3)
    for kc, x in c.x_issue.items():
        add("X", kc, x, range(6), 3)
        if kc > c.nx:
            units[-1][0] = max(units[-1][0], at(x_read[kc - c.nx]) + 20 + 3 * (c.D + 2))
    staged = {m: r for x, m, r in c.staged}
    for x, m, r in c.staged:
        ks = (r + 15) // 12
        assert r + 16 <= 192 and (r >= 168 or x >= (ks + 1 if ks < c.nW else c.nW + 4 * ((ks - c.nW) // 4 + 1)))
        assert r + 16 <= 48 or m < 14 + len(c.kv_early)
        add("G", m, x, range(4), c.kv_step)
    for m, x in zip(range(14, 14 + len(c.kv_early)), c.kv_early):
        add("S", m, x, range(4), 6 if m in staged else c.kv_step)
    m0 = 14 + len(c.kv_early)
    knots = [(m0, 14.0)] + ([c.kv_knee] if c.kv_knee else []) + [(46, c.kv_last + 1)]
    for (ma, xa), (mb, xb) in zip(knots, knots[1:]):
        w = (xb - xa) / len([m for m in range(ma, mb) if m not in staged])
        x = xa
        for m in range(ma, mb):
            if m in staged:
                add("S", m, x + 0.01, range(4), 6)
            else:
                add("S", m, x, range(4), int(w * 12))
                x += w
    x = c.kv_last + 1
    for m in range(46, 60):
        x = c.wo_at[m - 46] if c.wo_at else max(x, m - c.wo_la)
        add("S", m, x, range(4), 3)
        x += c.wo_rate if x < 45 else c.wo_rate2
    units.sort(key=lambda u: u[0])
    slot_of, slot_lo = {}, {}
    def alloc(m):
        if m < 14:
            pool = list(range(c.w_la + 2))
        elif 13 not in slot_of:
            pool = list(range(c.w_la + 2, 9))
        else:
            pool = list(range(9))
        s = min(pool, key=lambda s: (free_at[s], s))
        slot_of[m], slot_lo[m] = s, free_at[s]
        free_at[s] = freed(m)
    for m in pro_s:
        alloc(m)
    for u in units:
        if u[2] == "S" and u[3] not in slot_of:
            alloc(u[3])
            u[0] = max(u[0], slot_lo[u[3]])
    units.sort(key=lambda u: u[0])

    def soff(reg, fixed, off):
        return Ins(f"s_add_u32 s{S_T0}, s{reg}, {off}" if c.rot else f"s_mov_b32 s{S_T0}, {fixed + off}")
    def dma(kind, i, p):
        if kind == "X":
            return [Ins(f"s_add_u32 m0, s{S_LDSX}, {xreg(i) + 1024*p}"), soff(S_XOFF + i, 128 * i, 7168 * p),
                    Ins(f"buffer_load_dwordx4 v{V_DX}, {sq(S_X)}, s{S_T0} offen {c.pol_x} lds", 1, "vm", ("X", i))]
        ty, k = steps[i]
        if kind == "G":
            o = [Ins(f"s_mov_b32 s{S_T1}, {k*16384}")] if p == 0 else []
            off = f" offset:{512*p}" if p else ""
            return o + [Ins(f"buffer_load_dwordx4 {ar(staged[i]+4*p,4)}, v{V_DKV}, {sq(S_K if ty == 'K' else S_V)}, s{S_T1} offen{off} {c.pol_kv}", 1, "vm", ("G", i))]
        base = slot_of[i] * SLOT
        if i in staged:
            sw = V_SW if i >= 14 + len(c.kv_early) else V_SWQ
            o = [Ins("", 1, "waitv", {("G", i)}), Ins(f"s_add_u32 s{S_T0}, s{S_LDSW}, {base}"), Ins(f"v_add_u32 v{sw}, s{S_T0}, v{V_ST}")] if p == 0 else []
            return o + [Ins(f"ds_write_b128 v{sw}, {ar(staged[i]+4*p,4)} offset:{1056*p}", 1, "ds", ("SW", i))]
        if ty in "WU":
            pos, off, v = (k >> 1, ((k & 1) * 32 + p) * 8192, V_DWQ) if ty == "W" else (c.nW // 2 + 2 * (k >> 2), p * 8192 + (k & 3) * 128, V_DWU)
            return [Ins(f"s_add_u32 m0, s{S_LDSW}, {base + WPOS[p]}"), soff(S_WQOFF + pos, pos << 19, off),
                    Ins(f"buffer_load_dwordx4 v{v}, {sq(S_WQ)}, s{S_T0} offen {c.pol_wq} lds", 1, "vm", ("S", i))]
        o = []
        if ty in "KV":
            g, sr, v, pol = 512 * p, (S_K if ty == "K" else S_V), V_DKV, c.pol_kv
            if p == 0:
                o.append(Ins(f"s_mov_b32 s{S_T1}, {k*16384}"))
        else:
            g, sr, v, pol = 896 * p, S_WO, V_DWO, c.pol_wo
            if p == 0:
                o.append(Ins(f"s_add_u32 s{S_T1}, s{S_WOOFF+(k>>1)}, {(k&1)*128*896}"))
        o.append(Ins(f"s_add_u32 m0, s{S_LDSW}, {base + 1056*p - g}"))
        off = f" offset:{g}" if g else ""
        o.append(Ins(f"buffer_load_dwordx4 v{v}, {sq(sr)}, s{S_T1} offen{off} {pol} lds", 1, "vm", ("S", i)))
        return o

    def reads(F):
        n, f = F // 16, F % 16
        ty, k = steps[n]
        s, r = slot_of[n], fb(F)
        win, base = s // 3, (s % 3) * SLOT
        if ty == "K":
            return [Ins(f"ds_read_b128 {ar(r,4)}, v{V_RK+win} offset:{base + (f>>3)*BLK + (f&7)*64}", 1, "ds", F)]
        if ty == "V":
            v, o0, dd = V_RT + win, base + f * 32, BLK
        elif ty == "W":
            v, o0, dd = V_RW + win, base + (f >> 1) * 64 + (f & 1) * 8, BLK
        else:
            i, nt = ki(n, f)
            o0, dd = (i >> 1) * BLK + (i & 1) * 512, 256
            if ty == "U":
                v, o0 = V_RU + win, o0 + base + (nt >> 1) * 64 + (nt & 1) * 8
            else:
                v, o0 = V_RO + win, o0 + base + nt * 32
        assert o0 + dd < 65536
        return [Ins(f"ds_read_b64_tr_b16 {ar(r,2)}, v{v} offset:{o0}", 1, "ds", F),
                Ins(f"ds_read_b64_tr_b16 {ar(r+2,2)}, v{v} offset:{o0+dd}", 1, "ds", F)]
    def xreads(kc):
        return [Ins(f"ds_read_b128 {ar(((2*kc+s)*3+q)*4,4)}, v{V_RX+s} offset:{xreg(kc) - 10*BLK + q*2048}", 1, "ds", ("X", kc))
                for s in range(2) for q in range(3)]

    P = lambda t: tl.put(-1, Ins(t) if isinstance(t, str) else t)
    PS = lambda k: [P(t) for t in stamp(k)] if c.pstamps else None
    for t in prologue1(c):
        P(t)
    PS(1)
    for e in pro[:c.pro_first]:
        for x in dma(*e):
            P(x)
    PS(2)
    for t in prologue2(c):
        P(t)
    PS(3)
    for e in pro[c.pro_first:c.pro_hop]:
        for x in dma(*e):
            P(x)
    if c.pads:
        for t in ["s_mov_b64 exec, 0"] + [x for w in range(3) for x in (f"s_cmp_eq_u32 s{S_W}, {w}", f"s_cbranch_scc1 L_pad{w}")] + \
                 ["s_branch L_pad3", ".p2align 12", "L_main:", "s_mov_b64 exec, -1"]:
            P(t)
    kv, ini, att, out = deferred(c)
    init = Ins(f"buffer_store_dwordx2 {vr(V_DUM,2)}, v{V_INI}, {sq(S_ALL)}, s{S_T2} offen sc1", 1, "vm", "reset")
    setup = (ini if c.clump else ini + kv + att + out) if c.pro_setup else []
    share = -(-len(setup) // (c.pro_n - c.pro_hop))
    for e in pro[c.pro_hop:c.pro_n]:
        for x in dma(*e) + setup[:share]:
            P(x)
        setup = setup[share:]
    PS(4)
    P(Ins("", 1, "waitv", {("X", 0), ("S", 0)}))
    P("s_waitcnt lgkmcnt(0)")
    if c.pro_setup:
        P(init)
    PS(5)
    P("s_barrier")
    PS(6)
    for x in xreads(0):
        P(x)
    for F in range(c.D):
        for x in reads(F):
            P(x)
    P(Ins("", 1, "waitl", {0, ("X", 0)}))

    NFR = 16 * NS
    for F in range(c.D, NFR):
        g = G[F - c.D]
        assert F < c.NF or LAST[F - c.NF] <= g
        for k, x in enumerate(reads(F)):
            tl.put(g + k, x)
    hasread = lambda g: bool(tl.gaps[g].mem)
    def lead_before(ins, g, span=3):
        for i in range(g, g - span, -1):
            if i >= 0 and hasread(i) and not tl.gaps[i].lead:
                tl.gaps[i].lead.append(ins)
                return i
        return tl.back(ins, g, max(0, g - span))
    for n in bsteps:
        tl.gaps[bgap[n]].lead.append(Ins("s_barrier"))
        need = {("S", m) for m in covers[n]}
        if n == max(b for b in bsteps if b < nK0):
            need.add("dum")
        lead_before(Ins("", 1, "waitv", need), bgap[n] - 1)
    for kc, r in x_read.items():
        g = lead_before(Ins("", 1, "waitv", {("X", kc)}), at(r) + 1)
        tl.chain(xreads(kc), g + 1, at(r) + 20)
    F = 1
    while F < NFR:
        grp = [F]
        if mode(F // 16) == "CH" and F % 4 == 1:
            grp = [F, F + 1, F + 2]
        need = set(grp)
        ty, k = steps[F // 16]
        if F % 16 == 0 and ((ty == "U" and k % 4 == 0) or (ty == "W" and k % 2 == 0)):
            need |= {("X", k // 2)} if ty == "W" else {("X", c.nW // 2 + k // 2), ("X", c.nW // 2 + k // 2 + 1)}
            tl.back(Ins("", 1, "waitl", need), USE[F] - 1, USE[F] - 1)
        else:
            lead_before(Ins("", 1, "waitl", need), min(USE[x] for x in grp) - 1)
        F += len(grp)

    pieces, last_t = [], {}
    for seq, (g0, step, kind, i, ps) in enumerate(units):
        stream = "sw" if (kind == "S" and i in staged) else "kv" if (kind == "G" or (kind == "S" and i >= 14)) else "w"
        for n_p, p in enumerate(ps):
            tgt = max(g0 + n_p * step, last_t.get(stream, -1))
            last_t[stream] = tgt
            pieces.append((tgt, seq, n_p, kind, i, p))
    pieces.sort()
    state = dict(prev=-1, k=0)
    margin = {}
    def place_units(upto, back, slack):
        while state["k"] < len(pieces) and pieces[state["k"]][0] < upto:
            tgt, _, _, kind, i, p = pieces[state["k"]]
            state["k"] += 1
            ins = dma(kind, i, p)
            prev = state["prev"]
            lo = max(tgt - back, prev + (c.wo_gap if kind == 'S' and i >= 48 else 3), prev + len(ins))
            if kind == "S":
                lo = max(lo, slot_lo[i] + len(ins) - 1)
            g = lo
            while tl.gaps[g].seq() and g < lo + slack:
                g += 1
            if tl.gaps[g].seq():
                g = min(range(lo, lo + slack), key=lambda k: (tl.gaps[k].added(ins[-1], 1), k))
            tl.gaps[g].mem.append(ins[-1])
            if ins[:-1]:
                tl.chain(ins[:-1], max(prev + 1, g - 6), g - 1)
            state["prev"] = g
            if kind == "G" or (kind == "S" and i >= 14):
                state.setdefault("kv0", g)
            if kind == "S" and i > 0:
                margin[i] = round((min(bgap[n] for n in bsteps if i in covers[n]) - g) / 49.5, 1)
    place_units(beg(nK0), 0, 8)

    L = lambda ts: [Ins(t) for t in ts]
    if c.pro_setup:
        ps = [(0, 0)]
    else:
        ps = tl.chain(L(ini) + [init], 0, at(c.race_at) - 62)
        ps = tl.chain(L(kv), ps[-1][0] + 1, state["kv0"] - 2)
    if c.touch_wo:
        it = [f"s_lshl_b32 s{S_D0}, s5, 4", f"s_add_u32 s{S_D0}, s{S_D0}, s{S_W}", f"s_mul_i32 s{S_D0}, s{S_D0}, {16*896}",
              f"s_min_u32 s{S_D1}, s4, 6", f"s_lshl_b32 s{S_D1}, s{S_D1}, 7", f"s_add_u32 s{S_D0}, s{S_D0}, s{S_D1}",
              f"v_min_u32 v{VA}, 1, v{VG}", f"v_lshlrev_b32 v{VA}, 28, v{VA}", f"v_mul_u32_u24 v{VB}, 896, v{VL}",
              f"v_add3_u32 v238, v{VA}, v{VB}, s{S_D0}"]
        ps = tl.chain(L(it), ps[-1][0] + 1, at(c.touch_wo[0]) - 1)
        for k, x in enumerate(c.touch_wo):
            tl.chain([Ins(f"s_mov_b32 s{S_ST1}, {k*64*896}"),
                      Ins(f"buffer_load_dword v239, v238, {sq(S_WO)}, s{S_ST1} offen", 1, "vm", "dum")], at(x), at(x) + 12)
    ini_end = ps[-1][0]
    def fill(ts, g):
        sec = 0
        for t in ts:
            ins = t if isinstance(t, Ins) else Ins(t)
            while True:
                gp = tl.gaps[g]
                if gp.mem and cls(gp.mem[0]) == "d":
                    k = gp.section(ins, sec)
                    if gp.added(ins, k) <= 0:
                        break
                g, sec = g + 1, 0
            gp.add(ins, k)
            sec = 2
        return g
    A, Tt = f"s{S_ACC}", f"s{S_TOT}"
    g = fill([Ins("", 1, "waitv", {"reset"}), f"s_mov_b32 {Tt}, 0", f"s_mov_b64 s[{S_RA}:{S_RB}], 0", f"s_mov_b32 {A}, 0"], at(c.race_at))
    reset_seen = g
    for i in range(c.races):
        off = (i + 1) * (0x4000 + 256) + ((i + 1) & 1) * 4096
        ld = [f"s_buffer_load_dword s{S_RA}, {sq(S_ALL)}, s{S_PRB} offset:{off}",
              f"s_buffer_load_dword s{S_RB}, {sq(S_ALL)}, s{S_PRB} offset:{off+8192}"]
        sm = [f"s_add_u32 {A}, {A}, s{S_RA}", f"s_sub_u32 {A}, {A}, s{S_RB}"]
        first = (i + i // 2) % 2
        g0 = fill(ld[::-1 if first else 1], g + 1)
        g = g0 + c.race_skip
        while g < g0 + c.race_len:
            g = max(fill(sm[::-1 if first else 1], g) + 1, g + c.race_step)
        if c.stamps:
            tl.put(g, Ins(f"v_writelane_b32 v{V_STAMP}, {A}, {50+i}"), 2)
            g += 1
        g = fill([f"s_min_i32 {A}, {A}, {c.race_clamp}", f"s_max_i32 {A}, {A}, {-c.race_clamp}", f"s_add_u32 {Tt}, {Tt}, {A}",
                  f"s_mov_b32 {A}, 0", f"s_mov_b64 s[{S_RA}:{S_RB}], 0"], g)
    fin = [f"s_lshr_b32 {A}, {Tt}, 31", f"s_mul_i32 {A}, {A}, 3", f"s_add_u32 {A}, {A}, 4"]
    if c.force is not None:
        fin += [f"s_mov_b32 {A}, {4 + c.force}"]
    g = fill(fin, g + 1)
    g = max(g, min(b for b in bgap.values() if b > reset_seen))
    pub_at = tl.chain([Ins(f"v_mov_b32 v{V_PUB}, {A}"),
                       Ins(f"buffer_store_dword v{V_PUB}, v{V_FLW}, {sq(S_DBG)}, s{S_LEAD} offen sc1", 1, "vm", "cnt")], g + 1, g + 30)[-1][0]
    if c.clump:
        rest = kv + att + out
        n_c = -(-len(rest) // c.clump[2])
        for k in range(n_c):
            g = at(c.clump[0] + (c.clump[1] - c.clump[0]) * k / n_c)
            while not (tl.gaps[g].mem and cls(tl.gaps[g].mem[0]) == "d"):
                g += 1
            assert k * c.clump[2] >= len(kv) or g < state["kv0"] - 2
            for t in rest[k * c.clump[2]:(k + 1) * c.clump[2]]:
                tl.put(g, Ins(t), 2)
    elif not c.pro_setup:
        ps = tl.chain(L(att + out), ini_end + 1, beg(10))
    defer_end = ps[-1][0]

    cur = 0
    for s in range(8):
        it = []
        for q in sorted(range(3), key=lambda q: FIN[("Q", 2 * s + 1, q)]):
            src, dst = (s * 3 + q) * 8, (s * 3 + q) * 4
            rdy = FIN[("Q", 2 * s + 1, q)] + 4
            it += [(Ins(f"v_mul_f32 v{src+r}, s{S_C}, v{src+r}"), FIN[("Q", 2 * s + (r >> 2), q)] + 4) for r in range(8)]
            if s:
                it += [(Ins(f"v_cvt_pk_bf16_f32 v{dst+r}, v{src+2*r}, v{src+2*r+1}"), rdy) for r in range(4)]
        if s == 0:
            for q in range(3):
                it += [Ins(f"v_cvt_pk_bf16_f32 v{q*4+r}, v{q*8+2*r}, v{q*8+2*r+1}") for r in range(4)]
        lo = max(cur, it[0][1])
        hi = min(USE[("QB", s)] - 2, max(FIN[("Q", 2 * s + 1, q)] for q in range(3)) + 26)
        cur = tl.chain(it, lo, hi)[-1][0]
    q_done = cur

    tmp = [0]
    prev_branch = 0
    for j in range(16):
        it, pend = [], None
        for kt in range(2):
            qo = sorted(range(3), key=lambda q: FIN[("S", j, kt, q)])
            items, p = softmax_items(j, kt, tmp, qo)
            xs = [(x, FIN[("S", j, kt, x.meta)] + 5) for x in items]
            if pend:
                xs.insert(1, (pend, 0))
            it += xs
            pend = p
        lo = max(it[0][1], prev_branch + 1, q_done + 1)
        ps = tl.chain(it, lo, ONES[j] - 6)
        tl.chain([pend], ps[-1][0] + 1, ONES[j] - 5)
        l = lreg(j)
        br = (G[16 * idx[("K", 1)] + 8] - 1) if j == 0 else end(idx[("V", j - 1)])
        chk = [Ins(f"v_max3_f32 v{V_CHK}, v{l}, v{l+1}, v{l+2}"), Ins(f"v_cmp_nge_f32 vcc, s{S_TH}, v{V_CHK}")]
        if j == 0:
            chk = [Ins(f"v_min3_f32 v{V_CHK+1}, v{l}, v{l+1}, v{l+2}"), Ins(f"v_cmp_nle_f32 s[{S_RET}:{S_RET+1}], s{S_TL}, v{V_CHK+1}")] + chk
            chk += [Ins(f"s_or_b64 vcc, vcc, s[{S_RET}:{S_RET+1}]")]
        tl.chain(chk, ONES[j] + 5, br - 1)
        g = tl.gaps[br]
        sec = g.lead if not g.lead else g.rest
        sec += [Ins(f"s_cbranch_vccnz L_stub{j}"), Ins(f"L_back{j}:", 0)]
        prev_branch = br

    place_units(beg(nV15), c.back, c.slack)
    place_units(NM, 0, 8)

    nK14 = idx[("K", 15)]
    assert pub_at + 150 < beg(nK14 - 4)
    tl.chain([Ins(f"buffer_load_dword v{V_PUB}, off, {sq(S_DBG)}, s{S_GRP} sc1", 1, "vm", "dbg")], beg(nK14 - 4), beg(nK14 - 4) + 30)
    ps = tl.chain([Ins("", 1, "waitv", {"dbg"}), Ins(f"v_cmp_gt_u32 vcc, 1, v{V_PUB}")], beg(nK14), beg(nK14) + 9)
    gi = ps[-1][0] + 2
    g = tl.gaps[gi]
    (g.lead if not g.lead else g.rest).extend([Ins("s_cbranch_vccnz L_dbgspin"), Ins("L_dbgback:", 0)])
    D0, M = f"s{S_D0}", f"s{S_D1}"
    ps = tl.chain([Ins(f"v_readfirstlane_b32 {M}, v{V_PUB}")], gi + 1, gi + 6)
    fix = [f"s_mul_i32 {D0}, s99, 3", f"s_xor_b32 {M}, {M}, {D0}",
           f"s_and_b32 {D0}, {M}, 2", f"s_lshl_b32 {D0}, {D0}, 12", f"s_add_u32 s{S_PG+1}, s{S_PG}, {D0}",
           f"s_and_b32 {D0}, {M}, 1", f"s_lshl_b32 {D0}, {D0}, 13", f"s_add_u32 s{S_PG}, s{S_PG}, {D0}", f"s_add_u32 s{S_FLR}, s{S_FLR}, {D0}",
           f"s_add_u32 s{S_SB+1}, s{S_SB}, s{S_PG+1}", f"s_add_u32 s{S_SB}, s{S_SB}, s{S_PG}", f"s_sub_u32 s{S_PG+1}, s{S_PG+1}, s{S_PG}"]
    tl.chain(L(fix), ps[-1][0] + 1, beg(nV15))

    tl.chain([Ins(f"v_rcp_f32 v{V_RINV+q}, v{lreg(15)+q}", 2) for q in range(3)], beg(nV15), beg(nV15) + 9)
    cur, rot = beg(nV15), 0
    for s in range(8):
        it = []
        for tp in range(2):
            for q in sorted(range(3), key=lambda q: FIN[("O", 2 * s + tp, q)]):
                fl, a = oreg(2 * s + tp, q)
                rdy = FIN[("O", 2 * s + tp, q)] + 4
                if fl == "a":
                    T = 216 + 4 * (rot % 2)
                    rot += 1
                    it += [(Ins(f"v_accvgpr_read_b32 v{T+r}, a{a+r}"), rdy) for r in range(4)]
                    a = T
                it += [(Ins(f"v_cvt_pk_bf16_f32 v{(s*3+q)*4+2*tp+h}, v{a+2*h}, v{a+2*h+1}"), rdy) for h in range(2)]
        lo = max(cur, it[0][1])
        dead = USE[("B", s)] - 2
        left = sum(12 if x < 2 else 36 for x in range(s, 8))
        share = lo + int((USE[("B", 7)] - 2 - lo) * (12 if s < 2 else 36) / left) + 1
        cur = tl.chain(it, lo, max(min(dead, share), min(dead, it[-1][1] + 2)))[-1][0]

    def chunk_out(ch):
        pcs = sorted(range(6), key=lambda pc: FIN[("P", ch, 2 * (pc & 1) + 1, pc >> 1)])
        it = [(Ins(f"s_add_u32 s{S_ST0}, s{S_SB+(ch&1)}, {ch << 18}"), 0), (Ins(f"s_add_u32 s{S_ST1}, s{S_SB+(ch&1)}, {(ch << 18) + 4096}"), 0)]
        held = []
        for n_p, pc in enumerate(pcs):
            q, p = pc >> 1, pc & 1
            a, T = oacc(ch, 2 * p, q), 192 + 4 * pc
            rdy = FIN[("P", ch, 2 * p + 1, q)] + 4
            v = [(Ins(f"v_mul_f32 v{a+r}, v{a+r}, v{V_RINV+q}"), FIN[("P", ch, 2 * p + (r >> 2), q)] + 4) for r in range(8)]
            v += [(Ins(f"v_cvt_pk_bf16_f32 v{T+r}, v{a+2*r}, v{a+2*r+1}"), rdy) for r in range(4)]
            if n_p % c.st_group == c.st_group - 1:
                for k, x in enumerate(held):
                    v.insert(len(v) - 2 * (len(held) - k), x)
                held = []
            it += v
            st = (Ins(f"buffer_store_dwordx4 {vr(T,4)}, v{V_ST}, {sq(S_ALL)}, s{S_ST0 if pc < 4 else S_ST1} offen offset:{(pc&3)*1024} sc1", 1, "vm", ("st", ch)), rdy)
            if n_p % c.st_group == c.st_group - 1:
                it.append(st)
            else:
                held.append(st)
        return it
    tail = []
    st_last = {}
    for ch in range(7):
        it = chunk_out(ch)
        lo = max(cur + 1, it[2][1])
        if ch < 6:
            for k in range(6):
                x, e = it[2 + 13 * k]
                it[2 + 13 * k] = (x, max(e, lo + min(c.st_pace, (end(nO0 + 2 * ch + 3) - 36 - lo) // 5) * k))
            cur = tl.chain(it, lo, end(nO0 + 2 * ch + 3) - (26 if not c.st_pace else 22))[-1][0]
            st_last[ch] = cur
        else:
            early = it[:2 + 3 * 13]
            if c.chain:
                tl.chain(early, lo, NM - 1)
                tail = [x for x, _ in it[len(early):]]
            else:
                tail = [x for x, _ in it]

    sig = sorted(set(c.flags) | {6})
    assert len(sig) <= 6
    LASTBIT = 1 << (5 * sig.index(6))
    tab = sum(sig.index(min(x for x in sig if x >= ch)) << (4 * ch) for ch in range(7))
    VF2, VTK, VAT, VLD = 233, 234, 235, 236
    PRG, T0, T1, T2, CNT = f"s{S_SPIN}", f"s{S_ACC}", f"s{S_D1}", f"s{S_T2}", f"s{S_D0}"
    claim = f"buffer_atomic_add v{VAT}, v{VF2}, {sq(S_ALL)}, s{S_FLR} offen sc0 sc1"
    read2 = [f"v_readlane_b32 {PRG}, v{VAT}, 0", f"v_readlane_b32 s{S_TKT}, v{VAT}, 1"]
    lanes2 = [f"v_lshrrev_b32 v{VTK}, 4, v{V_ST}", f"v_lshrrev_b32 v{VF2}, 5, v{V_ST}", f"v_min_u32 v{VF2}, 1, v{VF2}",
              f"v_lshlrev_b32 v{VF2}, 28, v{VF2}", f"v_lshl_add_u32 v{VF2}, v{VTK}, 2, v{VF2}",
              f"v_and_b32 v{VLD}, 0x70, v{V_ST}", f"v_bfe_u32 v{VAT}, v{V_ST}, 7, 2", f"v_lshl_add_u32 v{VLD}, v{VAT}, 8, v{VLD}",
              f"v_lshrrev_b32 v{VAT}, 9, v{V_ST}", f"v_lshl_add_u32 v{VLD}, v{VAT}, 14, v{VLD}"]
    def decode(b):
        dst = f"s{S_DST+b}"
        return [f"s_mul_i32 {T1}, s{S_TKT}, 171", f"s_lshr_b32 {T1}, {T1}, 11", f"s_mul_i32 {T0}, {T1}, 12", f"s_sub_u32 {T0}, s{S_TKT}, {T0}",
                f"s_and_b32 {T2}, {T1}, 1", f"s_mul_i32 {T2}, {T2}, s{S_PG+1}", f"s_add_u32 s{S_SRC}, s{S_PG}, {T2}", f"s_lshl_b32 {T2}, {T1}, 18",
                f"s_add_u32 s{S_SRC}, s{S_SRC}, {T2}", f"s_lshr_b32 {T2}, {T0}, 1", f"s_lshl_b32 {T2}, {T2}, 10", f"s_add_u32 s{S_SRC}, s{S_SRC}, {T2}",
                f"s_and_b32 {dst}, {T0}, 1", f"s_lshl_b32 {T2}, {dst}, 7", f"s_add_u32 s{S_SRC}, s{S_SRC}, {T2}",
                f"s_lshl_b32 {T1}, {T1}, 2", f"s_lshr_b32 {T2}, {tab}, {T1}", f"s_and_b32 {T2}, {T2}, 15", f"s_mul_i32 {T2}, {T2}, 5",
                f"s_lshl_b32 s{S_NEED}, 16, {T2}"], [
                f"s_mul_i32 {dst}, {dst}, {8*1792}", f"s_add_u32 {dst}, {dst}, s{S_OUTB}",
                f"s_lshr_b32 {T2}, s{S_ROT}, {T1}", f"s_and_b32 {T2}, {T2}, 15", f"s_lshl_b32 {T2}, {T2}, 7", f"s_add_u32 {dst}, {dst}, {T2}",
                f"s_and_b32 {T2}, {T0}, 2", f"s_lshl_b32 {T2}, {T2}, 5", f"s_add_u32 {dst}, {dst}, {T2}",
                f"s_lshr_b32 {T2}, {T0}, 2", f"s_mul_i32 {T2}, {T2}, 28672", f"s_add_u32 {dst}, {dst}, {T2}"]
    def loads(b):
        o = []
        for k in range(8):
            o.append(f"buffer_load_dwordx4 {ar(32*b+4*k,4)}, v{VLD}, {sq(S_ALL)}, s{S_SRC} offen sc1")
            if k < 7:
                o.append(f"s_add_u32 s{S_SRC}, s{S_SRC}, {32768 + (2048 if k % 2 == 0 else -2048)}")
        return o
    arm = [f"v_mul_u32_u24 v{VAT}, s{S_PEND}, v{VTK}"]
    keep = [f"v_readlane_b32 {PRG}, v{VAT}, 0", f"v_readlane_b32 s{S_NEW}, v{VAT}, 1"]
    merge = [f"s_sub_u32 s{S_NEW}, s{S_NEW}, s{S_TKT}", f"s_mul_i32 s{S_NEW}, s{S_NEW}, s{S_PEND}", f"s_add_u32 s{S_TKT}, s{S_TKT}, s{S_NEW}"]
    def flag(ch):
        return [Ins(f"v_mov_b32 v{V_FV}, {1 << (5 * sig.index(ch))}"),
                Ins(f"buffer_atomic_add v{V_FV}, v{V_FLW}, {sq(S_ALL)}, s{S_FLR} offen sc1", 1, "vm", ("fl", ch))]
    tail_flags = []
    for ch in c.flags:
        g = st_last[ch] + c.flag_delay
        if g + 10 < NM:
            tl.chain([Ins("", 1, "waitv", {("st", ch)})] + flag(ch), g, g + 20)
        else:
            tail_flags.append(ch)
    tail_loads = []
    tO = lambda t: at(nO0 + 2 * t)
    start = L(lanes2 + [f"s_mov_b32 s{S_PEND}, 1", f"s_mov_b32 s{S_TKT}, 0", f"s_mov_b32 s{S_PEND+1}, 0"])
    cur = tl.chain(start, tO(2.0), tO(3.0))[-1][0]
    dec_end = cur
    for e, te in enumerate(c.early):
        assert not tail_loads
        g = max(tO(te), dec_end + 1)
        tl.chain(L(arm) + [Ins(claim, 1, "vm", ("claim", e))], g - 0, g + 16)
        g = max(tO(te + c.early_wait), cur + 1)
        ps = tl.chain([Ins("", 1, "waitv", {("claim", e)})] + L(keep), g, g + 12)
        d1, d2 = decode(2 + e)
        rdy = [f"s_andn2_b32 {T2}, s{S_NEED}, {PRG}", f"s_min_u32 {T2}, {T2}, 1", f"s_sub_u32 s{S_PEND}, 1, {T2}",
               f"s_lshl_b32 s{S_NEW}, {T2}, 28", f"s_add_u32 s{S_SRC}, s{S_SRC}, s{S_NEW}"]
        d3 = [f"s_add_u32 s{S_DST+2+e}, s{S_DST+2+e}, s{S_NEW}"]
        if c.stamps:
            d3 += [f"s_lshl_b32 s{S_NEW}, s{S_PEND}, 8", f"s_add_u32 s{S_PEND+1}, s{S_PEND+1}, s{S_NEW}"]
        ps = tl.chain(L(merge + d1 + rdy + d2 + d3), ps[-1][0] + 1, ps[-1][0] + 70)
        dec_end = ps[-1][0]
        cur = ps[len(merge + d1 + rdy) - 1][0] - c.load_gap + 1
        ld = [Ins(t, 1, "vm", "R") if t.startswith("buffer") else Ins(t) for t in loads(2 + e)]
        while ld:
            lo = cur + c.load_gap
            if lo >= NM - 3:
                tail_loads = ld
                break
            rng = range(lo, min(lo + 6, NM - 2))
            cur = min(rng, key=lambda k: (tl.gaps[k].added(ld[0], 1), k))
            tl.gaps[cur].mem.append(ld[0])
            if len(ld) > 1:
                tl.chain([ld[1]], cur + 1, min(cur + c.load_gap - 1, NM - 1))
            ld = ld[2:]

    if c.stamps:
        for k, n in enumerate(c.stamps):
            tl.gaps[beg(n)].lead[0:0] = [Ins(t) for t in stamp(k + 1 + 6 * c.pstamps)]
    lin = tl.linear()
    ns = len(c.stamps) + 1 + 6 * c.pstamps if c.stamps else 0
    ST = lambda k: [Ins(t) for t in stamp(ns + k)] if c.stamps else []

    I = lambda *ts: [Ins(t) for t in ts]
    lin += I("s_nop 7") + tail + I("s_waitcnt lgkmcnt(0)") + ST(0) + tail_loads
    for ch in tail_flags:
        lin += [Ins("", 1, "waitv", {("st", ch)})] + flag(ch)
    lin += I(*arm)
    lin += I(f"s_mov_b32 {T0}, {LASTBIT}", f"v_writelane_b32 v{VAT}, {T0}, 0")
    lin += [Ins("", 1, "waitv", {("st", 6)}), Ins(claim, 1, "vm", ("fl", 6))] + ST(1)
    resolve_waits(lin)
    verify(lin, steps, slot_of, xslots, c.nx)
    texts = [x.text for x in lin]
    T = lambda xs: [x.text for x in xs]
    def reduce(b, wait):
        a, o = 8 * b, []
        for k in range(8):
            if wait:
                o += [f"s_waitcnt vmcnt({7-k})"]
            o += [f"{MF} {vr(a,4)}, {ar(A_SEL,4)}, {ar(32*b+4*k,4)}, {vr(a,4) if k else 0}"]
        o += ["s_nop 7"] + [f"v_cvt_pk_bf16_f32 v{a+4+k}, v{a+2*k}, v{a+2*k+1}" for k in range(2)]
        return o + [f"buffer_store_dwordx2 {vr(a+4,2)}, v{V_OUT}, {sq(S_OUT)}, s{S_DST+b} offen {c.pol_out}"]
    texts += [f"s_mov_b32 {CNT}, 0", "s_waitcnt vmcnt(1)"]
    for e in range(len(c.early)):
        texts += reduce(2 + e, False)
    texts += [f"s_waitcnt vmcnt({len(c.early)})"] + keep + ["s_nop 0", f"s_add_u32 {PRG}, {PRG}, {LASTBIT}"] + merge + [f"s_mov_b32 s{S_PEND}, 0"]
    for b in range(2):
        y = 1 - b
        texts += [f"L_take{b}:", f"s_cmp_ge_u32 s{S_TKT}, 84", f"s_cbranch_scc1 L_last{y}"] + decode(b)[0]
        texts += [f"s_andn2_b32 {T2}, s{S_NEED}, {PRG}", f"s_cbranch_scc0 L_go{b}",
                  f"s_cmp_eq_u32 s{S_PEND}, 0", f"s_cbranch_scc1 L_poll{b}"] + reduce(y, True) + [f"s_mov_b32 s{S_PEND}, 0"]
        texts += [f"L_poll{b}:"] + ([f"s_sleep {c.sleep}"] if c.sleep else []) + [
                  f"v_mov_b32 v{V_POLL}, 0", f"buffer_atomic_add v{V_POLL}, v{V_FLW}, {sq(S_ALL)}, s{S_FLR} offen sc0 sc1",
                  "s_waitcnt vmcnt(0)", f"v_readfirstlane_b32 {PRG}, v{V_POLL}", f"s_add_u32 {CNT}, {CNT}, 1",
                  f"s_cmp_ge_u32 {CNT}, {c.spin_max}", f"s_cselect_b32 {PRG}, -1, {PRG}",
                  f"s_andn2_b32 {T2}, s{S_NEED}, {PRG}", f"s_cbranch_scc1 L_poll{b}"]
        ld = loads(b)
        texts += [f"L_go{b}:", f"v_mov_b32 v{VAT}, v{VTK}"] + ld[:2 * c.claim_at] + [claim] + ld[2 * c.claim_at:] + decode(b)[1]
        if c.stamps:
            texts += [f"s_add_u32 s{S_PEND+1}, s{S_PEND+1}, 1"]
        texts += [f"s_cmp_eq_u32 s{S_PEND}, 0", f"s_mov_b32 s{S_PEND}, 1", f"s_cbranch_scc1 L_got{b}", "s_waitcnt vmcnt(9)"] + reduce(y, False)
        texts += [f"s_waitcnt vmcnt({9 - c.claim_at})", f"s_branch L_rd{b}", f"L_got{b}:", f"s_waitcnt vmcnt({8 - c.claim_at})", f"L_rd{b}:"] + read2 + ["s_nop 1"]
        if b == 1:
            texts += ["s_branch L_take0"]
    for y in range(2):
        texts += [f"L_last{y}:", f"s_cmp_eq_u32 s{S_PEND}, 0", "s_cbranch_scc1 L_done"] + reduce(y, True)
        if y == 0:
            texts += ["s_branch L_done"]
    texts += ["L_done:"]
    if c.stamps:
        texts += [f"v_writelane_b32 v{V_STAMP}, s{S_PEND+1}, 62", f"v_writelane_b32 v{V_STAMP}, s{S_TOT}, 63"] + T(ST(2))
    if c.stamps:
        texts += stamp(ns + 3) + ["s_waitcnt vmcnt(0)"] + stamp(ns + 4)
        if c.diag is not None:
            lane = c.diag if c.diag >= 0 else ns + 5 + c.diag
            texts += ["s_nop 1", f"v_readlane_b32 s40, v{V_STAMP}, {lane}", f"v_readlane_b32 s41, v{V_STAMP}, 0", "s_nop 3",
                      "s_sub_u32 s40, s40, s41", "s_lshl_b32 s40, s40, 4", "s_add_u32 s40, s40, 10000",
                      "L_diag:", "s_sleep 1", "s_memrealtime s[42:43]", "s_waitcnt lgkmcnt(0)", "s_sub_u32 s42, s42, s41",
                      "s_cmp_lt_u32 s42, s40", "s_cbranch_scc1 L_diag"]
        texts += [
                  f"v_lshrrev_b32 v8, 2, v{V_ST}", "s_lshl_b32 s3, s2, 8", f"s_add_u32 s3, s3, {STAMP_AT}",
                  f"s_cmp_lg_u32 s{S_W}, 0", "s_cbranch_scc1 L_end", f"buffer_store_dword v{V_STAMP}, v8, {sq(S_ALL)}, s3 offen"]
    texts, probs = check_hazards(texts, fix=True)
    stats = dict(n=len(texts), nops=len(probs), cost=[tl.cost(beg(n), end(n)) for n in range(NS)], margin=[margin.get(m) for m in range(2, NS)],
                 defer=round(defer_end / 48, 2), stl=[round((st_last[k] - beg(nO0)) / 96, 2) for k in range(6)])
    texts += ["L_end:", "s_endpgm"]
    texts += ["L_dbgspin:", f"s_mov_b32 s{S_SPIN}, 0", "L_dspin:", f"buffer_load_dword v{V_PUB}, off, {sq(S_DBG)}, s{S_GRP} sc1",
              "s_waitcnt vmcnt(0)", f"v_cmp_gt_u32 vcc, 1, v{V_PUB}", f"s_add_u32 s{S_SPIN}, s{S_SPIN}, 1",
              f"s_cmp_ge_u32 s{S_SPIN}, {c.spin_max}", "s_cbranch_scc1 L_dbgback", "s_cbranch_vccnz L_dspin", "s_branch L_dbgback"]
    texts += ["L_stub0:"] + rare_path(0) + ["s_branch L_back0"]
    for j in range(1, 16):
        texts += [f"L_stub{j}:", f"s_call_b64 s[{S_RET}:{S_RET+1}], L_rare{j&1}", f"s_branch L_back{j}"]
    for par in range(2):
        texts += [f"L_rare{par}:"] + rare_path(par + 2) + [f"s_setpc_b64 s[{S_RET}:{S_RET+1}]"]
    return texts, stats, probs

def verify(lin, steps, slot_of, xslots, nx):
    pending, lq, vq = {}, [], []
    issued, landed, visible = {}, set(), set()
    last_epoch, epoch, in_slot, cnt = {}, 0, {}, {}
    def refill(m):
        s = slot_of[m]
        old = in_slot.get(s)
        if old is None:
            for kc in xslots.get(s, ()):
                assert cnt.get(("X", kc), 0) == 6 and last_epoch[("X", kc)] < epoch, ("slot under x", m)
        elif old != m:
            assert cnt.get(old, 0) == (16 if steps[old][0] == "K" else 32), ("slot reused early", m, old)
            assert last_epoch[old] < epoch, ("slot reuse without barrier", m, old)
        in_slot[s] = m
    for ins in lin:
        t = ins.text
        if ins.tag == "ds" and t.startswith("ds_write"):
            m = ins.meta[1]
            assert ("G", m) in landed and issued[("G", m)] == 4
            refill(m)
            lq.append(([], ins.meta))
        elif ins.tag == "vm":
            vq.append(ins.meta)
            issued[ins.meta] = issued.get(ins.meta, 0) + 1
            landed.discard(ins.meta)
            if isinstance(ins.meta, tuple) and ins.meta[0] == "X" and ins.meta[1] >= nx:
                assert cnt.get(("X", ins.meta[1] - nx), 0) == 6, ("x region reused early", ins.meta)
            if isinstance(ins.meta, tuple) and ins.meta[0] == "fl":
                assert ("st", ins.meta[1]) in landed and issued[("st", ins.meta[1])] == 6, ins.meta
            if isinstance(ins.meta, tuple) and ins.meta[0] == "S":
                refill(ins.meta[1])
        elif t.startswith("s_waitcnt"):
            mv = re.search(r"vmcnt\((\d+)\)", t)
            if mv:
                k = max(0, len(vq) - int(mv.group(1)))
                done, vq = vq[:k], vq[k:]
                landed |= {d for d in done if d not in vq}
            ml = re.search(r"lgkmcnt\((\d+)\)", t)
            if ml:
                k = max(0, len(lq) - int(ml.group(1)))
                done, lq = lq[:k], lq[k:]
                for rs, tok in done:
                    for r in rs:
                        pending.pop(r, None)
                    key = tok // 16 if isinstance(tok, int) else tok
                    cnt[key] = cnt.get(key, 0) + 1
                    last_epoch[key] = epoch
                    if isinstance(tok, tuple) and tok[0] == "SW" and cnt[key] == 4:
                        landed.add(("S", tok[1]))
                        issued[("S", tok[1])] = 4
        elif t == "s_barrier":
            visible |= {d for d in landed if not (isinstance(d, tuple) and d[0] == "S") or issued[d] == 4}
            epoch += 1
        elif ins.tag == "ds":
            wr, tok = rw(t)[1], ins.meta
            if isinstance(tok, int):
                assert ("S", tok // 16) in visible, ("read before visible", tok)
            else:
                assert tok in landed and issued[tok] == 6, ("x read before landed", tok)
            lq.append((wr, tok))
            for r in wr:
                pending[r] = tok
        elif t.startswith("v_mfma"):
            for r in rw(t)[2]:
                assert r not in pending, ("mfma reads in-flight fragment", t)
        assert len(vq) <= 63, "vmcnt overflow"

HEADER = """;
; (query row = lane & 15), so each MFMA result feeds the next product as its B operand without shuffles:
; wq, K, V and wo stream through a ring of LDS slots (LDS-DMA, padded layouts, transposing reads).
; denominator is range-checked; when it leaves the safe range the tile is redone against the true row max
; and O and l are rescaled (L_stub*, L_rare*).
; counters that head 0 clears at the start of the launch (d_debug carries that announcement), and summed in
; fp32 by whichever wave claims the next piece. Head 0 also picks, by a race of scalar loads, the half of the
; scratch page that answers faster; either choice gives the same result.
; L_pad*: never-taken branches in the first line of each 4 KiB code page, visited once with EXEC = 0 while the
; first loads are in flight so that those lines are in the instruction cache.
"""

def add_pads(main):
    import subprocess, tempfile, os
    i0, i1 = main.index("L_main:"), main.index("L_done:")
    with tempfile.TemporaryDirectory() as d:
        labels = sorted({x for t in main for x in re.findall(r"\bL_\w+", t)} - {t[:-1] for t in main[i0:i1] if t.endswith(":")})
        open(d + "/a.s", "w").write('.amdgcn_target "amdgcn-amd-amdhsa--gfx950"\n.text\n' + "\n".join(main[i0:i1]) + "\n" + "".join(x + ":\n" for x in labels))
        subprocess.run(["clang", "-x", "assembler", "-target", "amdgcn-amd-amdhsa", "-mcpu=gfx950", "-c", d + "/a.s", "-o", d + "/a.o"], check=True)
        dis = subprocess.run(["llvm-objdump", "-d", d + "/a.o"], capture_output=True, text=True).stdout
    addr = [int(x, 16) for x in re.findall(r"// ([0-9A-F]{12}):", dis)]
    body = [k for k in range(i0, i1) if not main[k].endswith(":")]
    assert len(addr) == len(body)
    where, shift, page = [], 0, 1
    for n, k in enumerate(body):
        a = addr[n] + shift
        if a < page * 4096:
            continue
        free = main[k - 1].startswith("v_mfma") and not main[k].startswith(("s_", "buffer_"))
        nxt = addr[n + 1] + shift if n + 1 < len(body) else a + 64
        if free or nxt > page * 4096 + 56:
            where.append(k)
            shift += 4
            page += 1
    out, n = [], 0
    for k, t in enumerate(main):
        if n < len(where) and k == where[n]:
            out += [f"L_pad{n}:", "s_cbranch_execz " + (f"L_pad{n+4}" if n + 4 < len(where) else "L_main")]
            n += 1
        out.append(t)
    return out, len(where)

def emit(c, path):
    main, stats, probs = build_main(c)
    if c.pads:
        main, stats["pads"] = add_pads(main)
    K1 = NAME + "_kernel"
    ref = open("cdna_kernels/" + NAME + ".s.ref").read().split("\n")
    s = "\n".join(ref[:14]) + "\n" + HEADER + "; @launch grid=(256,1,1) block=(256,1,1) lds=163840\n"
    s += '.amdgcn_target "amdgcn-amd-amdhsa--gfx950"\n.text\n'
    s += f".globl {K1}\n.p2align 8\n.type {K1},@function\n{K1}:\n"
    s += "\n".join(x if x.endswith(":") else "    " + " ".join(x.split()) for x in main) + "\n"
    if c.code_pf:
        s += ".fill 2048, 4, 0xbf810000\n"
    s += f""".section .rodata,"a"
.p2align 6
.amdhsa_kernel {K1}
  .amdhsa_next_free_vgpr 512
  .amdhsa_next_free_sgpr 102
  .amdhsa_accum_offset 256
  .amdhsa_group_segment_fixed_size 0
  .amdhsa_kernarg_size 104
  .amdhsa_user_sgpr_count 2
  .amdhsa_user_sgpr_kernarg_segment_ptr 1
  .amdhsa_system_sgpr_workgroup_id_x 1
  .amdhsa_float_denorm_mode_32 3
.end_amdhsa_kernel
"""
    open(path, "w").write(s)
    if c.code_pf:
        import subprocess, tempfile
        with tempfile.TemporaryDirectory() as d:
            open(d + "/a.s", "w").write(s.replace(".p2align 12", ""))
            subprocess.run(["clang", "-x", "assembler", "-target", "amdgcn-amd-amdhsa", "-mcpu=gfx950", "-c", d + "/a.s", "-o", d + "/a.o"], check=True)
            hdr = subprocess.run(["llvm-objdump", "-h", d + "/a.o"], capture_output=True, text=True).stdout
        size = int(re.search(r"\.text\s+([0-9a-f]+)", hdr).group(1), 16)
        assert size >= 32 * 2304 + 512, "prefetched range runs past the code"
    return stats, probs

if __name__ == "__main__":
    c = Cfg()
    if "R1" in sys.argv:
        sys.argv.remove("R1")
        c.rot, c.nx, c.pro_order, c.nW = 1, 3, "X0 S0 S1 X1 X2 S2", 2
        c.x_issue = {3: 0.6, 4: 2.3, 5: 3.62, 6: 4.62}
        c.x_read = {1: 1.2, 2: 1.56, 3: 3.25, 4: 4.25, 5: 5.25, 6: 6.25}
        c.kv_early = [5.7, 6.9, 8.1, 9.3, 10.7, 11.8, 12.9]
    if "R2" in sys.argv:
        sys.argv.remove("R2")
        c.rot, c.nx, c.pro_order, c.nW = 1, 3, "X0 S0 S1 X1 X2 S2", 2
        c.x_issue = {3: 0.6, 4: 2.0, 5: 2.5, 6: 3.1}
        c.x_read = {1: 1.15, 2: 1.5, 3: 2.15, 4: 3.3, 5: 3.65, 6: 4.3}
        c.kv_early = [4.8, 6.2, 7.6, 9.0, 10.6, 11.8, 13.0]
        c.kv_step, c.st_pace, c.flag_delay, c.wo_rot = 14, 16, 60, 2
        c.early, c.load_gap, c.flags = (3.7, 5.1), 12, (0, 1, 2, 4, 5)
    if "R3" in sys.argv:
        sys.argv.remove("R3")
        c.rot, c.nx, c.pro_order, c.nW = 1, 3, "X0 S0 S1 X1 X2 S2", 2
        c.x_issue = {3: 0.6, 4: 2.3, 5: 3.62, 6: 4.62}
        c.x_read = {1: 1.2, 2: 1.56, 3: 3.25, 4: 4.25, 5: 5.25, 6: 6.25}
        c.kv_early = [5.7, 6.9, 8.1, 9.3, 10.7, 11.8, 12.9]
        c.kv_step, c.st_pace, c.flag_delay, c.wo_rot = 12, 16, 60, 2
        c.early, c.load_gap, c.flags = (3.7, 5.1), 12, (0, 1, 2, 4, 5)
    if "R4" in sys.argv:
        sys.argv.remove("R4")
        c.rot, c.nx, c.pro_order, c.nW, c.pro_setup = 1, 3, "X0 S0 S1 X1 X2 S2", 2, True
        c.x_issue = {3: 0.6, 4: 2.3, 5: 3.62, 6: 4.62}
        c.x_read = {1: 1.2, 2: 1.56, 3: 3.25, 4: 4.25, 5: 5.25, 6: 6.25}
        c.staged = [(5.0, 39, 0)]
        c.kv_early = [6.1, 7.2, 8.3, 9.4, 10.7, 11.8, 12.9]
        c.kv_knee = (35, 30.4)
        c.wo_at = [43.0, 43.55, 44.1, 44.65, 45.3, 45.8, 46.3, 47.7, 48.2, 49.7, 50.2, 51.7, 52.2, 53.7]
        c.kv_step, c.st_pace, c.flag_delay, c.wo_rot = 12, 16, 60, 2
        c.early, c.load_gap, c.flags = (3.7, 5.1), 12, (0, 1, 2, 4, 5)
    for kv in sys.argv[2:]:
        k, v = kv.split("=", 1)
        setattr(c, k, eval(v))
    stats, probs = emit(c, sys.argv[1])
    print(stats, "total cost", sum(stats["cost"]))
    for p in probs[:30]:
        print("  nop", p)
```

```python
import sys
from core2 import *

NAME = "concat_heads__mha_block_cached__gqa_block_cached__near_ridge"
BLK, SLOT = 8448, 16896
WPOS = [0, 1032, 2112, 3144]
MF = "v_mfma_f32_16x16x32_bf16"
OOB = 0x10000000
AUX = 0x1C0000
STAMP_AT = 0xF800000

class Cfg:
    D = 6
    NF = 12
    pol_x = ""
    pol_wq = ""
    pol_kv = "nt"
    pol_wo = ""
    pol_out = ""
    rot = 0
    nW = 10
    nx = 2
    w_la = 3
    pro_order = "X0 S0 S1 X1 S2"
    pro_first = 10
    pro_hop = 12
    pro_n = 22
    x_issue = {2: 0.5, 3: 2.3, 4: 4.3, 5: 6.0, 6: 7.2}
    x_read = {1: 1.25, 2: 3.25, 3: 5.0, 4: 6.25, 5: 8.25, 6: 9.25}
    kv_early = [3.5, 9.7, 10.4, 11.1, 11.8, 12.5, 13.2]
    kv_step = 12
    kv_last = 42.0
    kv_knee = None
    staged = []
    wo_at = None
    wo_la = 6
    back = 20
    slack = 40
    bar_q = 1
    bar_a = 2
    bar_o = 2
    bar_late = 99
    pair_rd = ()
    pack_dma = ()
    conv_level = 0
    sm_level = ()
    clump = None
    pro_setup = False
    chain = True
    ones_at = 12
    TH = 0x4B800000
    TL = 0x33800000
    code_pf = True
    pads = True
    wo_rate = 1.0
    wo_rate2 = 0.5
    wo_gap = 3
    wo_rot = 1
    races = 6
    race_at = 2.6
    race_skip = 10
    race_len = 40
    race_step = 2
    race_clamp = 4
    force = None
    flags = (1, 2, 3, 4, 5)
    flag_delay = 80
    sleep = 0
    early = ()
    early_wait = 0.6
    load_gap = 12
    claim_at = 0
    st_group = 1
    st_pace = 0
    touch_wo = ()
    spin_max = 40000
    stamps = False
    pstamps = False
    thin = ()
    diag = None

S_X, S_WQ, S_K, S_V, S_WO, S_ALL, S_OUT, S_DBG = 8, 12, 16, 20, 24, 28, 76, 80
S_GRP, S_LEAD = 6, 7
S_W, S_LDSW, S_TL, S_LDSX = 32, 33, 34, 35
S_WQOFF, S_XOFF, S_WOOFF = 36, 43, 56
S_T0, S_T1, S_C, S_TH, S_RET = 50, 51, 52, 53, 54
S_SB, S_ST0, S_ST1, S_PRB, S_ACC, S_TOT = 63, 65, 66, 67, 68, 69
S_T2, S_SPIN, S_STAMP = 70, 71, 72
S_RA, S_RB, S_D0, S_D1 = 84, 85, 86, 87
S_PG, S_OUTB, S_ROT, S_SRC, S_NEED, S_NEW, S_TKT, S_FLR, S_PEND = 88, 90, 91, 92, 93, 94, 96, 97, 100
S_DST = 43
V_P, V_E, V_L, V_CHK, V_OV = 96, 120, 128, 136, 144
V_S, V_NEGM, V_SALT = 192, 216, 228
V_DWQ, V_DWU, V_DX, V_RW, V_RU, V_RX, V_SWQ, V_INI, V_DUM = 192, 193, 194, 195, 197, 199, 201, 201, 202
VL, VH5, VC31, VM, VG, V7, VA, VB, VC, VQ, VC4, VROW = range(204, 216)
V_DKV, V_RK, V_RT, V_DWO, V_RO, V_ST, V_FLW, V_OUT, V_STAMP = 240, 241, 244, 247, 248, 251, 252, 254, 255
V_RINV, V_FV, V_POLL, V_SW, V_PUB = 228, 231, 232, 143, 253
A_ONE, A_SEL, A_FR = 192, 204, 208

def steps_list(c):
    st = [("W", k) for k in range(c.nW)] + [("U", k) for k in range(14 - c.nW)] + [("K", 0)]
    for j in range(1, 16):
        st += [("K", j), ("V", j - 1)]
    return st + [("V", 15)] + [("O", k) for k in range(14)]

def sq(d):
    return f"s[{d}:{d+3}]"
def srd_tail(d, nbytes):
    return [f"s_mov_b32 s{d+2}, {nbytes}", f"s_mov_b32 s{d+3}, 0x00020000"]

def stamp(k):
    return [f"s_memrealtime s[{S_STAMP}:{S_STAMP+1}]", f"s_memtime s[{S_STAMP+2}:{S_STAMP+3}]", "s_waitcnt lgkmcnt(0)",
            f"v_writelane_b32 v{V_STAMP}, s{S_STAMP}, {k}", f"v_writelane_b32 v{V_STAMP}, s{S_STAMP+2}, {32+k}"]

def rot7(dst, src):
    a, b = S_RET, S_RET + 1
    return [f"s_mov_b32 s{a}, 0x06543210", f"s_mov_b32 s{b}, 0x10654321", f"s_lshl_b32 s{dst}, s{src}, 2",
            f"s_lshr_b64 s[{a}:{b}], s[{a}:{b}], s{dst}", f"s_mov_b32 s{dst}, s{a}"]

def prologue1(c):
    T0, T1 = f"s{S_T0}", f"s{S_T1}"
    o = ["s_cmp_ge_u32 s2, 256", "s_cbranch_scc1 L_end"]
    if c.stamps:
        o += [f"v_mov_b32 v{V_STAMP}, 0"] + stamp(0)
    o += ["s_bfe_u32 s3, s2, 0x10002", f"s_mul_i32 {T0}, s3, 40"]
    o += [f"s_load_dwordx8 s[88:95], s[0:1], {T0}", f"s_mov_b32 s7, {T0}"]
    if c.code_pf:
        o += ["s_getpc_b64 s[70:71]", "L_pc:", f"s_lshr_b32 {T1}, s2, 3", f"s_mul_i32 {T1}, {T1}, 2304", f"v_min_u32 v{VA}, 17, v0",
              f"v_lshlrev_b32 v{VA}, 7, v{VA}", f"s_add_u32 s70, s70, {T1}", "s_addc_u32 s71, s71, 0",
              Ins(f"global_load_dword v239, v{VA}, s[70:71]", 1, "vm", "dum")]
    o += [f"v_lshrrev_b32 v{VA}, 6, v0", f"v_and_b32 v{VL}, 63, v0", f"v_readfirstlane_b32 s{S_W}, v{VA}",
          "s_and_b32 s5, s2, 3", "s_lshl_b32 s5, s5, 2", "s_bfe_u32 s6, s2, 0x20003", "s_add_u32 s5, s5, s6", "s_lshr_b32 s4, s2, 5",
          f"v_lshrrev_b32 v{VH5}, 5, v{VL}", f"v_and_b32 v{VC31}, 31, v{VL}", f"v_lshlrev_b32 v{VC31}, 4, v{VC31}",
          f"v_lshrrev_b32 v{VM}, 3, v{VL}", f"v_lshrrev_b32 v{VG}, 4, v{VL}", f"v_and_b32 v{V7}, 7, v{VL}",
          f"s_lshr_b32 s98, s{S_W}, 1", f"s_and_b32 s99, s{S_W}, 1",
          f"v_lshlrev_b32 v{VA}, 1, v{VG}", f"v_xor_b32 v{VA}, v{VA}, v{V7}", f"v_lshlrev_b32 v{VA}, 4, v{VA}",
          f"s_lshl_b32 {T0}, s4, 2", f"s_add_u32 {T0}, {T0}, s{S_W}", f"s_mul_i32 {T0}, {T0}, 43008",
          f"v_mul_u32_u24 v{VB}, 896, v{VM}", f"v_add3_u32 v{V_DX}, v{VB}, v{VA}, {T0}",
          f"s_lshl_b32 {T0}, s99, 16", f"s_lshl_b32 {T1}, s5, 9", f"s_add_u32 s{S_D0}, {T0}, {T1}",
          f"s_lshl_b32 {T1}, s98, 15", f"s_add_u32 {T0}, s{S_D0}, {T1}",
          f"v_lshlrev_b32 v{VB}, 17, v{VH5}", f"v_add3_u32 v{V_DWQ}, v{VB}, v{VC31}, {T0}",
          f"s_mul_i32 s{S_LDSW}, s{S_W}, 4224", f"s_mul_i32 s{S_LDSX}, s{S_W}, 6144"]
    o += srd_tail(S_X, 8 * 172032) + srd_tail(S_WQ, 448 * 8192)
    if c.rot:
        o += [f"s_mul_i32 {T0}, s6, {(0, 2, 1, 0)[c.rot]}", f"s_add_u32 {T0}, {T0}, s4", f"s_mul_i32 {T1}, {T0}, 37", f"s_lshr_b32 {T1}, {T1}, 8",
              f"s_mul_i32 {T1}, {T1}, 7", f"s_sub_u32 {T0}, {T0}, {T1}"] + rot7(S_D1, S_T0)
        for k in range(7):
            o += [f"s_bfe_u32 {T0}, s{S_D1}, {0x40000 + 4*k}", f"s_lshl_b32 s{S_XOFF+k}, {T0}, 7"]
            if k < c.nW // 2:
                o += [f"s_lshl_b32 s{S_WQOFF+k}, {T0}, 19"]
        o += [f"s_lshl_b32 {T0}, s98, 2", f"s_lshr_b32 s{S_D1}, s{S_D1}, {T0}"]
        for k in range(c.nW // 2, 7, 2):
            o += [f"s_bfe_u32 {T0}, s{S_D1}, {0x40000 + 4*k}", f"s_lshl_b32 s{S_WQOFF+k}, {T0}, 19"]
    return o + ["s_waitcnt lgkmcnt(0)", f"s_mov_b64 s[{S_X}:{S_X+1}], s[88:89]", f"s_mov_b64 s[{S_WQ}:{S_WQ+1}], s[94:95]"]

def dwu(c):
    o = [f"v_lshlrev_b32 v{VB}, 4, v{V7}", f"v_lshl_add_u32 v{VB}, v{VH5}, 18, v{VB}", f"v_and_b32 v{VA}, 1, v{VM}",
         f"v_lshl_add_u32 v{VB}, v{VA}, 17, v{VB}", f"v_and_b32 v{VA}, 1, v{VG}", f"v_lshl_add_u32 v{VB}, v{VA}, 15, v{VB}"]
    if not c.rot:
        o += [f"s_lshl_b32 s{S_D1}, s98, 19", f"s_add_u32 s{S_D0}, s{S_D0}, s{S_D1}"]
    return o + [f"v_add_u32 v{V_DWU}, s{S_D0}, v{VB}"]

def prologue2(c):
    o = [f"s_load_dwordx2 s[{S_WO}:{S_WO+1}], s[0:1], s7 offset:32", f"s_load_dwordx2 s[{S_OUT}:{S_OUT+1}], s[0:1], 80",
         f"s_load_dwordx2 s[{S_DBG}:{S_DBG+1}], s[0:1], 88",
         f"s_load_dwordx2 s[{S_ALL}:{S_ALL+1}], s[0:1], 96",
         f"s_mov_b64 s[{S_K}:{S_K+1}], s[90:91]", f"s_mov_b64 s[{S_V}:{S_V+1}], s[92:93]",
         f"v_lshrrev_b32 v{VROW}, 2, v{VL}", f"v_and_b32 v{VROW}, 7, v{VROW}", f"v_and_b32 v{VC4}, 3, v{VL}",
         f"v_lshlrev_b32 v{VA}, 10, v{VROW}", f"v_and_b32 v{VB}, 1, v{VROW}", f"v_lshl_add_u32 v{VA}, v{VB}, 3, v{VA}",
         f"v_lshrrev_b32 v{VB}, 1, v{VROW}", f"v_lshl_add_u32 v{VA}, v{VB}, 6, v{VA}", f"v_lshl_add_u32 v{VA}, v{VC4}, 4, v{VA}",
         f"v_lshl_add_u32 v{V_RW}, v{VH5}, 9, v{VA}", f"v_lshl_add_u32 v{V_RU}, v{VH5}, 7, v{VA}",
         f"v_add_u32 v{V_RW+1}, {3*SLOT}, v{V_RW}", f"v_add_u32 v{V_RU+1}, {3*SLOT}, v{V_RU}",
         f"v_and_b32 v{VQ}, 15, v{VL}", f"v_lshlrev_b32 v{VA}, 7, v{VQ}", f"v_and_b32 v{VB}, 6, v{VL}", f"v_xor_b32 v{VB}, v{VB}, v{VG}",
         f"v_lshl_add_u32 v{VA}, v{VB}, 4, v{VA}", f"s_add_u32 s{S_T0}, s{S_LDSX}, {10*BLK}",
         f"v_add_u32 v{V_RX}, s{S_T0}, v{VA}", f"v_xor_b32 v{VA}, 64, v{VA}", f"v_add_u32 v{V_RX+1}, s{S_T0}, v{VA}"]
    o += srd_tail(S_K, 1 << 25) + srd_tail(S_V, 1 << 25) + srd_tail(S_ALL, OOB) + srd_tail(S_DBG, 256)
    o += srd_tail(S_WO, 4096 * 896) + srd_tail(S_OUT, 8 * 192 * 896 * 2)
    return o + dwu(c)

def deferred(c):
    D0, D1, T2 = f"s{S_D0}", f"s{S_D1}", f"s{S_T2}"
    kv = [
        f"s_lshl_b32 {D0}, s4, 4", f"s_add_u32 {D0}, {D0}, s5", f"s_lshl_b32 {D0}, {D0}, 18",
        f"s_lshl_b32 {D1}, s98, 13", f"s_add_u32 {D0}, {D0}, {D1}", f"s_lshl_b32 {D1}, s99, 11", f"s_add_u32 {D0}, {D0}, {D1}",
        f"v_lshlrev_b32 v{VA}, 12, v{VH5}", f"v_add3_u32 v{V_DKV}, v{VA}, v{VC31}, {D0}", f"v_lshlrev_b32 v{V_ST}, 4, v{VL}"]
    ini = [
        f"s_lshl_b32 {D0}, s3, 3", f"s_add_u32 {D0}, {D0}, s4", f"s_lshl_b32 {D0}, {D0}, 2", f"s_add_u32 {D0}, {D0}, s{S_W}",
        f"s_lshl_b32 s{S_PG}, {D0}, 21", f"s_lshr_b32 {D0}, {D0}, 2", f"s_lshl_b32 s{S_GRP}, {D0}, 4", f"s_add_u32 s{S_FLR}, s{S_PG}, {AUX}",
        f"s_min_u32 {D1}, s5, 1", f"s_lshl_b32 {D0}, {D1}, 28", f"s_add_u32 {T2}, s{S_FLR}, {D0}",
        f"s_or_b32 {D1}, s5, s{S_W}", f"s_min_u32 {D1}, {D1}, 1", f"s_lshl_b32 {D0}, {D1}, 28", f"s_add_u32 s{S_LEAD}, s{S_GRP}, {D0}",
        f"s_add_u32 s{S_PRB}, s{S_FLR}, {D0}",
        f"v_lshrrev_b32 v{VA}, 1, v{VL}", f"v_mul_u32_u24 v{VB}, {0x4000+256}, v{VA}", f"v_min_u32 v{V_DUM}, 1, v{VA}", f"v_min_u32 v{V_DUM+1}, 1, v{VA}",
        f"v_and_b32 v{VA}, 3, v{VL}", f"v_lshrrev_b32 v{VC}, 1, v{VA}", f"v_lshl_add_u32 v{VB}, v{VC}, 12, v{VB}",
        f"v_and_b32 v{VA}, 1, v{VL}", f"v_lshl_add_u32 v{VB}, v{VA}, 13, v{VB}",
        f"v_cmp_gt_u32 vcc, {2+2*c.races}, v{VL}", f"v_mov_b32 v{VC}, {OOB}", f"v_min_u32 v{VA}, 1, v{VL}",
        f"v_lshlrev_b32 v{V_FLW}, 28, v{VA}", f"v_cndmask_b32 v{V_INI}, v{VC}, v{VB}, vcc"]
    att = [f"s_mov_b32 s{S_C}, 0x3db8aa3b", f"s_mov_b32 s{S_TH}, {c.TH}", f"s_mov_b32 s{S_TL}, {c.TL}",
           f"v_mul_u32_u24 v{VA}, 1056, v{VROW}", f"v_lshl_add_u32 v{VA}, v{VC4}, 3, v{VA}",
           f"v_lshl_add_u32 v{V_RT}, v{VH5}, 9, v{VA}", f"v_lshl_add_u32 v{V_RO}, v{VH5}, 7, v{VA}",
           f"v_mul_u32_u24 v{VA}, 1056, v{V7}", f"v_and_b32 v{VB}, 1, v{VM}", f"v_lshl_add_u32 v{VA}, v{VB}, 9, v{VA}",
           f"v_lshl_add_u32 v{V_RK}, v{VG}, 4, v{VA}"]
    for base in (V_RK, V_RT, V_RO):
        att += [f"v_add_u32 v{base+1}, {3*SLOT}, v{base}", f"v_add_u32 v{base+2}, {6*SLOT}, v{base}"]
    att += [f"v_mov_b32 v{VB}, 0x3f803f80"]
    for t in range(3):
        att += [f"v_cmp_eq_u32 vcc, {t}, v{VC4}"] + [f"v_mov_b32 v{V_NEGM+4*t+r}, 0" for r in range(4)]
        att += [f"v_cndmask_b32 v{VA}, 0, v{VB}, vcc"] + [f"v_accvgpr_write_b32 a{A_ONE+4*t+r}, v{VA}" for r in range(4)]
    out = [
        f"s_lshl_b32 {D0}, s5, 2", f"s_add_u32 {D0}, {D0}, s98", f"s_lshl_b32 {D0}, {D0}, 4", f"s_add_u32 {D0}, {D0}, s99",
        f"s_mul_i32 {D0}, {D0}, {4*896}", f"v_mul_u32_u24 v{VA}, 7168, v{VM}", f"v_lshlrev_b32 v{VB}, 4, v{V7}",
        f"v_add3_u32 v{V_DWO}, v{VA}, v{VB}, {D0}",
        f"v_mul_u32_u24 v{VA}, 1792, v{V7}", f"v_lshl_add_u32 v{VA}, v{VH5}, 4, v{VA}", f"v_and_b32 v{VB}, 1, v{VG}",
        f"v_lshl_add_u32 v{VA}, v{VB}, 5, v{VA}", f"v_and_b32 v{VC}, 1, v{VM}", f"v_lshl_add_u32 v{V_OUT}, v{VC}, 3, v{VA}",
        f"v_xor_b32 v{VB}, v{VB}, v{VC}", f"v_lshrrev_b32 v{VA}, 1, v{V7}", f"v_lshl_add_u32 v{VA}, v{VB}, 2, v{VA}",
        f"v_and_b32 v{VB}, 1, v{VL}", f"v_lshlrev_b32 v{VB}, 4, v{VB}", f"v_mov_b32 v{VC}, 0x3f80", f"v_lshlrev_b32 v{VB}, v{VB}, v{VC}"]
    for r in range(4):
        out += [f"v_cmp_eq_u32 vcc, {r}, v{VA}", "s_nop 1", f"v_cndmask_b32 v{VC}, 0, v{VB}, vcc", f"v_accvgpr_write_b32 a{A_SEL+r}, v{VC}"]
    if c.wo_rot == 1:
        out += rot7(S_ROT, 4)
    else:
        tabl = {2: 0x64206420, 3: 0x20520520}[c.wo_rot]
        out += [f"s_lshl_b32 {D0}, s4, 2", f"s_lshr_b32 {D0}, {tabl}, {D0}", f"s_and_b32 {D0}, {D0}, 15"] + rot7(S_ROT, S_D0)
    for k in range(7):
        out += [f"s_bfe_u32 {D0}, s{S_ROT}, {0x40000 + 4*k}", f"s_lshl_b32 s{S_WOOFF+k}, {D0}, 7"]
    out += [f"s_mul_i32 s{S_OUTB}, s4, 344064", f"s_mul_i32 {D0}, s3, 896", f"s_add_u32 s{S_OUTB}, s{S_OUTB}, {D0}",
            f"s_mul_i32 {D0}, s{S_W}, {3*28672}", f"s_add_u32 s{S_OUTB}, s{S_OUTB}, {D0}",
            f"s_lshl_b32 s{S_SB}, s5, 14", f"s_and_b32 {D0}, s5, 2", f"s_lshl_b32 {D0}, {D0}, 10", f"s_add_u32 s{S_SB}, s{S_SB}, {D0}"]
    return kv, ini, att, out

def qacc(t, q):
    return ((t >> 1) * 3 + q) * 8 + (t & 1) * 4
def sreg(j, kt, q):
    return (V_SALT if (j == 0 and kt == 0) else V_S + 12 * kt) + q * 4
def preg(j, q):
    return V_P + (j & 1) * 12 + q * 4
def lreg(j):
    return V_L + (j & 1) * 4
def oreg(t, q):
    return ("v", V_OV + (t * 3 + q) * 4) if t < 4 else ("a", (t * 3 + q) * 4)
def oacc(ch, nt, q):
    return (96 if ch % 2 == 0 else 144) + (q * 4 + nt) * 4

def softmax_items(j, kt, tmp, qorder=(0, 1, 2)):
    out, pend = [], None
    for q in qorder:
        for hf in range(2):
            e = V_E + 2 * (tmp[0] % 4)
            tmp[0] += 1
            out.append(Ins(f"v_exp_f32 v{e}, v{sreg(j,kt,q)+2*hf}", 2, meta=q))
            if pend:
                out.append(pend)
            out.append(Ins(f"v_exp_f32 v{e+1}, v{sreg(j,kt,q)+2*hf+1}", 2, meta=q))
            pend = Ins(f"v_cvt_pk_bf16_f32 v{preg(j,q)+2*kt+hf}, v{e}, v{e+1}", 1, meta=q)
    return out, pend

def ones_mfma(j):
    o = []
    for q in range(3):
        cin = vr(lreg(j), 4) if q else (vr(lreg(j - 1), 4) if j else "0")
        o.append(f"{MF} {vr(lreg(j),4)}, {ar(A_ONE+4*q,4)}, {vr(preg(j,q),4)}, {cin}")
    return o

def rare_path(j):
    D, F, T = (138, None, 141) if j == 0 else (228, 231, 234)
    o = ["s_nop 7", "s_nop 7"]
    for q in range(3):
        a, b = sreg(j, 0, q), sreg(j, 1, q)
        o += [f"v_max3_f32 v{D+q}, v{a}, v{a+1}, v{a+2}", f"v_max3_f32 v{D+q}, v{D+q}, v{a+3}, v{b}",
              f"v_max3_f32 v{D+q}, v{D+q}, v{b+1}, v{b+2}", f"v_max_f32 v{D+q}, v{D+q}, v{b+3}"]
    for op in ("v_permlane32_swap_b32", "v_permlane16_swap_b32"):
        o += [f"v_mov_b32 v{T+q}, v{D+q}" for q in range(3)] + ["s_nop 1"]
        o += [f"{op} v{T+q}, v{D+q}" for q in range(3)]
        o += [f"v_max_f32 v{D+q}, v{D+q}, v{T+q}" for q in range(3)]
    if j:
        o += [f"v_max_f32 v{D+q}, 0, v{D+q}" for q in range(3)]
        o += [f"v_exp_f32 v{F+q}, -v{D+q}" for q in range(3)]
    for q in range(3):
        tgt = [V_NEGM + 4 * q, sreg(j, 0, q), sreg(j, 1, q)] + ([sreg(1, 0, q)] if j == 0 else [])
        for a in tgt:
            o += [f"v_sub_f32 v{a+r}, v{a+r}, v{D+q}" for r in range(4)]
        if j:
            o += [f"v_mul_f32 v{lreg(j-1)+q}, v{lreg(j-1)+q}, v{F+q}"]
    tmp = [0]
    for kt in range(2):
        it, pend = softmax_items(j, kt, tmp)
        o += [x.text for x in it] + ["s_nop 0", pend.text]
    if j:
        for t in range(16):
            for q in range(3):
                f, a = oreg(t, q)
                if f == "v":
                    o += [f"v_mul_f32 v{a+r}, v{a+r}, v{F+q}" for r in range(4)]
                else:
                    o += [f"v_accvgpr_read_b32 v{T+r}, a{a+r}" for r in range(4)]
                    o += [f"v_mul_f32 v{T+r}, v{T+r}, v{F+q}" for r in range(4)]
                    o += [f"v_accvgpr_write_b32 a{a+r}, v{T+r}" for r in range(4)]
    o += ["s_nop 1"] + ones_mfma(j) + ["s_nop 7", "s_nop 7"]
    return check_hazards(o, fix=True)[0]

def order(mode):
    if mode == "A3":
        return [(f, q if f % 2 == 0 else 2 - q) for f in range(16) for q in range(3)]
    out = []
    for b in range(4):
        for qi in range(3):
            q = qi if b % 2 == 0 else 2 - qi
            rng = range(4) if qi % 2 == 0 else range(3, -1, -1)
            out += [(4 * b + i, q) for i in rng]
    return out

def build_main(c):
    steps = steps_list(c)
    NS = len(steps)
    idx = {s: n for n, s in enumerate(steps)}
    tl = Timeline()
    G, USE, LAST, ONES, FIN = {}, {}, {}, {}, {}
    fb = lambda F: A_FR + 4 * (F % c.NF)
    def mode(n):
        ty, k = steps[n]
        return "CH" if c.chain and (ty in "UK" or (ty == "O" and k >= 2)) else "A3"
    def ki(n, f):
        return (f & 3, f >> 2) if (mode(n) == "CH" or steps[n][0] == "U") else (f >> 2, f & 3)
    started = set()
    for n, (ty, k) in enumerate(steps):
        for m, (f, q) in enumerate(order(mode(n))):
            F = 16 * n + f
            if ty == "W":
                key, d, b, c0 = ("Q", f, q), vr(qacc(f, q), 4), ar((k * 3 + q) * 4, 4), "0"
            elif ty == "U":
                i, nt = ki(n, f)
                t = 4 * (k & 3) + nt
                key, d, b, c0 = ("Q", t, q), vr(qacc(t, q), 4), ar(((4 * (k >> 2) + c.nW + i) * 3 + q) * 4, 4), "0"
            elif ty == "K":
                kt, s = f >> 3, f & 7
                key, d, b, c0 = ("S", k, kt, q), vr(sreg(k, kt, q), 4), vr((s * 3 + q) * 4, 4), vr(V_NEGM + 4 * q, 4)
            elif ty == "V":
                fl, a = oreg(f, q)
                key, d, b, c0 = ("O", f, q), vr(a, 4, fl), vr(preg(k, q), 4), "0"
            else:
                i, nt = ki(n, f)
                s = (k & 1) * 4 + i
                key, d, b, c0 = ("P", k >> 1, nt, q), vr(oacc(k >> 1, nt, q), 4), vr((s * 3 + q) * 4, 4), "0"
            i_m = tl.add_mfma(f"{MF} {d}, {ar(fb(F),4)}, {b}, {d if key in started else c0}")
            started.add(key)
            FIN[key] = i_m
            if m % 3 == 0:
                G[16 * n + m // 3] = i_m
            USE.setdefault(F, i_m)
            LAST[F] = i_m
            if ty == "O":
                USE.setdefault(("B", s), i_m)
            if (ty, k) == ("K", 0):
                USE.setdefault(("QB", s), i_m)
            jn = None
            if ty == "V" and k < 15 and m == 3 * c.ones_at + 2:
                jn = k + 1
            if (ty, k) == ("K", 1) and m == 11:
                jn = 0
            if jn is not None:
                for t in ones_mfma(jn):
                    ONES[jn] = tl.add_mfma(t)
    NM = len(tl.mf)
    beg = lambda n: G[16 * n]
    end = lambda n: (G[16 * (n + 1)] - 1) if n + 1 < NS else NM - 1
    at = lambda x: min(NM - 1, beg(int(x)) + int((x - int(x)) * (end(int(x)) - beg(int(x)) + 1)))
    nK0, nV15, nO0 = idx[("K", 0)], idx[("V", 15)], idx[("O", 0)]

    bsteps = [n for n in range(0, nK0, c.bar_q)]
    if c.bar_q == 2:
        bsteps = [0] + list(range(1, nK0, 2))
    bsteps += [nK0] + list(range(nK0 + c.bar_a, nV15, c.bar_a))
    bsteps += list(range(nV15, NS - 1, c.bar_o)) + list(range(c.bar_late, nV15))
    bsteps = sorted(set(bsteps))
    bgap = {n: G[16 * (n + 1) - c.D] for n in bsteps}
    covers = {n: list(range(n + 1, (bsteps[i + 1] if i + 1 < len(bsteps) else NS - 1) + 1)) for i, n in enumerate(bsteps)}
    def freed(m):
        later = [n for n in bsteps if n >= m + 1]
        return bgap[later[0]] + 1 if later else NM

    xreg = lambda kc: [16, 13, 10][kc % c.nx] * BLK
    x_read = c.x_read
    def xfreed(kc):
        g = at(x_read[kc]) + 20 + 3 * (c.D + 2)
        return min(bgap[n] for n in bsteps if bgap[n] >= g) + 1
    xslots = {5: (5,), 6: (4, 5), 7: (4,), 8: (6,)} if c.nx == 3 else {6: (5,), 7: (5,), 8: (6,)}
    free_at = {s: max([-1] + [xfreed(kc) for kc in xslots.get(s, ())]) for s in range(9)}
    pro = [(t[0], int(t[1:]), p) for t in c.pro_order.split() for p in range(6 if t[0] == "X" else 4)]
    pro_s = [int(t[1:]) for t in c.pro_order.split() if t[0] == "S"]
    units = []
    def add(kind, i, x, pieces, step=4):
        units.append([at(x), step, kind, i, list(pieces)])
    rest = {}
    for kind, i, p in pro[c.pro_n:]:
        rest.setdefault((kind, i), []).append(p)
    for (kind, i), ps in rest.items():
        add(kind, i, 0.0, ps, 3)
    for m in range(max(pro_s) + 1, 14):
        add("S", m, max(0.03, m - c.w_la), range(4), 3)
    for kc, x in c.x_issue.items():
        add("X", kc, x, range(6), 3)
        if kc > c.nx:
            units[-1][0] = max(units[-1][0], at(x_read[kc - c.nx]) + 20 + 3 * (c.D + 2))
    staged = {m: r for x, m, r in c.staged}
    for x, m, r in c.staged:
        ks = (r + 15) // 12
        assert r + 16 <= 192 and (r >= 168 or x >= (ks + 1 if ks < c.nW else c.nW + 4 * ((ks - c.nW) // 4 + 1)))
        assert r + 16 <= 48 or m < 14 + len(c.kv_early)
        add("G", m, x, range(4), c.kv_step)
    for m, x in zip(range(14, 14 + len(c.kv_early)), c.kv_early):
        add("S", m, x, range(4), 6 if m in staged else c.kv_step)
    m0 = 14 + len(c.kv_early)
    knots = [(m0, 14.0)] + ([c.kv_knee] if c.kv_knee else []) + [(46, c.kv_last + 1)]
    for (ma, xa), (mb, xb) in zip(knots, knots[1:]):
        w = (xb - xa) / len([m for m in range(ma, mb) if m not in staged])
        x = xa
        for m in range(ma, mb):
            if m in staged:
                add("S", m, x + 0.01, range(4), 6)
            else:
                add("S", m, x, range(4), int(w * 12))
                x += w
    x = c.kv_last + 1
    for m in range(46, 60):
        x = c.wo_at[m - 46] if c.wo_at else max(x, m - c.wo_la)
        add("S", m, x, range(4), 3)
        x += c.wo_rate if x < 45 else c.wo_rate2
    units.sort(key=lambda u: u[0])
    slot_of, slot_lo = {}, {}
    def alloc(m):
        if m < 14:
            pool = list(range(c.w_la + 2))
        elif 13 not in slot_of:
            pool = list(range(c.w_la + 2, 9))
        else:
            pool = list(range(9))
        s = min(pool, key=lambda s: (free_at[s], s))
        slot_of[m], slot_lo[m] = s, free_at[s]
        free_at[s] = freed(m)
    for m in pro_s:
        alloc(m)
    for u in units:
        if u[2] == "S" and u[3] not in slot_of:
            alloc(u[3])
            u[0] = max(u[0], slot_lo[u[3]])
    units.sort(key=lambda u: u[0])

    def soff(reg, fixed, off):
        return Ins(f"s_add_u32 s{S_T0}, s{reg}, {off}" if c.rot else f"s_mov_b32 s{S_T0}, {fixed + off}")
    def dma(kind, i, p):
        if kind == "X":
            return [Ins(f"s_add_u32 m0, s{S_LDSX}, {xreg(i) + 1024*p}"), soff(S_XOFF + i, 128 * i, 7168 * p),
                    Ins(f"buffer_load_dwordx4 v{V_DX}, {sq(S_X)}, s{S_T0} offen {c.pol_x} lds", 1, "vm", ("X", i))]
        ty, k = steps[i]
        if kind == "G":
            o = [Ins(f"s_mov_b32 s{S_T1}, {k*16384}")] if p == 0 else []
            off = f" offset:{512*p}" if p else ""
            return o + [Ins(f"buffer_load_dwordx4 {ar(staged[i]+4*p,4)}, v{V_DKV}, {sq(S_K if ty == 'K' else S_V)}, s{S_T1} offen{off} {c.pol_kv}", 1, "vm", ("G", i))]
        base = slot_of[i] * SLOT
        if i in staged:
            sw = V_SW if i >= 14 + len(c.kv_early) else V_SWQ
            o = [Ins("", 1, "waitv", {("G", i)}), Ins(f"s_add_u32 s{S_T0}, s{S_LDSW}, {base}"), Ins(f"v_add_u32 v{sw}, s{S_T0}, v{V_ST}")] if p == 0 else []
            return o + [Ins(f"ds_write_b128 v{sw}, {ar(staged[i]+4*p,4)} offset:{1056*p}", 1, "ds", ("SW", i))]
        if ty in "WU":
            pos, off, v = (k >> 1, ((k & 1) * 32 + p) * 8192, V_DWQ) if ty == "W" else (c.nW // 2 + 2 * (k >> 2), p * 8192 + (k & 3) * 128, V_DWU)
            return [Ins(f"s_add_u32 m0, s{S_LDSW}, {base + WPOS[p]}"), soff(S_WQOFF + pos, pos << 19, off),
                    Ins(f"buffer_load_dwordx4 v{v}, {sq(S_WQ)}, s{S_T0} offen {c.pol_wq} lds", 1, "vm", ("S", i))]
        o = []
        if ty in "KV":
            g, sr, v, pol = 512 * p, (S_K if ty == "K" else S_V), V_DKV, c.pol_kv
            if p == 0:
                o.append(Ins(f"s_mov_b32 s{S_T1}, {k*16384}"))
        else:
            g, sr, v, pol = 896 * p, S_WO, V_DWO, c.pol_wo
            if p == 0:
                o.append(Ins(f"s_add_u32 s{S_T1}, s{S_WOOFF+(k>>1)}, {(k&1)*128*896}"))
        o.append(Ins(f"s_add_u32 m0, s{S_LDSW}, {base + 1056*p - g}"))
        off = f" offset:{g}" if g else ""
        o.append(Ins(f"buffer_load_dwordx4 v{v}, {sq(sr)}, s{S_T1} offen{off} {pol} lds", 1, "vm", ("S", i)))
        return o

    def reads(F):
        n, f = F // 16, F % 16
        ty, k = steps[n]
        s, r = slot_of[n], fb(F)
        win, base = s // 3, (s % 3) * SLOT
        if ty == "K":
            return [Ins(f"ds_read_b128 {ar(r,4)}, v{V_RK+win} offset:{base + (f>>3)*BLK + (f&7)*64}", 1, "ds", F)]
        if ty == "V":
            v, o0, dd = V_RT + win, base + f * 32, BLK
        elif ty == "W":
            v, o0, dd = V_RW + win, base + (f >> 1) * 64 + (f & 1) * 8, BLK
        else:
            i, nt = ki(n, f)
            o0, dd = (i >> 1) * BLK + (i & 1) * 512, 256
            if ty == "U":
                v, o0 = V_RU + win, o0 + base + (nt >> 1) * 64 + (nt & 1) * 8
            else:
                v, o0 = V_RO + win, o0 + base + nt * 32
        assert o0 + dd < 65536
        return [Ins(f"ds_read_b64_tr_b16 {ar(r,2)}, v{v} offset:{o0}", 1, "ds", F),
                Ins(f"ds_read_b64_tr_b16 {ar(r+2,2)}, v{v} offset:{o0+dd}", 1, "ds", F)]
    def xreads(kc):
        return [Ins(f"ds_read_b128 {ar(((2*kc+s)*3+q)*4,4)}, v{V_RX+s} offset:{xreg(kc) - 10*BLK + q*2048}", 1, "ds", ("X", kc))
                for s in range(2) for q in range(3)]

    P = lambda t: tl.put(-1, Ins(t) if isinstance(t, str) else t)
    PS = lambda k: [P(t) for t in stamp(k)] if c.pstamps else None
    for t in prologue1(c):
        P(t)
    PS(1)
    for e in pro[:c.pro_first]:
        for x in dma(*e):
            P(x)
    PS(2)
    for t in prologue2(c):
        P(t)
    PS(3)
    for e in pro[c.pro_first:c.pro_hop]:
        for x in dma(*e):
            P(x)
    if c.pads:
        for t in ["s_mov_b64 exec, 0"] + [x for w in range(3) for x in (f"s_cmp_eq_u32 s{S_W}, {w}", f"s_cbranch_scc1 L_pad{w}")] + \
                 ["s_branch L_pad3", ".p2align 12", "L_main:", "s_mov_b64 exec, -1"]:
            P(t)
    kv, ini, att, out = deferred(c)
    init = Ins(f"buffer_store_dwordx2 {vr(V_DUM,2)}, v{V_INI}, {sq(S_ALL)}, s{S_T2} offen sc1", 1, "vm", "reset")
    setup = (ini if c.clump else ini + kv + att + out) if c.pro_setup else []
    share = -(-len(setup) // (c.pro_n - c.pro_hop))
    for e in pro[c.pro_hop:c.pro_n]:
        for x in dma(*e) + setup[:share]:
            P(x)
        setup = setup[share:]
    PS(4)
    P(Ins("", 1, "waitv", {("X", 0), ("S", 0)}))
    P("s_waitcnt lgkmcnt(0)")
    if c.pro_setup:
        P(init)
    PS(5)
    P("s_barrier")
    PS(6)
    for x in xreads(0):
        P(x)
    for F in range(c.D):
        for x in reads(F):
            P(x)
    P(Ins("", 1, "waitl", {0, ("X", 0)}))

    NFR = 16 * NS
    for F in range(c.D, NFR):
        g = G[F - c.D]
        assert F < c.NF or LAST[F - c.NF] <= g
        same = any(at(a) <= g < at(b) for a, b in c.pair_rd)
        for k, x in enumerate(reads(F)):
            tl.put(g + (0 if same else k), x)
    hasread = lambda g: bool(tl.gaps[g].mem)
    def lead_before(ins, g, span=3):
        for i in range(g, g - span, -1):
            if i >= 0 and hasread(i) and not tl.gaps[i].lead:
                tl.gaps[i].lead.append(ins)
                return i
        return tl.back(ins, g, max(0, g - span))
    for n in bsteps:
        tl.gaps[bgap[n]].lead.append(Ins("s_barrier"))
        need = {("S", m) for m in covers[n]}
        if n == max(b for b in bsteps if b < nK0):
            need.add("dum")
        lead_before(Ins("", 1, "waitv", need), bgap[n] - 1)
    for kc, r in x_read.items():
        g = lead_before(Ins("", 1, "waitv", {("X", kc)}), at(r) + 1)
        tl.chain(xreads(kc), g + 1, at(r) + 20)
    F = 1
    while F < NFR:
        grp = [F]
        if mode(F // 16) == "CH" and F % 4 == 1:
            grp = [F, F + 1, F + 2]
        need = set(grp)
        ty, k = steps[F // 16]
        if F % 16 == 0 and ((ty == "U" and k % 4 == 0) or (ty == "W" and k % 2 == 0)):
            need |= {("X", k // 2)} if ty == "W" else {("X", c.nW // 2 + k // 2), ("X", c.nW // 2 + k // 2 + 1)}
            tl.back(Ins("", 1, "waitl", need), USE[F] - 1, USE[F] - 1)
        else:
            lead_before(Ins("", 1, "waitl", need), min(USE[x] for x in grp) - 1)
        F += len(grp)

    pieces, last_t = [], {}
    for seq, (g0, step, kind, i, ps) in enumerate(units):
        stream = "sw" if (kind == "S" and i in staged) else "kv" if (kind == "G" or (kind == "S" and i >= 14)) else "w"
        for n_p, p in enumerate(ps):
            tgt = max(g0 + n_p * step, last_t.get(stream, -1))
            last_t[stream] = tgt
            pieces.append((tgt, seq, n_p, kind, i, p))
    pieces.sort()
    state = dict(prev=-1, k=0)
    margin = {}
    def place_units(upto, back, slack):
        while state["k"] < len(pieces) and pieces[state["k"]][0] < upto:
            tgt, _, _, kind, i, p = pieces[state["k"]]
            state["k"] += 1
            ins = dma(kind, i, p)
            prev = state["prev"]
            lo = max(tgt - back, prev + (c.wo_gap if kind == 'S' and i >= 48 else 3), prev + len(ins))
            if kind == "S":
                lo = max(lo, slot_lo[i] + len(ins) - 1)
            g = lo
            while tl.gaps[g].seq() and g < lo + slack:
                g += 1
            if tl.gaps[g].seq():
                g = min(range(lo, lo + slack), key=lambda k: (tl.gaps[k].added(ins[-1], 1), k))
            if any(at(a) <= g < at(b) for a, b in c.pack_dma) and cls(ins[-1]) == "m" and len(ins) >= (3 if g < beg(nK0) else 2):
                tl.gaps[g].mem += sorted(ins[:-1], key=lambda x: "m0" not in x.text) + ins[-1:]
            else:
                tl.gaps[g].mem.append(ins[-1])
                if ins[:-1]:
                    tl.chain(ins[:-1], max(prev + 1, g - 6), g - 1)
            state["prev"] = g
            if kind == "G" or (kind == "S" and i >= 14):
                state.setdefault("kv0", g)
            if kind == "S" and i > 0:
                margin[i] = round((min(bgap[n] for n in bsteps if i in covers[n]) - g) / 49.5, 1)
    place_units(beg(nK0), 0, 8)

    L = lambda ts: [Ins(t) for t in ts]
    if c.pro_setup:
        ps = [(0, 0)]
    else:
        ps = tl.chain(L(ini) + [init], 0, at(c.race_at) - 62)
        ps = tl.chain(L(kv), ps[-1][0] + 1, state["kv0"] - 2)
    if c.touch_wo:
        it = [f"s_lshl_b32 s{S_D0}, s5, 4", f"s_add_u32 s{S_D0}, s{S_D0}, s{S_W}", f"s_mul_i32 s{S_D0}, s{S_D0}, {16*896}",
              f"s_min_u32 s{S_D1}, s4, 6", f"s_lshl_b32 s{S_D1}, s{S_D1}, 7", f"s_add_u32 s{S_D0}, s{S_D0}, s{S_D1}",
              f"v_min_u32 v{VA}, 1, v{VG}", f"v_lshlrev_b32 v{VA}, 28, v{VA}", f"v_mul_u32_u24 v{VB}, 896, v{VL}",
              f"v_add3_u32 v238, v{VA}, v{VB}, s{S_D0}"]
        ps = tl.chain(L(it), ps[-1][0] + 1, at(c.touch_wo[0]) - 1)
        for k, x in enumerate(c.touch_wo):
            tl.chain([Ins(f"s_mov_b32 s{S_ST1}, {k*64*896}"),
                      Ins(f"buffer_load_dword v239, v238, {sq(S_WO)}, s{S_ST1} offen", 1, "vm", "dum")], at(x), at(x) + 12)
    ini_end = ps[-1][0]
    def fill(ts, g):
        sec = 0
        for t in ts:
            ins = t if isinstance(t, Ins) else Ins(t)
            while True:
                gp = tl.gaps[g]
                if gp.mem and cls(gp.mem[0]) == "d":
                    k = gp.section(ins, sec)
                    if gp.added(ins, k) <= 0:
                        break
                g, sec = g + 1, 0
            gp.add(ins, k)
            sec = 2
        return g
    A, Tt = f"s{S_ACC}", f"s{S_TOT}"
    g = fill([Ins("", 1, "waitv", {"reset"}), f"s_mov_b32 {Tt}, 0", f"s_mov_b64 s[{S_RA}:{S_RB}], 0", f"s_mov_b32 {A}, 0"], at(c.race_at))
    reset_seen = g
    for i in range(c.races):
        off = (i + 1) * (0x4000 + 256) + ((i + 1) & 1) * 4096
        ld = [f"s_buffer_load_dword s{S_RA}, {sq(S_ALL)}, s{S_PRB} offset:{off}",
              f"s_buffer_load_dword s{S_RB}, {sq(S_ALL)}, s{S_PRB} offset:{off+8192}"]
        sm = [f"s_add_u32 {A}, {A}, s{S_RA}", f"s_sub_u32 {A}, {A}, s{S_RB}"]
        first = (i + i // 2) % 2
        g0 = fill(ld[::-1 if first else 1], g + 1)
        g = g0 + c.race_skip
        while g < g0 + c.race_len:
            g = max(fill(sm[::-1 if first else 1], g) + 1, g + c.race_step)
        if c.stamps:
            tl.put(g, Ins(f"v_writelane_b32 v{V_STAMP}, {A}, {50+i}"), 2)
            g += 1
        g = fill([f"s_min_i32 {A}, {A}, {c.race_clamp}", f"s_max_i32 {A}, {A}, {-c.race_clamp}", f"s_add_u32 {Tt}, {Tt}, {A}",
                  f"s_mov_b32 {A}, 0", f"s_mov_b64 s[{S_RA}:{S_RB}], 0"], g)
    fin = [f"s_lshr_b32 {A}, {Tt}, 31", f"s_mul_i32 {A}, {A}, 3", f"s_add_u32 {A}, {A}, 4"]
    if c.force is not None:
        fin += [f"s_mov_b32 {A}, {4 + c.force}"]
    g = fill(fin, g + 1)
    g = max(g, min(b for b in bgap.values() if b > reset_seen))
    pub_at = tl.chain([Ins(f"v_mov_b32 v{V_PUB}, {A}"),
                       Ins(f"buffer_store_dword v{V_PUB}, v{V_FLW}, {sq(S_DBG)}, s{S_LEAD} offen sc1", 1, "vm", "cnt")], g + 1, g + 30)[-1][0]
    if c.clump:
        rest = kv + att + out
        n_c = -(-len(rest) // c.clump[2])
        for k in range(n_c):
            g = at(c.clump[0] + (c.clump[1] - c.clump[0]) * k / n_c)
            while not (tl.gaps[g].mem and cls(tl.gaps[g].mem[0]) == "d"):
                g += 1
            assert k * c.clump[2] >= len(kv) or g < state["kv0"] - 2
            for t in rest[k * c.clump[2]:(k + 1) * c.clump[2]]:
                tl.put(g, Ins(t), 2)
    elif not c.pro_setup:
        ps = tl.chain(L(att + out), ini_end + 1, beg(10))
    defer_end = ps[-1][0]

    cur = 0
    for s in range(8):
        it = []
        for q in sorted(range(3), key=lambda q: FIN[("Q", 2 * s + 1, q)]):
            src, dst = (s * 3 + q) * 8, (s * 3 + q) * 4
            rdy = FIN[("Q", 2 * s + 1, q)] + 4
            it += [(Ins(f"v_mul_f32 v{src+r}, s{S_C}, v{src+r}"), FIN[("Q", 2 * s + (r >> 2), q)] + 4) for r in range(8)]
            if s:
                it += [(Ins(f"v_cvt_pk_bf16_f32 v{dst+r}, v{src+2*r}, v{src+2*r+1}"), rdy) for r in range(4)]
        if s == 0:
            for q in range(3):
                it += [Ins(f"v_cvt_pk_bf16_f32 v{q*4+r}, v{q*8+2*r}, v{q*8+2*r+1}") for r in range(4)]
        lo = max(cur, it[0][1])
        hi = min(USE[("QB", s)] - 2, max(FIN[("Q", 2 * s + 1, q)] for q in range(3)) + 26)
        cur = tl.chain(it, lo, hi, level=c.conv_level)[-1][0]
    q_done = cur

    tmp = [0]
    prev_branch = 0
    sm_placed = {}
    for j in range(16):
        it, pend = [], None
        for kt in range(2):
            qo = sorted(range(3), key=lambda q: FIN[("S", j, kt, q)])
            items, p = softmax_items(j, kt, tmp, qo)
            xs = [(x, FIN[("S", j, kt, x.meta)] + 5) for x in items]
            if pend:
                xs.insert(1, (pend, 0))
            it += xs
            pend = p
        lo = max(it[0][1], prev_branch + 1, q_done + 1)
        ps = tl.chain(it, lo, ONES[j] - 6)
        sm_placed[j] = (it, ps, lo)
        tl.chain([pend], ps[-1][0] + 1, ONES[j] - 5)
        l = lreg(j)
        br = (G[16 * idx[("K", 1)] + 8] - 1) if j == 0 else end(idx[("V", j - 1)])
        chk = [Ins(f"v_max3_f32 v{V_CHK}, v{l}, v{l+1}, v{l+2}"), Ins(f"v_cmp_nge_f32 vcc, s{S_TH}, v{V_CHK}")]
        if j == 0:
            chk = [Ins(f"v_min3_f32 v{V_CHK+1}, v{l}, v{l+1}, v{l+2}"), Ins(f"v_cmp_nle_f32 s[{S_RET}:{S_RET+1}], s{S_TL}, v{V_CHK+1}")] + chk
            chk += [Ins(f"s_or_b64 vcc, vcc, s[{S_RET}:{S_RET+1}]")]
        tl.chain(chk, ONES[j] + 5, br - 1)
        g = tl.gaps[br]
        sec = g.lead if not g.lead else g.rest
        sec += [Ins(f"s_cbranch_vccnz L_stub{j}"), Ins(f"L_back{j}:", 0)]
        prev_branch = br

    place_units(beg(nV15), c.back, c.slack)
    place_units(NM, 0, 8)
    for j, (it, ps, lo) in sm_placed.items():
        lv = max([0] + [x for j0, x in c.sm_level if j >= j0])
        if lv:
            for (x, _), (g, sec) in zip(it, ps):
                tl.gaps[g].remove(x, sec)
            tl.chain(it, lo, ps[-1][0], level=lv)

    nK14 = idx[("K", 15)]
    assert pub_at + 150 < beg(nK14 - 4)
    tl.chain([Ins(f"buffer_load_dword v{V_PUB}, off, {sq(S_DBG)}, s{S_GRP} sc1", 1, "vm", "dbg")], beg(nK14 - 4), beg(nK14 - 4) + 30)
    ps = tl.chain([Ins("", 1, "waitv", {"dbg"}), Ins(f"v_cmp_gt_u32 vcc, 1, v{V_PUB}")], beg(nK14), beg(nK14) + 9)
    gi = ps[-1][0] + 2
    g = tl.gaps[gi]
    (g.lead if not g.lead else g.rest).extend([Ins("s_cbranch_vccnz L_dbgspin"), Ins("L_dbgback:", 0)])
    D0, M = f"s{S_D0}", f"s{S_D1}"
    ps = tl.chain([Ins(f"v_readfirstlane_b32 {M}, v{V_PUB}")], gi + 1, gi + 6)
    fix = [f"s_mul_i32 {D0}, s99, 3", f"s_xor_b32 {M}, {M}, {D0}",
           f"s_and_b32 {D0}, {M}, 2", f"s_lshl_b32 {D0}, {D0}, 12", f"s_add_u32 s{S_PG+1}, s{S_PG}, {D0}",
           f"s_and_b32 {D0}, {M}, 1", f"s_lshl_b32 {D0}, {D0}, 13", f"s_add_u32 s{S_PG}, s{S_PG}, {D0}", f"s_add_u32 s{S_FLR}, s{S_FLR}, {D0}",
           f"s_add_u32 s{S_SB+1}, s{S_SB}, s{S_PG+1}", f"s_add_u32 s{S_SB}, s{S_SB}, s{S_PG}", f"s_sub_u32 s{S_PG+1}, s{S_PG+1}, s{S_PG}"]
    tl.chain(L(fix), ps[-1][0] + 1, beg(nV15))

    tl.chain([Ins(f"v_rcp_f32 v{V_RINV+q}, v{lreg(15)+q}", 2) for q in range(3)], beg(nV15), beg(nV15) + 9)
    cur, rot = beg(nV15), 0
    for s in range(8):
        it = []
        for tp in range(2):
            for q in sorted(range(3), key=lambda q: FIN[("O", 2 * s + tp, q)]):
                fl, a = oreg(2 * s + tp, q)
                rdy = FIN[("O", 2 * s + tp, q)] + 4
                if fl == "a":
                    T = 216 + 4 * (rot % 2)
                    rot += 1
                    it += [(Ins(f"v_accvgpr_read_b32 v{T+r}, a{a+r}"), rdy) for r in range(4)]
                    a = T
                it += [(Ins(f"v_cvt_pk_bf16_f32 v{(s*3+q)*4+2*tp+h}, v{a+2*h}, v{a+2*h+1}"), rdy) for h in range(2)]
        lo = max(cur, it[0][1])
        dead = USE[("B", s)] - 2
        left = sum(12 if x < 2 else 36 for x in range(s, 8))
        share = lo + int((USE[("B", 7)] - 2 - lo) * (12 if s < 2 else 36) / left) + 1
        cur = tl.chain(it, lo, max(min(dead, share), min(dead, it[-1][1] + 2)))[-1][0]

    def chunk_out(ch):
        pcs = sorted(range(6), key=lambda pc: FIN[("P", ch, 2 * (pc & 1) + 1, pc >> 1)])
        it = [(Ins(f"s_add_u32 s{S_ST0}, s{S_SB+(ch&1)}, {ch << 18}"), 0), (Ins(f"s_add_u32 s{S_ST1}, s{S_SB+(ch&1)}, {(ch << 18) + 4096}"), 0)]
        held = []
        for n_p, pc in enumerate(pcs):
            q, p = pc >> 1, pc & 1
            a, T = oacc(ch, 2 * p, q), 192 + 4 * pc
            rdy = FIN[("P", ch, 2 * p + 1, q)] + 4
            v = [(Ins(f"v_mul_f32 v{a+r}, v{a+r}, v{V_RINV+q}"), FIN[("P", ch, 2 * p + (r >> 2), q)] + 4) for r in range(8)]
            v += [(Ins(f"v_cvt_pk_bf16_f32 v{T+r}, v{a+2*r}, v{a+2*r+1}"), rdy) for r in range(4)]
            if n_p % c.st_group == c.st_group - 1:
                for k, x in enumerate(held):
                    v.insert(len(v) - 2 * (len(held) - k), x)
                held = []
            it += v
            st = (Ins(f"buffer_store_dwordx4 {vr(T,4)}, v{V_ST}, {sq(S_ALL)}, s{S_ST0 if pc < 4 else S_ST1} offen offset:{(pc&3)*1024} sc1", 1, "vm", ("st", ch)), rdy)
            if n_p % c.st_group == c.st_group - 1:
                it.append(st)
            else:
                held.append(st)
        return it
    tail = []
    st_last = {}
    for ch in range(7):
        it = chunk_out(ch)
        lo = max(cur + 1, it[2][1])
        if ch < 6:
            for k in range(6):
                x, e = it[2 + 13 * k]
                it[2 + 13 * k] = (x, max(e, lo + min(c.st_pace, (end(nO0 + 2 * ch + 3) - 36 - lo) // 5) * k))
            cur = tl.chain(it, lo, end(nO0 + 2 * ch + 3) - (26 if not c.st_pace else 22))[-1][0]
            st_last[ch] = cur
        else:
            early = it[:2 + 3 * 13]
            if c.chain:
                tl.chain(early, lo, NM - 1)
                tail = [x for x, _ in it[len(early):]]
            else:
                tail = [x for x, _ in it]

    sig = sorted(set(c.flags) | {6})
    assert len(sig) <= 6
    LASTBIT = 1 << (5 * sig.index(6))
    tab = sum(sig.index(min(x for x in sig if x >= ch)) << (4 * ch) for ch in range(7))
    VF2, VTK, VAT, VLD = 233, 234, 235, 236
    PRG, T0, T1, T2, CNT = f"s{S_SPIN}", f"s{S_ACC}", f"s{S_D1}", f"s{S_T2}", f"s{S_D0}"
    claim = f"buffer_atomic_add v{VAT}, v{VF2}, {sq(S_ALL)}, s{S_FLR} offen sc0 sc1"
    read2 = [f"v_readlane_b32 {PRG}, v{VAT}, 0", f"v_readlane_b32 s{S_TKT}, v{VAT}, 1"]
    lanes2 = [f"v_lshrrev_b32 v{VTK}, 4, v{V_ST}", f"v_lshrrev_b32 v{VF2}, 5, v{V_ST}", f"v_min_u32 v{VF2}, 1, v{VF2}",
              f"v_lshlrev_b32 v{VF2}, 28, v{VF2}", f"v_lshl_add_u32 v{VF2}, v{VTK}, 2, v{VF2}",
              f"v_and_b32 v{VLD}, 0x70, v{V_ST}", f"v_bfe_u32 v{VAT}, v{V_ST}, 7, 2", f"v_lshl_add_u32 v{VLD}, v{VAT}, 8, v{VLD}",
              f"v_lshrrev_b32 v{VAT}, 9, v{V_ST}", f"v_lshl_add_u32 v{VLD}, v{VAT}, 14, v{VLD}"]
    def decode(b):
        dst = f"s{S_DST+b}"
        return [f"s_mul_i32 {T1}, s{S_TKT}, 171", f"s_lshr_b32 {T1}, {T1}, 11", f"s_mul_i32 {T0}, {T1}, 12", f"s_sub_u32 {T0}, s{S_TKT}, {T0}",
                f"s_and_b32 {T2}, {T1}, 1", f"s_mul_i32 {T2}, {T2}, s{S_PG+1}", f"s_add_u32 s{S_SRC}, s{S_PG}, {T2}", f"s_lshl_b32 {T2}, {T1}, 18",
                f"s_add_u32 s{S_SRC}, s{S_SRC}, {T2}", f"s_lshr_b32 {T2}, {T0}, 1", f"s_lshl_b32 {T2}, {T2}, 10", f"s_add_u32 s{S_SRC}, s{S_SRC}, {T2}",
                f"s_and_b32 {dst}, {T0}, 1", f"s_lshl_b32 {T2}, {dst}, 7", f"s_add_u32 s{S_SRC}, s{S_SRC}, {T2}",
                f"s_lshl_b32 {T1}, {T1}, 2", f"s_lshr_b32 {T2}, {tab}, {T1}", f"s_and_b32 {T2}, {T2}, 15", f"s_mul_i32 {T2}, {T2}, 5",
                f"s_lshl_b32 s{S_NEED}, 16, {T2}"], [
                f"s_mul_i32 {dst}, {dst}, {8*1792}", f"s_add_u32 {dst}, {dst}, s{S_OUTB}",
                f"s_lshr_b32 {T2}, s{S_ROT}, {T1}", f"s_and_b32 {T2}, {T2}, 15", f"s_lshl_b32 {T2}, {T2}, 7", f"s_add_u32 {dst}, {dst}, {T2}",
                f"s_and_b32 {T2}, {T0}, 2", f"s_lshl_b32 {T2}, {T2}, 5", f"s_add_u32 {dst}, {dst}, {T2}",
                f"s_lshr_b32 {T2}, {T0}, 2", f"s_mul_i32 {T2}, {T2}, 28672", f"s_add_u32 {dst}, {dst}, {T2}"]
    def loads(b):
        o = []
        for k in range(8):
            o.append(f"buffer_load_dwordx4 {ar(32*b+4*k,4)}, v{VLD}, {sq(S_ALL)}, s{S_SRC} offen sc1")
            if k < 7:
                o.append(f"s_add_u32 s{S_SRC}, s{S_SRC}, {32768 + (2048 if k % 2 == 0 else -2048)}")
        return o
    arm = [f"v_mul_u32_u24 v{VAT}, s{S_PEND}, v{VTK}"]
    keep = [f"v_readlane_b32 {PRG}, v{VAT}, 0", f"v_readlane_b32 s{S_NEW}, v{VAT}, 1"]
    merge = [f"s_sub_u32 s{S_NEW}, s{S_NEW}, s{S_TKT}", f"s_mul_i32 s{S_NEW}, s{S_NEW}, s{S_PEND}", f"s_add_u32 s{S_TKT}, s{S_TKT}, s{S_NEW}"]
    def flag(ch):
        return [Ins(f"v_mov_b32 v{V_FV}, {1 << (5 * sig.index(ch))}"),
                Ins(f"buffer_atomic_add v{V_FV}, v{V_FLW}, {sq(S_ALL)}, s{S_FLR} offen sc1", 1, "vm", ("fl", ch))]
    tail_flags = []
    for ch in c.flags:
        g = st_last[ch] + c.flag_delay
        if g + 10 < NM:
            tl.chain([Ins("", 1, "waitv", {("st", ch)})] + flag(ch), g, g + 20)
        else:
            tail_flags.append(ch)
    tail_loads = []
    tO = lambda t: at(nO0 + 2 * t)
    start = L(lanes2 + [f"s_mov_b32 s{S_PEND}, 1", f"s_mov_b32 s{S_TKT}, 0", f"s_mov_b32 s{S_PEND+1}, 0"])
    cur = tl.chain(start, tO(2.0), tO(3.0))[-1][0]
    dec_end = cur
    for e, te in enumerate(c.early):
        assert not tail_loads
        g = max(tO(te), dec_end + 1)
        tl.chain(L(arm) + [Ins(claim, 1, "vm", ("claim", e))], g - 0, g + 16)
        g = max(tO(te + c.early_wait), cur + 1)
        ps = tl.chain([Ins("", 1, "waitv", {("claim", e)})] + L(keep), g, g + 12)
        d1, d2 = decode(2 + e)
        rdy = [f"s_andn2_b32 {T2}, s{S_NEED}, {PRG}", f"s_min_u32 {T2}, {T2}, 1", f"s_sub_u32 s{S_PEND}, 1, {T2}",
               f"s_lshl_b32 s{S_NEW}, {T2}, 28", f"s_add_u32 s{S_SRC}, s{S_SRC}, s{S_NEW}"]
        d3 = [f"s_add_u32 s{S_DST+2+e}, s{S_DST+2+e}, s{S_NEW}"]
        if c.stamps:
            d3 += [f"s_lshl_b32 s{S_NEW}, s{S_PEND}, 8", f"s_add_u32 s{S_PEND+1}, s{S_PEND+1}, s{S_NEW}"]
        ps = tl.chain(L(merge + d1 + rdy + d2 + d3), ps[-1][0] + 1, ps[-1][0] + 70)
        dec_end = ps[-1][0]
        cur = ps[len(merge + d1 + rdy) - 1][0] - c.load_gap + 1
        ld = [Ins(t, 1, "vm", "R") if t.startswith("buffer") else Ins(t) for t in loads(2 + e)]
        while ld:
            lo = cur + c.load_gap
            if lo >= NM - 3:
                tail_loads = ld
                break
            rng = range(lo, min(lo + 6, NM - 2))
            cur = min(rng, key=lambda k: (tl.gaps[k].added(ld[0], 1), k))
            tl.gaps[cur].mem.append(ld[0])
            if len(ld) > 1:
                tl.chain([ld[1]], cur + 1, min(cur + c.load_gap - 1, NM - 1))
            ld = ld[2:]

    if c.stamps:
        for k, n in enumerate(c.stamps):
            tl.gaps[beg(n)].lead[0:0] = [Ins(t) for t in stamp(k + 1 + 6 * c.pstamps)]
    lin = tl.linear()
    ns = len(c.stamps) + 1 + 6 * c.pstamps if c.stamps else 0
    ST = lambda k: [Ins(t) for t in stamp(ns + k)] if c.stamps else []

    I = lambda *ts: [Ins(t) for t in ts]
    lin += I("s_nop 7") + tail + I("s_waitcnt lgkmcnt(0)") + ST(0) + tail_loads
    for ch in tail_flags:
        lin += [Ins("", 1, "waitv", {("st", ch)})] + flag(ch)
    lin += I(*arm)
    lin += I(f"s_mov_b32 {T0}, {LASTBIT}", f"v_writelane_b32 v{VAT}, {T0}, 0")
    lin += [Ins("", 1, "waitv", {("st", 6)}), Ins(claim, 1, "vm", ("fl", 6))] + ST(1)
    resolve_waits(lin)
    verify(lin, steps, slot_of, xslots, c.nx)
    texts = [x.text for x in lin]
    T = lambda xs: [x.text for x in xs]
    def reduce(b, wait):
        a, o = 8 * b, []
        for k in range(8):
            if wait:
                o += [f"s_waitcnt vmcnt({7-k})"]
            o += [f"{MF} {vr(a,4)}, {ar(A_SEL,4)}, {ar(32*b+4*k,4)}, {vr(a,4) if k else 0}"]
        o += ["s_nop 7"] + [f"v_cvt_pk_bf16_f32 v{a+4+k}, v{a+2*k}, v{a+2*k+1}" for k in range(2)]
        return o + [f"buffer_store_dwordx2 {vr(a+4,2)}, v{V_OUT}, {sq(S_OUT)}, s{S_DST+b} offen {c.pol_out}"]
    texts += [f"s_mov_b32 {CNT}, 0", "s_waitcnt vmcnt(1)"]
    for e in range(len(c.early)):
        texts += reduce(2 + e, False)
    texts += [f"s_waitcnt vmcnt({len(c.early)})"] + keep + ["s_nop 0", f"s_add_u32 {PRG}, {PRG}, {LASTBIT}"] + merge + [f"s_mov_b32 s{S_PEND}, 0"]
    for b in range(2):
        y = 1 - b
        texts += [f"L_take{b}:", f"s_cmp_ge_u32 s{S_TKT}, 84", f"s_cbranch_scc1 L_last{y}"] + decode(b)[0]
        texts += [f"s_andn2_b32 {T2}, s{S_NEED}, {PRG}", f"s_cbranch_scc0 L_go{b}",
                  f"s_cmp_eq_u32 s{S_PEND}, 0", f"s_cbranch_scc1 L_poll{b}"] + reduce(y, True) + [f"s_mov_b32 s{S_PEND}, 0"]
        texts += [f"L_poll{b}:"] + ([f"s_sleep {c.sleep}"] if c.sleep else []) + [
                  f"v_mov_b32 v{V_POLL}, 0", f"buffer_atomic_add v{V_POLL}, v{V_FLW}, {sq(S_ALL)}, s{S_FLR} offen sc0 sc1",
                  "s_waitcnt vmcnt(0)", f"v_readfirstlane_b32 {PRG}, v{V_POLL}", f"s_add_u32 {CNT}, {CNT}, 1",
                  f"s_cmp_ge_u32 {CNT}, {c.spin_max}", f"s_cselect_b32 {PRG}, -1, {PRG}",
                  f"s_andn2_b32 {T2}, s{S_NEED}, {PRG}", f"s_cbranch_scc1 L_poll{b}"]
        ld = loads(b)
        texts += [f"L_go{b}:", f"v_mov_b32 v{VAT}, v{VTK}"] + ld[:2 * c.claim_at] + [claim] + ld[2 * c.claim_at:] + decode(b)[1]
        if c.stamps:
            texts += [f"s_add_u32 s{S_PEND+1}, s{S_PEND+1}, 1"]
        texts += [f"s_cmp_eq_u32 s{S_PEND}, 0", f"s_mov_b32 s{S_PEND}, 1", f"s_cbranch_scc1 L_got{b}", "s_waitcnt vmcnt(9)"] + reduce(y, False)
        texts += [f"s_waitcnt vmcnt({9 - c.claim_at})", f"s_branch L_rd{b}", f"L_got{b}:", f"s_waitcnt vmcnt({8 - c.claim_at})", f"L_rd{b}:"] + read2 + ["s_nop 1"]
        if b == 1:
            texts += ["s_branch L_take0"]
    for y in range(2):
        texts += [f"L_last{y}:", f"s_cmp_eq_u32 s{S_PEND}, 0", "s_cbranch_scc1 L_done"] + reduce(y, True)
        if y == 0:
            texts += ["s_branch L_done"]
    texts += ["L_done:"]
    if c.stamps:
        texts += [f"v_writelane_b32 v{V_STAMP}, s{S_PEND+1}, 62", f"v_writelane_b32 v{V_STAMP}, s{S_TOT}, 63"] + T(ST(2))
    if c.stamps:
        texts += stamp(ns + 3) + ["s_waitcnt vmcnt(0)"] + stamp(ns + 4)
        if c.diag is not None:
            lane = c.diag if c.diag >= 0 else ns + 5 + c.diag
            texts += ["s_nop 1", f"v_readlane_b32 s40, v{V_STAMP}, {lane}", f"v_readlane_b32 s41, v{V_STAMP}, 0", "s_nop 3",
                      "s_sub_u32 s40, s40, s41", "s_lshl_b32 s40, s40, 4", "s_add_u32 s40, s40, 10000",
                      "L_diag:", "s_sleep 1", "s_memrealtime s[42:43]", "s_waitcnt lgkmcnt(0)", "s_sub_u32 s42, s42, s41",
                      "s_cmp_lt_u32 s42, s40", "s_cbranch_scc1 L_diag"]
        texts += [
                  f"v_lshrrev_b32 v8, 2, v{V_ST}", "s_lshl_b32 s3, s2, 8", f"s_add_u32 s3, s3, {STAMP_AT}",
                  f"s_cmp_lg_u32 s{S_W}, 0", "s_cbranch_scc1 L_end", f"buffer_store_dword v{V_STAMP}, v8, {sq(S_ALL)}, s3 offen"]
    texts, probs = check_hazards(texts, fix=True)
    stats = dict(n=len(texts), nops=len(probs), cost=[tl.cost(beg(n), end(n)) for n in range(NS)], margin=[margin.get(m) for m in range(2, NS)],
                 defer=round(defer_end / 48, 2), stl=[round((st_last[k] - beg(nO0)) / 96, 2) for k in range(6)])
    texts += ["L_end:", "s_endpgm"]
    texts += ["L_dbgspin:", f"s_mov_b32 s{S_SPIN}, 0", "L_dspin:", f"buffer_load_dword v{V_PUB}, off, {sq(S_DBG)}, s{S_GRP} sc1",
              "s_waitcnt vmcnt(0)", f"v_cmp_gt_u32 vcc, 1, v{V_PUB}", f"s_add_u32 s{S_SPIN}, s{S_SPIN}, 1",
              f"s_cmp_ge_u32 s{S_SPIN}, {c.spin_max}", "s_cbranch_scc1 L_dbgback", "s_cbranch_vccnz L_dspin", "s_branch L_dbgback"]
    texts += ["L_stub0:"] + rare_path(0) + ["s_branch L_back0"]
    for j in range(1, 16):
        texts += [f"L_stub{j}:", f"s_call_b64 s[{S_RET}:{S_RET+1}], L_rare{j&1}", f"s_branch L_back{j}"]
    for par in range(2):
        texts += [f"L_rare{par}:"] + rare_path(par + 2) + [f"s_setpc_b64 s[{S_RET}:{S_RET+1}]"]
    return texts, stats, probs

def verify(lin, steps, slot_of, xslots, nx):
    pending, lq, vq = {}, [], []
    issued, landed, visible = {}, set(), set()
    last_epoch, epoch, in_slot, cnt = {}, 0, {}, {}
    def refill(m):
        s = slot_of[m]
        old = in_slot.get(s)
        if old is None:
            for kc in xslots.get(s, ()):
                assert cnt.get(("X", kc), 0) == 6 and last_epoch[("X", kc)] < epoch, ("slot under x", m)
        elif old != m:
            assert cnt.get(old, 0) == (16 if steps[old][0] == "K" else 32), ("slot reused early", m, old)
            assert last_epoch[old] < epoch, ("slot reuse without barrier", m, old)
        in_slot[s] = m
    for ins in lin:
        t = ins.text
        if ins.tag == "ds" and t.startswith("ds_write"):
            m = ins.meta[1]
            assert ("G", m) in landed and issued[("G", m)] == 4
            refill(m)
            lq.append(([], ins.meta))
        elif ins.tag == "vm":
            vq.append(ins.meta)
            issued[ins.meta] = issued.get(ins.meta, 0) + 1
            landed.discard(ins.meta)
            if isinstance(ins.meta, tuple) and ins.meta[0] == "X" and ins.meta[1] >= nx:
                assert cnt.get(("X", ins.meta[1] - nx), 0) == 6, ("x region reused early", ins.meta)
            if isinstance(ins.meta, tuple) and ins.meta[0] == "fl":
                assert ("st", ins.meta[1]) in landed and issued[("st", ins.meta[1])] == 6, ins.meta
            if isinstance(ins.meta, tuple) and ins.meta[0] == "S":
                refill(ins.meta[1])
        elif t.startswith("s_waitcnt"):
            mv = re.search(r"vmcnt\((\d+)\)", t)
            if mv:
                k = max(0, len(vq) - int(mv.group(1)))
                done, vq = vq[:k], vq[k:]
                landed |= {d for d in done if d not in vq}
            ml = re.search(r"lgkmcnt\((\d+)\)", t)
            if ml:
                k = max(0, len(lq) - int(ml.group(1)))
                done, lq = lq[:k], lq[k:]
                for rs, tok in done:
                    for r in rs:
                        pending.pop(r, None)
                    key = tok // 16 if isinstance(tok, int) else tok
                    cnt[key] = cnt.get(key, 0) + 1
                    last_epoch[key] = epoch
                    if isinstance(tok, tuple) and tok[0] == "SW" and cnt[key] == 4:
                        landed.add(("S", tok[1]))
                        issued[("S", tok[1])] = 4
        elif t == "s_barrier":
            visible |= {d for d in landed if not (isinstance(d, tuple) and d[0] == "S") or issued[d] == 4}
            epoch += 1
        elif ins.tag == "ds":
            wr, tok = rw(t)[1], ins.meta
            if isinstance(tok, int):
                assert ("S", tok // 16) in visible, ("read before visible", tok)
            else:
                assert tok in landed and issued[tok] == 6, ("x read before landed", tok)
            lq.append((wr, tok))
            for r in wr:
                pending[r] = tok
        elif t.startswith("v_mfma"):
            for r in rw(t)[2]:
                assert r not in pending, ("mfma reads in-flight fragment", t)
        assert len(vq) <= 63, "vmcnt overflow"

HEADER = """;
; (query row = lane & 15), so each MFMA result feeds the next product as its B operand without shuffles:
; wq, K, V and wo stream through a ring of LDS slots (LDS-DMA, padded layouts, transposing reads).
; denominator is range-checked; when it leaves the safe range the tile is redone against the true row max
; and O and l are rescaled (L_stub*, L_rare*).
; counters that head 0 clears at the start of the launch (d_debug carries that announcement), and summed in
; fp32 by whichever wave claims the next piece. Head 0 also picks, by a race of scalar loads, the half of the
; scratch page that answers faster; either choice gives the same result.
; L_pad*: never-taken branches in the first line of each 4 KiB code page, visited once with EXEC = 0 while the
; first loads are in flight so that those lines are in the instruction cache.
"""

def add_pads(main):
    import subprocess, tempfile, os
    i0, i1 = main.index("L_main:"), main.index("L_done:")
    with tempfile.TemporaryDirectory() as d:
        labels = sorted({x for t in main for x in re.findall(r"\bL_\w+", t)} - {t[:-1] for t in main[i0:i1] if t.endswith(":")})
        open(d + "/a.s", "w").write('.amdgcn_target "amdgcn-amd-amdhsa--gfx950"\n.text\n' + "\n".join(main[i0:i1]) + "\n" + "".join(x + ":\n" for x in labels))
        subprocess.run(["clang", "-x", "assembler", "-target", "amdgcn-amd-amdhsa", "-mcpu=gfx950", "-c", d + "/a.s", "-o", d + "/a.o"], check=True)
        dis = subprocess.run(["llvm-objdump", "-d", d + "/a.o"], capture_output=True, text=True).stdout
    addr = [int(x, 16) for x in re.findall(r"// ([0-9A-F]{12}):", dis)]
    body = [k for k in range(i0, i1) if not main[k].endswith(":")]
    assert len(addr) == len(body)
    where, shift, page = [], 0, 1
    for n, k in enumerate(body):
        a = addr[n] + shift
        if a < page * 4096:
            continue
        free = main[k - 1].startswith("v_mfma") and not main[k].startswith(("s_", "buffer_"))
        nxt = addr[n + 1] + shift if n + 1 < len(body) else a + 64
        if free or nxt > page * 4096 + 56:
            where.append(k)
            shift += 4
            page += 1
    out, n = [], 0
    for k, t in enumerate(main):
        if n < len(where) and k == where[n]:
            out += [f"L_pad{n}:", "s_cbranch_execz " + (f"L_pad{n+4}" if n + 4 < len(where) else "L_main")]
            n += 1
        out.append(t)
    return out, len(where)

def emit(c, path):
    main, stats, probs = build_main(c)
    if c.thin:
        out, m = [], 0
        for t in main:
            if t.startswith("v_mfma"):
                m += 1
                for lo, hi, every in c.thin:
                    if lo <= m < hi and m % every == 0:
                        out.append("s_nop 7")
            out.append(t)
        main = out
    if c.pads:
        main, stats["pads"] = add_pads(main)
    K1 = NAME + "_kernel"
    ref = open("cdna_kernels/" + NAME + ".s.ref").read().split("\n")
    s = "\n".join(ref[:14]) + "\n" + HEADER + "; @launch grid=(256,1,1) block=(256,1,1) lds=163840\n"
    s += '.amdgcn_target "amdgcn-amd-amdhsa--gfx950"\n.text\n'
    s += f".globl {K1}\n.p2align 8\n.type {K1},@function\n{K1}:\n"
    s += "\n".join(x if x.endswith(":") else "    " + " ".join(x.split()) for x in main) + "\n"
    if c.code_pf:
        s += ".fill 2048, 4, 0xbf810000\n"
    s += f""".section .rodata,"a"
.p2align 6
.amdhsa_kernel {K1}
  .amdhsa_next_free_vgpr 512
  .amdhsa_next_free_sgpr 102
  .amdhsa_accum_offset 256
  .amdhsa_group_segment_fixed_size 0
  .amdhsa_kernarg_size 104
  .amdhsa_user_sgpr_count 2
  .amdhsa_user_sgpr_kernarg_segment_ptr 1
  .amdhsa_system_sgpr_workgroup_id_x 1
  .amdhsa_float_denorm_mode_32 3
.end_amdhsa_kernel
"""
    open(path, "w").write(s)
    if c.code_pf:
        import subprocess, tempfile
        with tempfile.TemporaryDirectory() as d:
            open(d + "/a.s", "w").write(s.replace(".p2align 12", ""))
            subprocess.run(["clang", "-x", "assembler", "-target", "amdgcn-amd-amdhsa", "-mcpu=gfx950", "-c", d + "/a.s", "-o", d + "/a.o"], check=True)
            hdr = subprocess.run(["llvm-objdump", "-h", d + "/a.o"], capture_output=True, text=True).stdout
        size = int(re.search(r"\.text\s+([0-9a-f]+)", hdr).group(1), 16)
        assert size >= 32 * 2304 + 512, "prefetched range runs past the code"
    return stats, probs

if __name__ == "__main__":
    c = Cfg()
    if "R1" in sys.argv:
        sys.argv.remove("R1")
        c.rot, c.nx, c.pro_order, c.nW = 1, 3, "X0 S0 S1 X1 X2 S2", 2
        c.x_issue = {3: 0.6, 4: 2.3, 5: 3.62, 6: 4.62}
        c.x_read = {1: 1.2, 2: 1.56, 3: 3.25, 4: 4.25, 5: 5.25, 6: 6.25}
        c.kv_early = [5.7, 6.9, 8.1, 9.3, 10.7, 11.8, 12.9]
    if "R2" in sys.argv:
        sys.argv.remove("R2")
        c.rot, c.nx, c.pro_order, c.nW = 1, 3, "X0 S0 S1 X1 X2 S2", 2
        c.x_issue = {3: 0.6, 4: 2.0, 5: 2.5, 6: 3.1}
        c.x_read = {1: 1.15, 2: 1.5, 3: 2.15, 4: 3.3, 5: 3.65, 6: 4.3}
        c.kv_early = [4.8, 6.2, 7.6, 9.0, 10.6, 11.8, 13.0]
        c.kv_step, c.st_pace, c.flag_delay, c.wo_rot = 14, 16, 60, 2
        c.early, c.load_gap, c.flags = (3.7, 5.1), 12, (0, 1, 2, 4, 5)
    if "R3" in sys.argv:
        sys.argv.remove("R3")
        c.rot, c.nx, c.pro_order, c.nW = 1, 3, "X0 S0 S1 X1 X2 S2", 2
        c.x_issue = {3: 0.6, 4: 2.3, 5: 3.62, 6: 4.62}
        c.x_read = {1: 1.2, 2: 1.56, 3: 3.25, 4: 4.25, 5: 5.25, 6: 6.25}
        c.kv_early = [5.7, 6.9, 8.1, 9.3, 10.7, 11.8, 12.9]
        c.kv_step, c.st_pace, c.flag_delay, c.wo_rot = 12, 16, 60, 2
        c.early, c.load_gap, c.flags = (3.7, 5.1), 12, (0, 1, 2, 4, 5)
    if "R6" in sys.argv:
        sys.argv[sys.argv.index("R6")] = "R5"
        c.sm_level = [(12, 200)]
    if "R5" in sys.argv:
        sys.argv[sys.argv.index("R5")] = "R4"
        c.pair_rd, c.pack_dma, c.conv_level = [(1, 13.6)], [(1, 11)], 16
    if "R4" in sys.argv:
        sys.argv.remove("R4")
        c.rot, c.nx, c.pro_order, c.nW, c.pro_setup = 1, 3, "X0 S0 S1 X1 X2 S2", 2, True
        c.x_issue = {3: 0.6, 4: 2.3, 5: 3.62, 6: 4.62}
        c.x_read = {1: 1.2, 2: 1.56, 3: 3.25, 4: 4.25, 5: 5.25, 6: 6.25}
        c.staged = [(5.0, 39, 0)]
        c.kv_early = [6.1, 7.2, 8.3, 9.4, 10.7, 11.8, 12.9]
        c.kv_knee = (35, 30.4)
        c.wo_at = [43.0, 43.55, 44.1, 44.65, 45.3, 45.8, 46.3, 47.7, 48.2, 49.7, 50.2, 51.7, 52.2, 53.7]
        c.kv_step, c.st_pace, c.flag_delay, c.wo_rot = 12, 16, 60, 2
        c.early, c.load_gap, c.flags = (3.7, 5.1), 12, (0, 1, 2, 4, 5)
    for kv in sys.argv[2:]:
        k, v = kv.split("=", 1)
        setattr(c, k, eval(v))
    stats, probs = emit(c, sys.argv[1])
    print(stats, "total cost", sum(stats["cost"]))
    for p in probs[:30]:
        print("  nop", p)
```

```python
import sys
from core2 import *

NAME = "concat_heads__mha_block_cached__gqa_block_cached__near_ridge"
BLK, SLOT = 8448, 16896
WPOS = [0, 1032, 2112, 3144]
MF = "v_mfma_f32_16x16x32_bf16"
OOB = 0x10000000
AUX = 0x1C0000
STAMP_AT = 0xF800000

class Cfg:
    D = 6
    NF = 12
    pol_x = ""
    pol_wq = ""
    pol_kv = "nt"
    pol_wo = ""
    pol_out = ""
    rot = 0
    nW = 10
    nx = 2
    w_la = 3
    pro_order = "X0 S0 S1 X1 S2"
    pro_first = 10
    pro_hop = 12
    pro_n = 22
    x_issue = {2: 0.5, 3: 2.3, 4: 4.3, 5: 6.0, 6: 7.2}
    x_read = {1: 1.25, 2: 3.25, 3: 5.0, 4: 6.25, 5: 8.25, 6: 9.25}
    kv_early = [3.5, 9.7, 10.4, 11.1, 11.8, 12.5, 13.2]
    kv_step = 12
    kv_slow = {}
    x_step = 3
    w_step = 3
    kv_last = 42.0
    kv_knee = None
    staged = []
    wo_at = None
    wo_la = 6
    back = 20
    slack = 40
    bar_q = 1
    bar_a = 2
    bar_o = 2
    bar_late = 99
    pair_rd = ()
    pack_dma = ()
    conv_level = 0
    sm_level = ()
    clump = None
    pro_setup = False
    chain = True
    ones_at = 12
    TH = 0x4B800000
    TL = 0x33800000
    code_pf = True
    pads = True
    wo_rate = 1.0
    wo_rate2 = 0.5
    wo_gap = 3
    wo_rot = 1
    races = 6
    race_at = 2.6
    race_skip = 10
    race_len = 40
    race_step = 2
    race_clamp = 4
    force = None
    flags = (1, 2, 3, 4, 5)
    flag_delay = 80
    sleep = 0
    early = ()
    early_wait = 0.6
    load_gap = 12
    claim_at = 0
    st_group = 1
    st_pace = 0
    touch_wo = ()
    spin_max = 40000
    stamps = False
    pstamps = False
    thin = ()
    diag = None

S_X, S_WQ, S_K, S_V, S_WO, S_ALL, S_OUT, S_DBG = 8, 12, 16, 20, 24, 28, 76, 80
S_GRP, S_LEAD = 6, 7
S_W, S_LDSW, S_TL, S_LDSX = 32, 33, 34, 35
S_WQOFF, S_XOFF, S_WOOFF = 36, 43, 56
S_T0, S_T1, S_C, S_TH, S_RET = 50, 51, 52, 53, 54
S_SB, S_ST0, S_ST1, S_PRB, S_ACC, S_TOT = 63, 65, 66, 67, 68, 69
S_T2, S_SPIN, S_STAMP = 70, 71, 72
S_RA, S_RB, S_D0, S_D1 = 84, 85, 86, 87
S_PG, S_OUTB, S_ROT, S_SRC, S_NEED, S_NEW, S_TKT, S_FLR, S_PEND = 88, 90, 91, 92, 93, 94, 96, 97, 100
S_DST = 43
V_P, V_E, V_L, V_CHK, V_OV = 96, 120, 128, 136, 144
V_S, V_NEGM, V_SALT = 192, 216, 228
V_DWQ, V_DWU, V_DX, V_RW, V_RU, V_RX, V_SWQ, V_INI, V_DUM = 192, 193, 194, 195, 197, 199, 201, 201, 202
VL, VH5, VC31, VM, VG, V7, VA, VB, VC, VQ, VC4, VROW = range(204, 216)
V_DKV, V_RK, V_RT, V_DWO, V_RO, V_ST, V_FLW, V_OUT, V_STAMP = 240, 241, 244, 247, 248, 251, 252, 254, 255
V_RINV, V_FV, V_POLL, V_SW, V_PUB = 228, 231, 232, 143, 253
A_ONE, A_SEL, A_FR = 192, 204, 208

def steps_list(c):
    st = [("W", k) for k in range(c.nW)] + [("U", k) for k in range(14 - c.nW)] + [("K", 0)]
    for j in range(1, 16):
        st += [("K", j), ("V", j - 1)]
    return st + [("V", 15)] + [("O", k) for k in range(14)]

def sq(d):
    return f"s[{d}:{d+3}]"
def srd_tail(d, nbytes):
    return [f"s_mov_b32 s{d+2}, {nbytes}", f"s_mov_b32 s{d+3}, 0x00020000"]

def stamp(k):
    return [f"s_memrealtime s[{S_STAMP}:{S_STAMP+1}]", f"s_memtime s[{S_STAMP+2}:{S_STAMP+3}]", "s_waitcnt lgkmcnt(0)",
            f"v_writelane_b32 v{V_STAMP}, s{S_STAMP}, {k}", f"v_writelane_b32 v{V_STAMP}, s{S_STAMP+2}, {32+k}"]

def rot7(dst, src):
    a, b = S_RET, S_RET + 1
    return [f"s_mov_b32 s{a}, 0x06543210", f"s_mov_b32 s{b}, 0x10654321", f"s_lshl_b32 s{dst}, s{src}, 2",
            f"s_lshr_b64 s[{a}:{b}], s[{a}:{b}], s{dst}", f"s_mov_b32 s{dst}, s{a}"]

def prologue1(c):
    T0, T1 = f"s{S_T0}", f"s{S_T1}"
    o = ["s_cmp_ge_u32 s2, 256", "s_cbranch_scc1 L_end"]
    if c.stamps:
        o += [f"v_mov_b32 v{V_STAMP}, 0"] + stamp(0)
    o += ["s_bfe_u32 s3, s2, 0x10002", f"s_mul_i32 {T0}, s3, 40"]
    o += [f"s_load_dwordx8 s[88:95], s[0:1], {T0}", f"s_mov_b32 s7, {T0}"]
    if c.code_pf:
        o += ["s_getpc_b64 s[70:71]", "L_pc:", f"s_lshr_b32 {T1}, s2, 3", f"s_mul_i32 {T1}, {T1}, 2304", f"v_min_u32 v{VA}, 17, v0",
              f"v_lshlrev_b32 v{VA}, 7, v{VA}", f"s_add_u32 s70, s70, {T1}", "s_addc_u32 s71, s71, 0",
              Ins(f"global_load_dword v239, v{VA}, s[70:71]", 1, "vm", "dum")]
    o += [f"v_lshrrev_b32 v{VA}, 6, v0", f"v_and_b32 v{VL}, 63, v0", f"v_readfirstlane_b32 s{S_W}, v{VA}",
          "s_and_b32 s5, s2, 3", "s_lshl_b32 s5, s5, 2", "s_bfe_u32 s6, s2, 0x20003", "s_add_u32 s5, s5, s6", "s_lshr_b32 s4, s2, 5",
          f"v_lshrrev_b32 v{VH5}, 5, v{VL}", f"v_and_b32 v{VC31}, 31, v{VL}", f"v_lshlrev_b32 v{VC31}, 4, v{VC31}",
          f"v_lshrrev_b32 v{VM}, 3, v{VL}", f"v_lshrrev_b32 v{VG}, 4, v{VL}", f"v_and_b32 v{V7}, 7, v{VL}",
          f"s_lshr_b32 s98, s{S_W}, 1", f"s_and_b32 s99, s{S_W}, 1",
          f"v_lshlrev_b32 v{VA}, 1, v{VG}", f"v_xor_b32 v{VA}, v{VA}, v{V7}", f"v_lshlrev_b32 v{VA}, 4, v{VA}",
          f"s_lshl_b32 {T0}, s4, 2", f"s_add_u32 {T0}, {T0}, s{S_W}", f"s_mul_i32 {T0}, {T0}, 43008",
          f"v_mul_u32_u24 v{VB}, 896, v{VM}", f"v_add3_u32 v{V_DX}, v{VB}, v{VA}, {T0}",
          f"s_lshl_b32 {T0}, s99, 16", f"s_lshl_b32 {T1}, s5, 9", f"s_add_u32 s{S_D0}, {T0}, {T1}",
          f"s_lshl_b32 {T1}, s98, 15", f"s_add_u32 {T0}, s{S_D0}, {T1}",
          f"v_lshlrev_b32 v{VB}, 17, v{VH5}", f"v_add3_u32 v{V_DWQ}, v{VB}, v{VC31}, {T0}",
          f"s_mul_i32 s{S_LDSW}, s{S_W}, 4224", f"s_mul_i32 s{S_LDSX}, s{S_W}, 6144"]
    o += srd_tail(S_X, 8 * 172032) + srd_tail(S_WQ, 448 * 8192)
    if c.rot:
        o += [f"s_mul_i32 {T0}, s6, {(0, 2, 1, 0)[c.rot]}", f"s_add_u32 {T0}, {T0}, s4", f"s_mul_i32 {T1}, {T0}, 37", f"s_lshr_b32 {T1}, {T1}, 8",
              f"s_mul_i32 {T1}, {T1}, 7", f"s_sub_u32 {T0}, {T0}, {T1}"] + rot7(S_D1, S_T0)
        for k in range(7):
            o += [f"s_bfe_u32 {T0}, s{S_D1}, {0x40000 + 4*k}", f"s_lshl_b32 s{S_XOFF+k}, {T0}, 7"]
            if k < c.nW // 2:
                o += [f"s_lshl_b32 s{S_WQOFF+k}, {T0}, 19"]
        o += [f"s_lshl_b32 {T0}, s98, 2", f"s_lshr_b32 s{S_D1}, s{S_D1}, {T0}"]
        for k in range(c.nW // 2, 7, 2):
            o += [f"s_bfe_u32 {T0}, s{S_D1}, {0x40000 + 4*k}", f"s_lshl_b32 s{S_WQOFF+k}, {T0}, 19"]
    return o + ["s_waitcnt lgkmcnt(0)", f"s_mov_b64 s[{S_X}:{S_X+1}], s[88:89]", f"s_mov_b64 s[{S_WQ}:{S_WQ+1}], s[94:95]"]

def dwu(c):
    o = [f"v_lshlrev_b32 v{VB}, 4, v{V7}", f"v_lshl_add_u32 v{VB}, v{VH5}, 18, v{VB}", f"v_and_b32 v{VA}, 1, v{VM}",
         f"v_lshl_add_u32 v{VB}, v{VA}, 17, v{VB}", f"v_and_b32 v{VA}, 1, v{VG}", f"v_lshl_add_u32 v{VB}, v{VA}, 15, v{VB}"]
    if not c.rot:
        o += [f"s_lshl_b32 s{S_D1}, s98, 19", f"s_add_u32 s{S_D0}, s{S_D0}, s{S_D1}"]
    return o + [f"v_add_u32 v{V_DWU}, s{S_D0}, v{VB}"]

def prologue2(c):
    o = [f"s_load_dwordx2 s[{S_WO}:{S_WO+1}], s[0:1], s7 offset:32", f"s_load_dwordx2 s[{S_OUT}:{S_OUT+1}], s[0:1], 80",
         f"s_load_dwordx2 s[{S_DBG}:{S_DBG+1}], s[0:1], 88",
         f"s_load_dwordx2 s[{S_ALL}:{S_ALL+1}], s[0:1], 96",
         f"s_mov_b64 s[{S_K}:{S_K+1}], s[90:91]", f"s_mov_b64 s[{S_V}:{S_V+1}], s[92:93]",
         f"v_lshrrev_b32 v{VROW}, 2, v{VL}", f"v_and_b32 v{VROW}, 7, v{VROW}", f"v_and_b32 v{VC4}, 3, v{VL}",
         f"v_lshlrev_b32 v{VA}, 10, v{VROW}", f"v_and_b32 v{VB}, 1, v{VROW}", f"v_lshl_add_u32 v{VA}, v{VB}, 3, v{VA}",
         f"v_lshrrev_b32 v{VB}, 1, v{VROW}", f"v_lshl_add_u32 v{VA}, v{VB}, 6, v{VA}", f"v_lshl_add_u32 v{VA}, v{VC4}, 4, v{VA}",
         f"v_lshl_add_u32 v{V_RW}, v{VH5}, 9, v{VA}", f"v_lshl_add_u32 v{V_RU}, v{VH5}, 7, v{VA}",
         f"v_add_u32 v{V_RW+1}, {3*SLOT}, v{V_RW}", f"v_add_u32 v{V_RU+1}, {3*SLOT}, v{V_RU}",
         f"v_and_b32 v{VQ}, 15, v{VL}", f"v_lshlrev_b32 v{VA}, 7, v{VQ}", f"v_and_b32 v{VB}, 6, v{VL}", f"v_xor_b32 v{VB}, v{VB}, v{VG}",
         f"v_lshl_add_u32 v{VA}, v{VB}, 4, v{VA}", f"s_add_u32 s{S_T0}, s{S_LDSX}, {10*BLK}",
         f"v_add_u32 v{V_RX}, s{S_T0}, v{VA}", f"v_xor_b32 v{VA}, 64, v{VA}", f"v_add_u32 v{V_RX+1}, s{S_T0}, v{VA}"]
    o += srd_tail(S_K, 1 << 25) + srd_tail(S_V, 1 << 25) + srd_tail(S_ALL, OOB) + srd_tail(S_DBG, 256)
    o += srd_tail(S_WO, 4096 * 896) + srd_tail(S_OUT, 8 * 192 * 896 * 2)
    return o + dwu(c)

def deferred(c):
    D0, D1, T2 = f"s{S_D0}", f"s{S_D1}", f"s{S_T2}"
    kv = [
        f"s_lshl_b32 {D0}, s4, 4", f"s_add_u32 {D0}, {D0}, s5", f"s_lshl_b32 {D0}, {D0}, 18",
        f"s_lshl_b32 {D1}, s98, 13", f"s_add_u32 {D0}, {D0}, {D1}", f"s_lshl_b32 {D1}, s99, 11", f"s_add_u32 {D0}, {D0}, {D1}",
        f"v_lshlrev_b32 v{VA}, 12, v{VH5}", f"v_add3_u32 v{V_DKV}, v{VA}, v{VC31}, {D0}", f"v_lshlrev_b32 v{V_ST}, 4, v{VL}"]
    ini = [
        f"s_lshl_b32 {D0}, s3, 3", f"s_add_u32 {D0}, {D0}, s4", f"s_lshl_b32 {D0}, {D0}, 2", f"s_add_u32 {D0}, {D0}, s{S_W}",
        f"s_lshl_b32 s{S_PG}, {D0}, 21", f"s_lshr_b32 {D0}, {D0}, 2", f"s_lshl_b32 s{S_GRP}, {D0}, 4", f"s_add_u32 s{S_FLR}, s{S_PG}, {AUX}",
        f"s_min_u32 {D1}, s5, 1", f"s_lshl_b32 {D0}, {D1}, 28", f"s_add_u32 {T2}, s{S_FLR}, {D0}",
        f"s_or_b32 {D1}, s5, s{S_W}", f"s_min_u32 {D1}, {D1}, 1", f"s_lshl_b32 {D0}, {D1}, 28", f"s_add_u32 s{S_LEAD}, s{S_GRP}, {D0}",
        f"s_add_u32 s{S_PRB}, s{S_FLR}, {D0}",
        f"v_lshrrev_b32 v{VA}, 1, v{VL}", f"v_mul_u32_u24 v{VB}, {0x4000+256}, v{VA}", f"v_min_u32 v{V_DUM}, 1, v{VA}", f"v_min_u32 v{V_DUM+1}, 1, v{VA}",
        f"v_and_b32 v{VA}, 3, v{VL}", f"v_lshrrev_b32 v{VC}, 1, v{VA}", f"v_lshl_add_u32 v{VB}, v{VC}, 12, v{VB}",
        f"v_and_b32 v{VA}, 1, v{VL}", f"v_lshl_add_u32 v{VB}, v{VA}, 13, v{VB}",
        f"v_cmp_gt_u32 vcc, {2+2*c.races}, v{VL}", f"v_mov_b32 v{VC}, {OOB}", f"v_min_u32 v{VA}, 1, v{VL}",
        f"v_lshlrev_b32 v{V_FLW}, 28, v{VA}", f"v_cndmask_b32 v{V_INI}, v{VC}, v{VB}, vcc"]
    att = [f"s_mov_b32 s{S_C}, 0x3db8aa3b", f"s_mov_b32 s{S_TH}, {c.TH}", f"s_mov_b32 s{S_TL}, {c.TL}",
           f"v_mul_u32_u24 v{VA}, 1056, v{VROW}", f"v_lshl_add_u32 v{VA}, v{VC4}, 3, v{VA}",
           f"v_lshl_add_u32 v{V_RT}, v{VH5}, 9, v{VA}", f"v_lshl_add_u32 v{V_RO}, v{VH5}, 7, v{VA}",
           f"v_mul_u32_u24 v{VA}, 1056, v{V7}", f"v_and_b32 v{VB}, 1, v{VM}", f"v_lshl_add_u32 v{VA}, v{VB}, 9, v{VA}",
           f"v_lshl_add_u32 v{V_RK}, v{VG}, 4, v{VA}"]
    for base in (V_RK, V_RT, V_RO):
        att += [f"v_add_u32 v{base+1}, {3*SLOT}, v{base}", f"v_add_u32 v{base+2}, {6*SLOT}, v{base}"]
    att += [f"v_mov_b32 v{VB}, 0x3f803f80"]
    for t in range(3):
        att += [f"v_cmp_eq_u32 vcc, {t}, v{VC4}"] + [f"v_mov_b32 v{V_NEGM+4*t+r}, 0" for r in range(4)]
        att += [f"v_cndmask_b32 v{VA}, 0, v{VB}, vcc"] + [f"v_accvgpr_write_b32 a{A_ONE+4*t+r}, v{VA}" for r in range(4)]
    out = [
        f"s_lshl_b32 {D0}, s5, 2", f"s_add_u32 {D0}, {D0}, s98", f"s_lshl_b32 {D0}, {D0}, 4", f"s_add_u32 {D0}, {D0}, s99",
        f"s_mul_i32 {D0}, {D0}, {4*896}", f"v_mul_u32_u24 v{VA}, 7168, v{VM}", f"v_lshlrev_b32 v{VB}, 4, v{V7}",
        f"v_add3_u32 v{V_DWO}, v{VA}, v{VB}, {D0}",
        f"v_mul_u32_u24 v{VA}, 1792, v{V7}", f"v_lshl_add_u32 v{VA}, v{VH5}, 4, v{VA}", f"v_and_b32 v{VB}, 1, v{VG}",
        f"v_lshl_add_u32 v{VA}, v{VB}, 5, v{VA}", f"v_and_b32 v{VC}, 1, v{VM}", f"v_lshl_add_u32 v{V_OUT}, v{VC}, 3, v{VA}",
        f"v_xor_b32 v{VB}, v{VB}, v{VC}", f"v_lshrrev_b32 v{VA}, 1, v{V7}", f"v_lshl_add_u32 v{VA}, v{VB}, 2, v{VA}",
        f"v_and_b32 v{VB}, 1, v{VL}", f"v_lshlrev_b32 v{VB}, 4, v{VB}", f"v_mov_b32 v{VC}, 0x3f80", f"v_lshlrev_b32 v{VB}, v{VB}, v{VC}"]
    for r in range(4):
        out += [f"v_cmp_eq_u32 vcc, {r}, v{VA}", "s_nop 1", f"v_cndmask_b32 v{VC}, 0, v{VB}, vcc", f"v_accvgpr_write_b32 a{A_SEL+r}, v{VC}"]
    if c.wo_rot == 1:
        out += rot7(S_ROT, 4)
    else:
        tabl = {2: 0x64206420, 3: 0x20520520}[c.wo_rot]
        out += [f"s_lshl_b32 {D0}, s4, 2", f"s_lshr_b32 {D0}, {tabl}, {D0}", f"s_and_b32 {D0}, {D0}, 15"] + rot7(S_ROT, S_D0)
    for k in range(7):
        out += [f"s_bfe_u32 {D0}, s{S_ROT}, {0x40000 + 4*k}", f"s_lshl_b32 s{S_WOOFF+k}, {D0}, 7"]
    out += [f"s_mul_i32 s{S_OUTB}, s4, 344064", f"s_mul_i32 {D0}, s3, 896", f"s_add_u32 s{S_OUTB}, s{S_OUTB}, {D0}",
            f"s_mul_i32 {D0}, s{S_W}, {3*28672}", f"s_add_u32 s{S_OUTB}, s{S_OUTB}, {D0}",
            f"s_lshl_b32 s{S_SB}, s5, 14", f"s_and_b32 {D0}, s5, 2", f"s_lshl_b32 {D0}, {D0}, 10", f"s_add_u32 s{S_SB}, s{S_SB}, {D0}"]
    return kv, ini, att, out

def qacc(t, q):
    return ((t >> 1) * 3 + q) * 8 + (t & 1) * 4
def sreg(j, kt, q):
    return (V_SALT if (j == 0 and kt == 0) else V_S + 12 * kt) + q * 4
def preg(j, q):
    return V_P + (j & 1) * 12 + q * 4
def lreg(j):
    return V_L + (j & 1) * 4
def oreg(t, q):
    return ("v", V_OV + (t * 3 + q) * 4) if t < 4 else ("a", (t * 3 + q) * 4)
def oacc(ch, nt, q):
    return (96 if ch % 2 == 0 else 144) + (q * 4 + nt) * 4

def softmax_items(j, kt, tmp, qorder=(0, 1, 2)):
    out, pend = [], None
    for q in qorder:
        for hf in range(2):
            e = V_E + 2 * (tmp[0] % 4)
            tmp[0] += 1
            out.append(Ins(f"v_exp_f32 v{e}, v{sreg(j,kt,q)+2*hf}", 2, meta=q))
            if pend:
                out.append(pend)
            out.append(Ins(f"v_exp_f32 v{e+1}, v{sreg(j,kt,q)+2*hf+1}", 2, meta=q))
            pend = Ins(f"v_cvt_pk_bf16_f32 v{preg(j,q)+2*kt+hf}, v{e}, v{e+1}", 1, meta=q)
    return out, pend

def ones_mfma(j):
    o = []
    for q in range(3):
        cin = vr(lreg(j), 4) if q else (vr(lreg(j - 1), 4) if j else "0")
        o.append(f"{MF} {vr(lreg(j),4)}, {ar(A_ONE+4*q,4)}, {vr(preg(j,q),4)}, {cin}")
    return o

def rare_path(j):
    D, F, T = (138, None, 141) if j == 0 else (228, 231, 234)
    o = ["s_nop 7", "s_nop 7"]
    for q in range(3):
        a, b = sreg(j, 0, q), sreg(j, 1, q)
        o += [f"v_max3_f32 v{D+q}, v{a}, v{a+1}, v{a+2}", f"v_max3_f32 v{D+q}, v{D+q}, v{a+3}, v{b}",
              f"v_max3_f32 v{D+q}, v{D+q}, v{b+1}, v{b+2}", f"v_max_f32 v{D+q}, v{D+q}, v{b+3}"]
    for op in ("v_permlane32_swap_b32", "v_permlane16_swap_b32"):
        o += [f"v_mov_b32 v{T+q}, v{D+q}" for q in range(3)] + ["s_nop 1"]
        o += [f"{op} v{T+q}, v{D+q}" for q in range(3)]
        o += [f"v_max_f32 v{D+q}, v{D+q}, v{T+q}" for q in range(3)]
    if j:
        o += [f"v_max_f32 v{D+q}, 0, v{D+q}" for q in range(3)]
        o += [f"v_exp_f32 v{F+q}, -v{D+q}" for q in range(3)]
    for q in range(3):
        tgt = [V_NEGM + 4 * q, sreg(j, 0, q), sreg(j, 1, q)] + ([sreg(1, 0, q)] if j == 0 else [])
        for a in tgt:
            o += [f"v_sub_f32 v{a+r}, v{a+r}, v{D+q}" for r in range(4)]
        if j:
            o += [f"v_mul_f32 v{lreg(j-1)+q}, v{lreg(j-1)+q}, v{F+q}"]
    tmp = [0]
    for kt in range(2):
        it, pend = softmax_items(j, kt, tmp)
        o += [x.text for x in it] + ["s_nop 0", pend.text]
    if j:
        for t in range(16):
            for q in range(3):
                f, a = oreg(t, q)
                if f == "v":
                    o += [f"v_mul_f32 v{a+r}, v{a+r}, v{F+q}" for r in range(4)]
                else:
                    o += [f"v_accvgpr_read_b32 v{T+r}, a{a+r}" for r in range(4)]
                    o += [f"v_mul_f32 v{T+r}, v{T+r}, v{F+q}" for r in range(4)]
                    o += [f"v_accvgpr_write_b32 a{a+r}, v{T+r}" for r in range(4)]
    o += ["s_nop 1"] + ones_mfma(j) + ["s_nop 7", "s_nop 7"]
    return check_hazards(o, fix=True)[0]

def order(mode):
    if mode == "A3":
        return [(f, q if f % 2 == 0 else 2 - q) for f in range(16) for q in range(3)]
    out = []
    for b in range(4):
        for qi in range(3):
            q = qi if b % 2 == 0 else 2 - qi
            rng = range(4) if qi % 2 == 0 else range(3, -1, -1)
            out += [(4 * b + i, q) for i in rng]
    return out

def build_main(c):
    steps = steps_list(c)
    NS = len(steps)
    idx = {s: n for n, s in enumerate(steps)}
    tl = Timeline()
    G, USE, LAST, ONES, FIN = {}, {}, {}, {}, {}
    fb = lambda F: A_FR + 4 * (F % c.NF)
    def mode(n):
        ty, k = steps[n]
        return "CH" if c.chain and (ty in "UK" or (ty == "O" and k >= 2)) else "A3"
    def ki(n, f):
        return (f & 3, f >> 2) if (mode(n) == "CH" or steps[n][0] == "U") else (f >> 2, f & 3)
    started = set()
    for n, (ty, k) in enumerate(steps):
        for m, (f, q) in enumerate(order(mode(n))):
            F = 16 * n + f
            if ty == "W":
                key, d, b, c0 = ("Q", f, q), vr(qacc(f, q), 4), ar((k * 3 + q) * 4, 4), "0"
            elif ty == "U":
                i, nt = ki(n, f)
                t = 4 * (k & 3) + nt
                key, d, b, c0 = ("Q", t, q), vr(qacc(t, q), 4), ar(((4 * (k >> 2) + c.nW + i) * 3 + q) * 4, 4), "0"
            elif ty == "K":
                kt, s = f >> 3, f & 7
                key, d, b, c0 = ("S", k, kt, q), vr(sreg(k, kt, q), 4), vr((s * 3 + q) * 4, 4), vr(V_NEGM + 4 * q, 4)
            elif ty == "V":
                fl, a = oreg(f, q)
                key, d, b, c0 = ("O", f, q), vr(a, 4, fl), vr(preg(k, q), 4), "0"
            else:
                i, nt = ki(n, f)
                s = (k & 1) * 4 + i
                key, d, b, c0 = ("P", k >> 1, nt, q), vr(oacc(k >> 1, nt, q), 4), vr((s * 3 + q) * 4, 4), "0"
            i_m = tl.add_mfma(f"{MF} {d}, {ar(fb(F),4)}, {b}, {d if key in started else c0}")
            started.add(key)
            FIN[key] = i_m
            if m % 3 == 0:
                G[16 * n + m // 3] = i_m
            USE.setdefault(F, i_m)
            LAST[F] = i_m
            if ty == "O":
                USE.setdefault(("B", s), i_m)
            if (ty, k) == ("K", 0):
                USE.setdefault(("QB", s), i_m)
            jn = None
            if ty == "V" and k < 15 and m == 3 * c.ones_at + 2:
                jn = k + 1
            if (ty, k) == ("K", 1) and m == 11:
                jn = 0
            if jn is not None:
                for t in ones_mfma(jn):
                    ONES[jn] = tl.add_mfma(t)
    NM = len(tl.mf)
    beg = lambda n: G[16 * n]
    end = lambda n: (G[16 * (n + 1)] - 1) if n + 1 < NS else NM - 1
    at = lambda x: min(NM - 1, beg(int(x)) + int((x - int(x)) * (end(int(x)) - beg(int(x)) + 1)))
    nK0, nV15, nO0 = idx[("K", 0)], idx[("V", 15)], idx[("O", 0)]

    bsteps = [n for n in range(0, nK0, c.bar_q)]
    if c.bar_q == 2:
        bsteps = [0] + list(range(1, nK0, 2))
    bsteps += [nK0] + list(range(nK0 + c.bar_a, nV15, c.bar_a))
    bsteps += list(range(nV15, NS - 1, c.bar_o)) + list(range(c.bar_late, nV15))
    bsteps = sorted(set(bsteps))
    bgap = {n: G[16 * (n + 1) - c.D] for n in bsteps}
    covers = {n: list(range(n + 1, (bsteps[i + 1] if i + 1 < len(bsteps) else NS - 1) + 1)) for i, n in enumerate(bsteps)}
    def freed(m):
        later = [n for n in bsteps if n >= m + 1]
        return bgap[later[0]] + 1 if later else NM

    xreg = lambda kc: [16, 13, 10][kc % c.nx] * BLK
    x_read = c.x_read
    def xfreed(kc):
        g = at(x_read[kc]) + 20 + 3 * (c.D + 2)
        return min(bgap[n] for n in bsteps if bgap[n] >= g) + 1
    xslots = {5: (5,), 6: (4, 5), 7: (4,), 8: (6,)} if c.nx == 3 else {6: (5,), 7: (5,), 8: (6,)}
    free_at = {s: max([-1] + [xfreed(kc) for kc in xslots.get(s, ())]) for s in range(9)}
    pro = [(t[0], int(t[1:]), p) for t in c.pro_order.split() for p in range(6 if t[0] == "X" else 4)]
    pro_s = [int(t[1:]) for t in c.pro_order.split() if t[0] == "S"]
    units = []
    def add(kind, i, x, pieces, step=4):
        units.append([at(x), step, kind, i, list(pieces)])
    rest = {}
    for kind, i, p in pro[c.pro_n:]:
        rest.setdefault((kind, i), []).append(p)
    for (kind, i), ps in rest.items():
        add(kind, i, 0.0, ps, 3)
    for m in range(max(pro_s) + 1, 14):
        add("S", m, max(0.03, m - c.w_la), range(4), c.w_step)
    for kc, x in c.x_issue.items():
        add("X", kc, x, range(6), c.x_step)
        if kc > c.nx:
            units[-1][0] = max(units[-1][0], at(x_read[kc - c.nx]) + 20 + 3 * (c.D + 2))
    staged = {m: r for x, m, r in c.staged}
    for x, m, r in c.staged:
        ks = (r + 15) // 12
        assert r + 16 <= 192 and (r >= 168 or x >= (ks + 1 if ks < c.nW else c.nW + 4 * ((ks - c.nW) // 4 + 1)))
        assert r + 16 <= 48 or m < 14 + len(c.kv_early)
        add("G", m, x, range(4), c.kv_slow.get(m, c.kv_step))
    for m, x in zip(range(14, 14 + len(c.kv_early)), c.kv_early):
        add("S", m, x, range(4), 6 if m in staged else c.kv_slow.get(m, c.kv_step))
    m0 = 14 + len(c.kv_early)
    knots = [(m0, 14.0)] + ([c.kv_knee] if c.kv_knee else []) + [(46, c.kv_last + 1)]
    for (ma, xa), (mb, xb) in zip(knots, knots[1:]):
        w = (xb - xa) / len([m for m in range(ma, mb) if m not in staged])
        x = xa
        for m in range(ma, mb):
            if m in staged:
                add("S", m, x + 0.01, range(4), 6)
            else:
                add("S", m, x, range(4), int(w * 12))
                x += w
    x = c.kv_last + 1
    for m in range(46, 60):
        x = c.wo_at[m - 46] if c.wo_at else max(x, m - c.wo_la)
        add("S", m, x, range(4), 3)
        x += c.wo_rate if x < 45 else c.wo_rate2
    units.sort(key=lambda u: u[0])
    slot_of, slot_lo = {}, {}
    def alloc(m):
        if m < 14:
            pool = list(range(c.w_la + 2))
        elif 13 not in slot_of:
            pool = list(range(c.w_la + 2, 9))
        else:
            pool = list(range(9))
        s = min(pool, key=lambda s: (free_at[s], s))
        slot_of[m], slot_lo[m] = s, free_at[s]
        free_at[s] = freed(m)
    for m in pro_s:
        alloc(m)
    for u in units:
        if u[2] == "S" and u[3] not in slot_of:
            alloc(u[3])
            u[0] = max(u[0], slot_lo[u[3]])
    units.sort(key=lambda u: u[0])

    def soff(reg, fixed, off):
        return Ins(f"s_add_u32 s{S_T0}, s{reg}, {off}" if c.rot else f"s_mov_b32 s{S_T0}, {fixed + off}")
    def dma(kind, i, p):
        if kind == "X":
            return [Ins(f"s_add_u32 m0, s{S_LDSX}, {xreg(i) + 1024*p}"), soff(S_XOFF + i, 128 * i, 7168 * p),
                    Ins(f"buffer_load_dwordx4 v{V_DX}, {sq(S_X)}, s{S_T0} offen {c.pol_x} lds", 1, "vm", ("X", i))]
        ty, k = steps[i]
        if kind == "G":
            o = [Ins(f"s_mov_b32 s{S_T1}, {k*16384}")] if p == 0 else []
            off = f" offset:{512*p}" if p else ""
            return o + [Ins(f"buffer_load_dwordx4 {ar(staged[i]+4*p,4)}, v{V_DKV}, {sq(S_K if ty == 'K' else S_V)}, s{S_T1} offen{off} {c.pol_kv}", 1, "vm", ("G", i))]
        base = slot_of[i] * SLOT
        if i in staged:
            sw = V_SW if i >= 14 + len(c.kv_early) else V_SWQ
            o = [Ins("", 1, "waitv", {("G", i)}), Ins(f"s_add_u32 s{S_T0}, s{S_LDSW}, {base}"), Ins(f"v_add_u32 v{sw}, s{S_T0}, v{V_ST}")] if p == 0 else []
            return o + [Ins(f"ds_write_b128 v{sw}, {ar(staged[i]+4*p,4)} offset:{1056*p}", 1, "ds", ("SW", i))]
        if ty in "WU":
            pos, off, v = (k >> 1, ((k & 1) * 32 + p) * 8192, V_DWQ) if ty == "W" else (c.nW // 2 + 2 * (k >> 2), p * 8192 + (k & 3) * 128, V_DWU)
            return [Ins(f"s_add_u32 m0, s{S_LDSW}, {base + WPOS[p]}"), soff(S_WQOFF + pos, pos << 19, off),
                    Ins(f"buffer_load_dwordx4 v{v}, {sq(S_WQ)}, s{S_T0} offen {c.pol_wq} lds", 1, "vm", ("S", i))]
        o = []
        if ty in "KV":
            g, sr, v, pol = 512 * p, (S_K if ty == "K" else S_V), V_DKV, c.pol_kv
            if p == 0:
                o.append(Ins(f"s_mov_b32 s{S_T1}, {k*16384}"))
        else:
            g, sr, v, pol = 896 * p, S_WO, V_DWO, c.pol_wo
            if p == 0:
                o.append(Ins(f"s_add_u32 s{S_T1}, s{S_WOOFF+(k>>1)}, {(k&1)*128*896}"))
        o.append(Ins(f"s_add_u32 m0, s{S_LDSW}, {base + 1056*p - g}"))
        off = f" offset:{g}" if g else ""
        o.append(Ins(f"buffer_load_dwordx4 v{v}, {sq(sr)}, s{S_T1} offen{off} {pol} lds", 1, "vm", ("S", i)))
        return o

    def reads(F):
        n, f = F // 16, F % 16
        ty, k = steps[n]
        s, r = slot_of[n], fb(F)
        win, base = s // 3, (s % 3) * SLOT
        if ty == "K":
            return [Ins(f"ds_read_b128 {ar(r,4)}, v{V_RK+win} offset:{base + (f>>3)*BLK + (f&7)*64}", 1, "ds", F)]
        if ty == "V":
            v, o0, dd = V_RT + win, base + f * 32, BLK
        elif ty == "W":
            v, o0, dd = V_RW + win, base + (f >> 1) * 64 + (f & 1) * 8, BLK
        else:
            i, nt = ki(n, f)
            o0, dd = (i >> 1) * BLK + (i & 1) * 512, 256
            if ty == "U":
                v, o0 = V_RU + win, o0 + base + (nt >> 1) * 64 + (nt & 1) * 8
            else:
                v, o0 = V_RO + win, o0 + base + nt * 32
        assert o0 + dd < 65536
        return [Ins(f"ds_read_b64_tr_b16 {ar(r,2)}, v{v} offset:{o0}", 1, "ds", F),
                Ins(f"ds_read_b64_tr_b16 {ar(r+2,2)}, v{v} offset:{o0+dd}", 1, "ds", F)]
    def xreads(kc):
        return [Ins(f"ds_read_b128 {ar(((2*kc+s)*3+q)*4,4)}, v{V_RX+s} offset:{xreg(kc) - 10*BLK + q*2048}", 1, "ds", ("X", kc))
                for s in range(2) for q in range(3)]

    P = lambda t: tl.put(-1, Ins(t) if isinstance(t, str) else t)
    PS = lambda k: [P(t) for t in stamp(k)] if c.pstamps else None
    for t in prologue1(c):
        P(t)
    PS(1)
    for e in pro[:c.pro_first]:
        for x in dma(*e):
            P(x)
    PS(2)
    for t in prologue2(c):
        P(t)
    PS(3)
    for e in pro[c.pro_first:c.pro_hop]:
        for x in dma(*e):
            P(x)
    if c.pads:
        for t in ["s_mov_b64 exec, 0"] + [x for w in range(3) for x in (f"s_cmp_eq_u32 s{S_W}, {w}", f"s_cbranch_scc1 L_pad{w}")] + \
                 ["s_branch L_pad3", ".p2align 12", "L_main:", "s_mov_b64 exec, -1"]:
            P(t)
    kv, ini, att, out = deferred(c)
    init = Ins(f"buffer_store_dwordx2 {vr(V_DUM,2)}, v{V_INI}, {sq(S_ALL)}, s{S_T2} offen sc1", 1, "vm", "reset")
    setup = (ini if c.clump else ini + kv + att + out) if c.pro_setup else []
    share = -(-len(setup) // (c.pro_n - c.pro_hop))
    for e in pro[c.pro_hop:c.pro_n]:
        for x in dma(*e) + setup[:share]:
            P(x)
        setup = setup[share:]
    PS(4)
    P(Ins("", 1, "waitv", {("X", 0), ("S", 0)}))
    P("s_waitcnt lgkmcnt(0)")
    if c.pro_setup:
        P(init)
    PS(5)
    P("s_barrier")
    PS(6)
    for x in xreads(0):
        P(x)
    for F in range(c.D):
        for x in reads(F):
            P(x)
    P(Ins("", 1, "waitl", {0, ("X", 0)}))

    NFR = 16 * NS
    for F in range(c.D, NFR):
        g = G[F - c.D]
        assert F < c.NF or LAST[F - c.NF] <= g
        same = any(at(a) <= g < at(b) for a, b in c.pair_rd)
        for k, x in enumerate(reads(F)):
            tl.put(g + (0 if same else k), x)
    hasread = lambda g: bool(tl.gaps[g].mem)
    def lead_before(ins, g, span=3):
        for i in range(g, g - span, -1):
            if i >= 0 and hasread(i) and not tl.gaps[i].lead:
                tl.gaps[i].lead.append(ins)
                return i
        return tl.back(ins, g, max(0, g - span))
    for n in bsteps:
        tl.gaps[bgap[n]].lead.append(Ins("s_barrier"))
        need = {("S", m) for m in covers[n]}
        if n == max(b for b in bsteps if b < nK0):
            need.add("dum")
        lead_before(Ins("", 1, "waitv", need), bgap[n] - 1)
    for kc, r in x_read.items():
        g = lead_before(Ins("", 1, "waitv", {("X", kc)}), at(r) + 1)
        tl.chain(xreads(kc), g + 1, at(r) + 20)
    F = 1
    while F < NFR:
        grp = [F]
        if mode(F // 16) == "CH" and F % 4 == 1:
            grp = [F, F + 1, F + 2]
        need = set(grp)
        ty, k = steps[F // 16]
        if F % 16 == 0 and ((ty == "U" and k % 4 == 0) or (ty == "W" and k % 2 == 0)):
            need |= {("X", k // 2)} if ty == "W" else {("X", c.nW // 2 + k // 2), ("X", c.nW // 2 + k // 2 + 1)}
            tl.back(Ins("", 1, "waitl", need), USE[F] - 1, USE[F] - 1)
        else:
            lead_before(Ins("", 1, "waitl", need), min(USE[x] for x in grp) - 1)
        F += len(grp)

    pieces, last_t = [], {}
    for seq, (g0, step, kind, i, ps) in enumerate(units):
        stream = "sw" if (kind == "S" and i in staged) else "kv" if (kind == "G" or (kind == "S" and i >= 14)) else "x" if (kind == "X" and c.x_step > 3) else "w"
        for n_p, p in enumerate(ps):
            tgt = max(g0 + n_p * step, last_t.get(stream, -1))
            last_t[stream] = tgt
            pieces.append((tgt, seq, n_p, kind, i, p))
    pieces.sort()
    state = dict(prev=-1, k=0)
    margin = {}
    def place_units(upto, back, slack):
        while state["k"] < len(pieces) and pieces[state["k"]][0] < upto:
            tgt, _, _, kind, i, p = pieces[state["k"]]
            state["k"] += 1
            ins = dma(kind, i, p)
            prev = state["prev"]
            lo = max(tgt - back, prev + (c.wo_gap if kind == 'S' and i >= 48 else 3), prev + len(ins))
            if kind == "S":
                lo = max(lo, slot_lo[i] + len(ins) - 1)
            g = lo
            while tl.gaps[g].seq() and g < lo + slack:
                g += 1
            if tl.gaps[g].seq():
                g = min(range(lo, lo + slack), key=lambda k: (tl.gaps[k].added(ins[-1], 1), k))
            if any(at(a) <= g < at(b) for a, b in c.pack_dma) and cls(ins[-1]) == "m" and len(ins) >= (3 if g < beg(nK0) else 2):
                tl.gaps[g].mem += sorted(ins[:-1], key=lambda x: "m0" not in x.text) + ins[-1:]
            else:
                tl.gaps[g].mem.append(ins[-1])
                if ins[:-1]:
                    tl.chain(ins[:-1], max(prev + 1, g - 6), g - 1)
            state["prev"] = g
            if kind == "G" or (kind == "S" and i >= 14):
                state.setdefault("kv0", g)
            if kind == "S" and i > 0:
                margin[i] = round((min(bgap[n] for n in bsteps if i in covers[n]) - g) / 49.5, 1)
    place_units(beg(nK0), 0, 8)

    L = lambda ts: [Ins(t) for t in ts]
    if c.pro_setup:
        ps = [(0, 0)]
    else:
        ps = tl.chain(L(ini) + [init], 0, at(c.race_at) - 62)
        ps = tl.chain(L(kv), ps[-1][0] + 1, state["kv0"] - 2)
    if c.touch_wo:
        it = [f"s_lshl_b32 s{S_D0}, s5, 4", f"s_add_u32 s{S_D0}, s{S_D0}, s{S_W}", f"s_mul_i32 s{S_D0}, s{S_D0}, {16*896}",
              f"s_min_u32 s{S_D1}, s4, 6", f"s_lshl_b32 s{S_D1}, s{S_D1}, 7", f"s_add_u32 s{S_D0}, s{S_D0}, s{S_D1}",
              f"v_min_u32 v{VA}, 1, v{VG}", f"v_lshlrev_b32 v{VA}, 28, v{VA}", f"v_mul_u32_u24 v{VB}, 896, v{VL}",
              f"v_add3_u32 v238, v{VA}, v{VB}, s{S_D0}"]
        ps = tl.chain(L(it), ps[-1][0] + 1, at(c.touch_wo[0]) - 1)
        for k, x in enumerate(c.touch_wo):
            tl.chain([Ins(f"s_mov_b32 s{S_ST1}, {k*64*896}"),
                      Ins(f"buffer_load_dword v239, v238, {sq(S_WO)}, s{S_ST1} offen", 1, "vm", "dum")], at(x), at(x) + 12)
    ini_end = ps[-1][0]
    def fill(ts, g):
        sec = 0
        for t in ts:
            ins = t if isinstance(t, Ins) else Ins(t)
            while True:
                gp = tl.gaps[g]
                if gp.mem and cls(gp.mem[0]) == "d":
                    k = gp.section(ins, sec)
                    if gp.added(ins, k) <= 0:
                        break
                g, sec = g + 1, 0
            gp.add(ins, k)
            sec = 2
        return g
    A, Tt = f"s{S_ACC}", f"s{S_TOT}"
    g = fill([Ins("", 1, "waitv", {"reset"}), f"s_mov_b32 {Tt}, 0", f"s_mov_b64 s[{S_RA}:{S_RB}], 0", f"s_mov_b32 {A}, 0"], at(c.race_at))
    reset_seen = g
    for i in range(c.races):
        off = (i + 1) * (0x4000 + 256) + ((i + 1) & 1) * 4096
        ld = [f"s_buffer_load_dword s{S_RA}, {sq(S_ALL)}, s{S_PRB} offset:{off}",
              f"s_buffer_load_dword s{S_RB}, {sq(S_ALL)}, s{S_PRB} offset:{off+8192}"]
        sm = [f"s_add_u32 {A}, {A}, s{S_RA}", f"s_sub_u32 {A}, {A}, s{S_RB}"]
        first = (i + i // 2) % 2
        g0 = fill(ld[::-1 if first else 1], g + 1)
        g = g0 + c.race_skip
        while g < g0 + c.race_len:
            g = max(fill(sm[::-1 if first else 1], g) + 1, g + c.race_step)
        if c.stamps:
            tl.put(g, Ins(f"v_writelane_b32 v{V_STAMP}, {A}, {50+i}"), 2)
            g += 1
        g = fill([f"s_min_i32 {A}, {A}, {c.race_clamp}", f"s_max_i32 {A}, {A}, {-c.race_clamp}", f"s_add_u32 {Tt}, {Tt}, {A}",
                  f"s_mov_b32 {A}, 0", f"s_mov_b64 s[{S_RA}:{S_RB}], 0"], g)
    fin = [f"s_lshr_b32 {A}, {Tt}, 31", f"s_mul_i32 {A}, {A}, 3", f"s_add_u32 {A}, {A}, 4"]
    if c.force is not None:
        fin += [f"s_mov_b32 {A}, {4 + c.force}"]
    g = fill(fin, g + 1)
    g = max(g, min(b for b in bgap.values() if b > reset_seen))
    pub_at = tl.chain([Ins(f"v_mov_b32 v{V_PUB}, {A}"),
                       Ins(f"buffer_store_dword v{V_PUB}, v{V_FLW}, {sq(S_DBG)}, s{S_LEAD} offen sc1", 1, "vm", "cnt")], g + 1, g + 30)[-1][0]
    if c.clump:
        rest = kv + att + out
        n_c = -(-len(rest) // c.clump[2])
        for k in range(n_c):
            g = at(c.clump[0] + (c.clump[1] - c.clump[0]) * k / n_c)
            while not (tl.gaps[g].mem and cls(tl.gaps[g].mem[0]) == "d"):
                g += 1
            assert k * c.clump[2] >= len(kv) or g < state["kv0"] - 2
            for t in rest[k * c.clump[2]:(k + 1) * c.clump[2]]:
                tl.put(g, Ins(t), 2)
    elif not c.pro_setup:
        ps = tl.chain(L(att + out), ini_end + 1, beg(10))
    defer_end = ps[-1][0]

    cur = 0
    for s in range(8):
        it = []
        for q in sorted(range(3), key=lambda q: FIN[("Q", 2 * s + 1, q)]):
            src, dst = (s * 3 + q) * 8, (s * 3 + q) * 4
            rdy = FIN[("Q", 2 * s + 1, q)] + 4
            it += [(Ins(f"v_mul_f32 v{src+r}, s{S_C}, v{src+r}"), FIN[("Q", 2 * s + (r >> 2), q)] + 4) for r in range(8)]
            if s:
                it += [(Ins(f"v_cvt_pk_bf16_f32 v{dst+r}, v{src+2*r}, v{src+2*r+1}"), rdy) for r in range(4)]
        if s == 0:
            for q in range(3):
                it += [Ins(f"v_cvt_pk_bf16_f32 v{q*4+r}, v{q*8+2*r}, v{q*8+2*r+1}") for r in range(4)]
        lo = max(cur, it[0][1])
        hi = min(USE[("QB", s)] - 2, max(FIN[("Q", 2 * s + 1, q)] for q in range(3)) + 26)
        cur = tl.chain(it, lo, hi, level=c.conv_level)[-1][0]
    q_done = cur

    tmp = [0]
    prev_branch = 0
    sm_placed = {}
    for j in range(16):
        it, pend = [], None
        for kt in range(2):
            qo = sorted(range(3), key=lambda q: FIN[("S", j, kt, q)])
            items, p = softmax_items(j, kt, tmp, qo)
            xs = [(x, FIN[("S", j, kt, x.meta)] + 5) for x in items]
            if pend:
                xs.insert(1, (pend, 0))
            it += xs
            pend = p
        lo = max(it[0][1], prev_branch + 1, q_done + 1)
        ps = tl.chain(it, lo, ONES[j] - 6)
        sm_placed[j] = (it, ps, lo)
        tl.chain([pend], ps[-1][0] + 1, ONES[j] - 5)
        l = lreg(j)
        br = (G[16 * idx[("K", 1)] + 8] - 1) if j == 0 else end(idx[("V", j - 1)])
        chk = [Ins(f"v_max3_f32 v{V_CHK}, v{l}, v{l+1}, v{l+2}"), Ins(f"v_cmp_nge_f32 vcc, s{S_TH}, v{V_CHK}")]
        if j == 0:
            chk = [Ins(f"v_min3_f32 v{V_CHK+1}, v{l}, v{l+1}, v{l+2}"), Ins(f"v_cmp_nle_f32 s[{S_RET}:{S_RET+1}], s{S_TL}, v{V_CHK+1}")] + chk
            chk += [Ins(f"s_or_b64 vcc, vcc, s[{S_RET}:{S_RET+1}]")]
        tl.chain(chk, ONES[j] + 5, br - 1)
        g = tl.gaps[br]
        sec = g.lead if not g.lead else g.rest
        sec += [Ins(f"s_cbranch_vccnz L_stub{j}"), Ins(f"L_back{j}:", 0)]
        prev_branch = br

    place_units(beg(nV15), c.back, c.slack)
    place_units(NM, 0, 8)
    for j, (it, ps, lo) in sm_placed.items():
        lv = max([0] + [x for j0, x in c.sm_level if j >= j0])
        if lv:
            for (x, _), (g, sec) in zip(it, ps):
                tl.gaps[g].remove(x, sec)
            tl.chain(it, lo, ps[-1][0], level=lv)

    nK14 = idx[("K", 15)]
    assert pub_at + 150 < beg(nK14 - 4)
    tl.chain([Ins(f"buffer_load_dword v{V_PUB}, off, {sq(S_DBG)}, s{S_GRP} sc1", 1, "vm", "dbg")], beg(nK14 - 4), beg(nK14 - 4) + 30)
    ps = tl.chain([Ins("", 1, "waitv", {"dbg"}), Ins(f"v_cmp_gt_u32 vcc, 1, v{V_PUB}")], beg(nK14), beg(nK14) + 9)
    gi = ps[-1][0] + 2
    g = tl.gaps[gi]
    (g.lead if not g.lead else g.rest).extend([Ins("s_cbranch_vccnz L_dbgspin"), Ins("L_dbgback:", 0)])
    D0, M = f"s{S_D0}", f"s{S_D1}"
    ps = tl.chain([Ins(f"v_readfirstlane_b32 {M}, v{V_PUB}")], gi + 1, gi + 6)
    fix = [f"s_mul_i32 {D0}, s99, 3", f"s_xor_b32 {M}, {M}, {D0}",
           f"s_and_b32 {D0}, {M}, 2", f"s_lshl_b32 {D0}, {D0}, 12", f"s_add_u32 s{S_PG+1}, s{S_PG}, {D0}",
           f"s_and_b32 {D0}, {M}, 1", f"s_lshl_b32 {D0}, {D0}, 13", f"s_add_u32 s{S_PG}, s{S_PG}, {D0}", f"s_add_u32 s{S_FLR}, s{S_FLR}, {D0}",
           f"s_add_u32 s{S_SB+1}, s{S_SB}, s{S_PG+1}", f"s_add_u32 s{S_SB}, s{S_SB}, s{S_PG}", f"s_sub_u32 s{S_PG+1}, s{S_PG+1}, s{S_PG}"]
    tl.chain(L(fix), ps[-1][0] + 1, beg(nV15))

    tl.chain([Ins(f"v_rcp_f32 v{V_RINV+q}, v{lreg(15)+q}", 2) for q in range(3)], beg(nV15), beg(nV15) + 9)
    cur, rot = beg(nV15), 0
    for s in range(8):
        it = []
        for tp in range(2):
            for q in sorted(range(3), key=lambda q: FIN[("O", 2 * s + tp, q)]):
                fl, a = oreg(2 * s + tp, q)
                rdy = FIN[("O", 2 * s + tp, q)] + 4
                if fl == "a":
                    T = 216 + 4 * (rot % 2)
                    rot += 1
                    it += [(Ins(f"v_accvgpr_read_b32 v{T+r}, a{a+r}"), rdy) for r in range(4)]
                    a = T
                it += [(Ins(f"v_cvt_pk_bf16_f32 v{(s*3+q)*4+2*tp+h}, v{a+2*h}, v{a+2*h+1}"), rdy) for h in range(2)]
        lo = max(cur, it[0][1])
        dead = USE[("B", s)] - 2
        left = sum(12 if x < 2 else 36 for x in range(s, 8))
        share = lo + int((USE[("B", 7)] - 2 - lo) * (12 if s < 2 else 36) / left) + 1
        cur = tl.chain(it, lo, max(min(dead, share), min(dead, it[-1][1] + 2)))[-1][0]

    def chunk_out(ch):
        pcs = sorted(range(6), key=lambda pc: FIN[("P", ch, 2 * (pc & 1) + 1, pc >> 1)])
        it = [(Ins(f"s_add_u32 s{S_ST0}, s{S_SB+(ch&1)}, {ch << 18}"), 0), (Ins(f"s_add_u32 s{S_ST1}, s{S_SB+(ch&1)}, {(ch << 18) + 4096}"), 0)]
        held = []
        for n_p, pc in enumerate(pcs):
            q, p = pc >> 1, pc & 1
            a, T = oacc(ch, 2 * p, q), 192 + 4 * pc
            rdy = FIN[("P", ch, 2 * p + 1, q)] + 4
            v = [(Ins(f"v_mul_f32 v{a+r}, v{a+r}, v{V_RINV+q}"), FIN[("P", ch, 2 * p + (r >> 2), q)] + 4) for r in range(8)]
            v += [(Ins(f"v_cvt_pk_bf16_f32 v{T+r}, v{a+2*r}, v{a+2*r+1}"), rdy) for r in range(4)]
            if n_p % c.st_group == c.st_group - 1:
                for k, x in enumerate(held):
                    v.insert(len(v) - 2 * (len(held) - k), x)
                held = []
            it += v
            st = (Ins(f"buffer_store_dwordx4 {vr(T,4)}, v{V_ST}, {sq(S_ALL)}, s{S_ST0 if pc < 4 else S_ST1} offen offset:{(pc&3)*1024} sc1", 1, "vm", ("st", ch)), rdy)
            if n_p % c.st_group == c.st_group - 1:
                it.append(st)
            else:
                held.append(st)
        return it
    tail = []
    st_last = {}
    for ch in range(7):
        it = chunk_out(ch)
        lo = max(cur + 1, it[2][1])
        if ch < 6:
            for k in range(6):
                x, e = it[2 + 13 * k]
                it[2 + 13 * k] = (x, max(e, lo + min(c.st_pace, (end(nO0 + 2 * ch + 3) - 36 - lo) // 5) * k))
            cur = tl.chain(it, lo, end(nO0 + 2 * ch + 3) - (26 if not c.st_pace else 22))[-1][0]
            st_last[ch] = cur
        else:
            early = it[:2 + 3 * 13]
            if c.chain:
                tl.chain(early, lo, NM - 1)
                tail = [x for x, _ in it[len(early):]]
            else:
                tail = [x for x, _ in it]

    sig = sorted(set(c.flags) | {6})
    assert len(sig) <= 6
    LASTBIT = 1 << (5 * sig.index(6))
    tab = sum(sig.index(min(x for x in sig if x >= ch)) << (4 * ch) for ch in range(7))
    VF2, VTK, VAT, VLD = 233, 234, 235, 236
    PRG, T0, T1, T2, CNT = f"s{S_SPIN}", f"s{S_ACC}", f"s{S_D1}", f"s{S_T2}", f"s{S_D0}"
    claim = f"buffer_atomic_add v{VAT}, v{VF2}, {sq(S_ALL)}, s{S_FLR} offen sc0 sc1"
    read2 = [f"v_readlane_b32 {PRG}, v{VAT}, 0", f"v_readlane_b32 s{S_TKT}, v{VAT}, 1"]
    lanes2 = [f"v_lshrrev_b32 v{VTK}, 4, v{V_ST}", f"v_lshrrev_b32 v{VF2}, 5, v{V_ST}", f"v_min_u32 v{VF2}, 1, v{VF2}",
              f"v_lshlrev_b32 v{VF2}, 28, v{VF2}", f"v_lshl_add_u32 v{VF2}, v{VTK}, 2, v{VF2}",
              f"v_and_b32 v{VLD}, 0x70, v{V_ST}", f"v_bfe_u32 v{VAT}, v{V_ST}, 7, 2", f"v_lshl_add_u32 v{VLD}, v{VAT}, 8, v{VLD}",
              f"v_lshrrev_b32 v{VAT}, 9, v{V_ST}", f"v_lshl_add_u32 v{VLD}, v{VAT}, 14, v{VLD}"]
    def decode(b):
        dst = f"s{S_DST+b}"
        return [f"s_mul_i32 {T1}, s{S_TKT}, 171", f"s_lshr_b32 {T1}, {T1}, 11", f"s_mul_i32 {T0}, {T1}, 12", f"s_sub_u32 {T0}, s{S_TKT}, {T0}",
                f"s_and_b32 {T2}, {T1}, 1", f"s_mul_i32 {T2}, {T2}, s{S_PG+1}", f"s_add_u32 s{S_SRC}, s{S_PG}, {T2}", f"s_lshl_b32 {T2}, {T1}, 18",
                f"s_add_u32 s{S_SRC}, s{S_SRC}, {T2}", f"s_lshr_b32 {T2}, {T0}, 1", f"s_lshl_b32 {T2}, {T2}, 10", f"s_add_u32 s{S_SRC}, s{S_SRC}, {T2}",
                f"s_and_b32 {dst}, {T0}, 1", f"s_lshl_b32 {T2}, {dst}, 7", f"s_add_u32 s{S_SRC}, s{S_SRC}, {T2}",
                f"s_lshl_b32 {T1}, {T1}, 2", f"s_lshr_b32 {T2}, {tab}, {T1}", f"s_and_b32 {T2}, {T2}, 15", f"s_mul_i32 {T2}, {T2}, 5",
                f"s_lshl_b32 s{S_NEED}, 16, {T2}"], [
                f"s_mul_i32 {dst}, {dst}, {8*1792}", f"s_add_u32 {dst}, {dst}, s{S_OUTB}",
                f"s_lshr_b32 {T2}, s{S_ROT}, {T1}", f"s_and_b32 {T2}, {T2}, 15", f"s_lshl_b32 {T2}, {T2}, 7", f"s_add_u32 {dst}, {dst}, {T2}",
                f"s_and_b32 {T2}, {T0}, 2", f"s_lshl_b32 {T2}, {T2}, 5", f"s_add_u32 {dst}, {dst}, {T2}",
                f"s_lshr_b32 {T2}, {T0}, 2", f"s_mul_i32 {T2}, {T2}, 28672", f"s_add_u32 {dst}, {dst}, {T2}"]
    def loads(b):
        o = []
        for k in range(8):
            o.append(f"buffer_load_dwordx4 {ar(32*b+4*k,4)}, v{VLD}, {sq(S_ALL)}, s{S_SRC} offen sc1")
            if k < 7:
                o.append(f"s_add_u32 s{S_SRC}, s{S_SRC}, {32768 + (2048 if k % 2 == 0 else -2048)}")
        return o
    arm = [f"v_mul_u32_u24 v{VAT}, s{S_PEND}, v{VTK}"]
    keep = [f"v_readlane_b32 {PRG}, v{VAT}, 0", f"v_readlane_b32 s{S_NEW}, v{VAT}, 1"]
    merge = [f"s_sub_u32 s{S_NEW}, s{S_NEW}, s{S_TKT}", f"s_mul_i32 s{S_NEW}, s{S_NEW}, s{S_PEND}", f"s_add_u32 s{S_TKT}, s{S_TKT}, s{S_NEW}"]
    def flag(ch):
        return [Ins(f"v_mov_b32 v{V_FV}, {1 << (5 * sig.index(ch))}"),
                Ins(f"buffer_atomic_add v{V_FV}, v{V_FLW}, {sq(S_ALL)}, s{S_FLR} offen sc1", 1, "vm", ("fl", ch))]
    tail_flags = []
    for ch in c.flags:
        g = st_last[ch] + c.flag_delay
        if g + 10 < NM:
            tl.chain([Ins("", 1, "waitv", {("st", ch)})] + flag(ch), g, g + 20)
        else:
            tail_flags.append(ch)
    tail_loads = []
    tO = lambda t: at(nO0 + 2 * t)
    start = L(lanes2 + [f"s_mov_b32 s{S_PEND}, 1", f"s_mov_b32 s{S_TKT}, 0", f"s_mov_b32 s{S_PEND+1}, 0"])
    cur = tl.chain(start, tO(2.0), tO(3.0))[-1][0]
    dec_end = cur
    for e, te in enumerate(c.early):
        assert not tail_loads
        g = max(tO(te), dec_end + 1)
        tl.chain(L(arm) + [Ins(claim, 1, "vm", ("claim", e))], g - 0, g + 16)
        g = max(tO(te + c.early_wait), cur + 1)
        ps = tl.chain([Ins("", 1, "waitv", {("claim", e)})] + L(keep), g, g + 12)
        d1, d2 = decode(2 + e)
        rdy = [f"s_andn2_b32 {T2}, s{S_NEED}, {PRG}", f"s_min_u32 {T2}, {T2}, 1", f"s_sub_u32 s{S_PEND}, 1, {T2}",
               f"s_lshl_b32 s{S_NEW}, {T2}, 28", f"s_add_u32 s{S_SRC}, s{S_SRC}, s{S_NEW}"]
        d3 = [f"s_add_u32 s{S_DST+2+e}, s{S_DST+2+e}, s{S_NEW}"]
        if c.stamps:
            d3 += [f"s_lshl_b32 s{S_NEW}, s{S_PEND}, 8", f"s_add_u32 s{S_PEND+1}, s{S_PEND+1}, s{S_NEW}"]
        ps = tl.chain(L(merge + d1 + rdy + d2 + d3), ps[-1][0] + 1, ps[-1][0] + 70)
        dec_end = ps[-1][0]
        cur = ps[len(merge + d1 + rdy) - 1][0] - c.load_gap + 1
        ld = [Ins(t, 1, "vm", "R") if t.startswith("buffer") else Ins(t) for t in loads(2 + e)]
        while ld:
            lo = cur + c.load_gap
            if lo >= NM - 3:
                tail_loads = ld
                break
            rng = range(lo, min(lo + 6, NM - 2))
            cur = min(rng, key=lambda k: (tl.gaps[k].added(ld[0], 1), k))
            tl.gaps[cur].mem.append(ld[0])
            if len(ld) > 1:
                tl.chain([ld[1]], cur + 1, min(cur + c.load_gap - 1, NM - 1))
            ld = ld[2:]

    if c.stamps:
        for k, n in enumerate(c.stamps):
            tl.gaps[beg(n)].lead[0:0] = [Ins(t) for t in stamp(k + 1 + 6 * c.pstamps)]
    lin = tl.linear()
    ns = len(c.stamps) + 1 + 6 * c.pstamps if c.stamps else 0
    ST = lambda k: [Ins(t) for t in stamp(ns + k)] if c.stamps else []

    I = lambda *ts: [Ins(t) for t in ts]
    lin += I("s_nop 7") + tail + I("s_waitcnt lgkmcnt(0)") + ST(0) + tail_loads
    for ch in tail_flags:
        lin += [Ins("", 1, "waitv", {("st", ch)})] + flag(ch)
    lin += I(*arm)
    lin += I(f"s_mov_b32 {T0}, {LASTBIT}", f"v_writelane_b32 v{VAT}, {T0}, 0")
    lin += [Ins("", 1, "waitv", {("st", 6)}), Ins(claim, 1, "vm", ("fl", 6))] + ST(1)
    resolve_waits(lin)
    verify(lin, steps, slot_of, xslots, c.nx)
    texts = [x.text for x in lin]
    T = lambda xs: [x.text for x in xs]
    def reduce(b, wait):
        a, o = 8 * b, []
        for k in range(8):
            if wait:
                o += [f"s_waitcnt vmcnt({7-k})"]
            o += [f"{MF} {vr(a,4)}, {ar(A_SEL,4)}, {ar(32*b+4*k,4)}, {vr(a,4) if k else 0}"]
        o += ["s_nop 7"] + [f"v_cvt_pk_bf16_f32 v{a+4+k}, v{a+2*k}, v{a+2*k+1}" for k in range(2)]
        return o + [f"buffer_store_dwordx2 {vr(a+4,2)}, v{V_OUT}, {sq(S_OUT)}, s{S_DST+b} offen {c.pol_out}"]
    texts += [f"s_mov_b32 {CNT}, 0", "s_waitcnt vmcnt(1)"]
    for e in range(len(c.early)):
        texts += reduce(2 + e, False)
    texts += [f"s_waitcnt vmcnt({len(c.early)})"] + keep + ["s_nop 0", f"s_add_u32 {PRG}, {PRG}, {LASTBIT}"] + merge + [f"s_mov_b32 s{S_PEND}, 0"]
    for b in range(2):
        y = 1 - b
        texts += [f"L_take{b}:", f"s_cmp_ge_u32 s{S_TKT}, 84", f"s_cbranch_scc1 L_last{y}"] + decode(b)[0]
        texts += [f"s_andn2_b32 {T2}, s{S_NEED}, {PRG}", f"s_cbranch_scc0 L_go{b}",
                  f"s_cmp_eq_u32 s{S_PEND}, 0", f"s_cbranch_scc1 L_poll{b}"] + reduce(y, True) + [f"s_mov_b32 s{S_PEND}, 0"]
        texts += [f"L_poll{b}:"] + ([f"s_sleep {c.sleep}"] if c.sleep else []) + [
                  f"v_mov_b32 v{V_POLL}, 0", f"buffer_atomic_add v{V_POLL}, v{V_FLW}, {sq(S_ALL)}, s{S_FLR} offen sc0 sc1",
                  "s_waitcnt vmcnt(0)", f"v_readfirstlane_b32 {PRG}, v{V_POLL}", f"s_add_u32 {CNT}, {CNT}, 1",
                  f"s_cmp_ge_u32 {CNT}, {c.spin_max}", f"s_cselect_b32 {PRG}, -1, {PRG}",
                  f"s_andn2_b32 {T2}, s{S_NEED}, {PRG}", f"s_cbranch_scc1 L_poll{b}"]
        ld = loads(b)
        texts += [f"L_go{b}:", f"v_mov_b32 v{VAT}, v{VTK}"] + ld[:2 * c.claim_at] + [claim] + ld[2 * c.claim_at:] + decode(b)[1]
        if c.stamps:
            texts += [f"s_add_u32 s{S_PEND+1}, s{S_PEND+1}, 1"]
        texts += [f"s_cmp_eq_u32 s{S_PEND}, 0", f"s_mov_b32 s{S_PEND}, 1", f"s_cbranch_scc1 L_got{b}", "s_waitcnt vmcnt(9)"] + reduce(y, False)
        texts += [f"s_waitcnt vmcnt({9 - c.claim_at})", f"s_branch L_rd{b}", f"L_got{b}:", f"s_waitcnt vmcnt({8 - c.claim_at})", f"L_rd{b}:"] + read2 + ["s_nop 1"]
        if b == 1:
            texts += ["s_branch L_take0"]
    for y in range(2):
        texts += [f"L_last{y}:", f"s_cmp_eq_u32 s{S_PEND}, 0", "s_cbranch_scc1 L_done"] + reduce(y, True)
        if y == 0:
            texts += ["s_branch L_done"]
    texts += ["L_done:"]
    if c.stamps:
        texts += [f"v_writelane_b32 v{V_STAMP}, s{S_PEND+1}, 62", f"v_writelane_b32 v{V_STAMP}, s{S_TOT}, 63"] + T(ST(2))
    if c.stamps:
        texts += stamp(ns + 3) + ["s_waitcnt vmcnt(0)"] + stamp(ns + 4)
        if c.diag is not None:
            lane = c.diag if c.diag >= 0 else ns + 5 + c.diag
            texts += ["s_nop 1", f"v_readlane_b32 s40, v{V_STAMP}, {lane}", f"v_readlane_b32 s41, v{V_STAMP}, 0", "s_nop 3",
                      "s_sub_u32 s40, s40, s41", "s_lshl_b32 s40, s40, 4", "s_add_u32 s40, s40, 10000",
                      "L_diag:", "s_sleep 1", "s_memrealtime s[42:43]", "s_waitcnt lgkmcnt(0)", "s_sub_u32 s42, s42, s41",
                      "s_cmp_lt_u32 s42, s40", "s_cbranch_scc1 L_diag"]
        texts += [
                  f"v_lshrrev_b32 v8, 2, v{V_ST}", "s_lshl_b32 s3, s2, 8", f"s_add_u32 s3, s3, {STAMP_AT}",
                  f"s_cmp_lg_u32 s{S_W}, 0", "s_cbranch_scc1 L_end", f"buffer_store_dword v{V_STAMP}, v8, {sq(S_ALL)}, s3 offen"]
    texts, probs = check_hazards(texts, fix=True)
    stats = dict(n=len(texts), nops=len(probs), cost=[tl.cost(beg(n), end(n)) for n in range(NS)], margin=[margin.get(m) for m in range(2, NS)],
                 defer=round(defer_end / 48, 2), stl=[round((st_last[k] - beg(nO0)) / 96, 2) for k in range(6)])
    texts += ["L_end:", "s_endpgm"]
    texts += ["L_dbgspin:", f"s_mov_b32 s{S_SPIN}, 0", "L_dspin:", f"buffer_load_dword v{V_PUB}, off, {sq(S_DBG)}, s{S_GRP} sc1",
              "s_waitcnt vmcnt(0)", f"v_cmp_gt_u32 vcc, 1, v{V_PUB}", f"s_add_u32 s{S_SPIN}, s{S_SPIN}, 1",
              f"s_cmp_ge_u32 s{S_SPIN}, {c.spin_max}", "s_cbranch_scc1 L_dbgback", "s_cbranch_vccnz L_dspin", "s_branch L_dbgback"]
    texts += ["L_stub0:"] + rare_path(0) + ["s_branch L_back0"]
    for j in range(1, 16):
        texts += [f"L_stub{j}:", f"s_call_b64 s[{S_RET}:{S_RET+1}], L_rare{j&1}", f"s_branch L_back{j}"]
    for par in range(2):
        texts += [f"L_rare{par}:"] + rare_path(par + 2) + [f"s_setpc_b64 s[{S_RET}:{S_RET+1}]"]
    return texts, stats, probs

def verify(lin, steps, slot_of, xslots, nx):
    pending, lq, vq = {}, [], []
    issued, landed, visible = {}, set(), set()
    last_epoch, epoch, in_slot, cnt = {}, 0, {}, {}
    def refill(m):
        s = slot_of[m]
        old = in_slot.get(s)
        if old is None:
            for kc in xslots.get(s, ()):
                assert cnt.get(("X", kc), 0) == 6 and last_epoch[("X", kc)] < epoch, ("slot under x", m)
        elif old != m:
            assert cnt.get(old, 0) == (16 if steps[old][0] == "K" else 32), ("slot reused early", m, old)
            assert last_epoch[old] < epoch, ("slot reuse without barrier", m, old)
        in_slot[s] = m
    for ins in lin:
        t = ins.text
        if ins.tag == "ds" and t.startswith("ds_write"):
            m = ins.meta[1]
            assert ("G", m) in landed and issued[("G", m)] == 4
            refill(m)
            lq.append(([], ins.meta))
        elif ins.tag == "vm":
            vq.append(ins.meta)
            issued[ins.meta] = issued.get(ins.meta, 0) + 1
            landed.discard(ins.meta)
            if isinstance(ins.meta, tuple) and ins.meta[0] == "X" and ins.meta[1] >= nx:
                assert cnt.get(("X", ins.meta[1] - nx), 0) == 6, ("x region reused early", ins.meta)
            if isinstance(ins.meta, tuple) and ins.meta[0] == "fl":
                assert ("st", ins.meta[1]) in landed and issued[("st", ins.meta[1])] == 6, ins.meta
            if isinstance(ins.meta, tuple) and ins.meta[0] == "S":
                refill(ins.meta[1])
        elif t.startswith("s_waitcnt"):
            mv = re.search(r"vmcnt\((\d+)\)", t)
            if mv:
                k = max(0, len(vq) - int(mv.group(1)))
                done, vq = vq[:k], vq[k:]
                landed |= {d for d in done if d not in vq}
            ml = re.search(r"lgkmcnt\((\d+)\)", t)
            if ml:
                k = max(0, len(lq) - int(ml.group(1)))
                done, lq = lq[:k], lq[k:]
                for rs, tok in done:
                    for r in rs:
                        pending.pop(r, None)
                    key = tok // 16 if isinstance(tok, int) else tok
                    cnt[key] = cnt.get(key, 0) + 1
                    last_epoch[key] = epoch
                    if isinstance(tok, tuple) and tok[0] == "SW" and cnt[key] == 4:
                        landed.add(("S", tok[1]))
                        issued[("S", tok[1])] = 4
        elif t == "s_barrier":
            visible |= {d for d in landed if not (isinstance(d, tuple) and d[0] == "S") or issued[d] == 4}
            epoch += 1
        elif ins.tag == "ds":
            wr, tok = rw(t)[1], ins.meta
            if isinstance(tok, int):
                assert ("S", tok // 16) in visible, ("read before visible", tok)
            else:
                assert tok in landed and issued[tok] == 6, ("x read before landed", tok)
            lq.append((wr, tok))
            for r in wr:
                pending[r] = tok
        elif t.startswith("v_mfma"):
            for r in rw(t)[2]:
                assert r not in pending, ("mfma reads in-flight fragment", t)
        assert len(vq) <= 63, "vmcnt overflow"

HEADER = """;
; (query row = lane & 15), so each MFMA result feeds the next product as its B operand without shuffles:
; wq, K, V and wo stream through a ring of LDS slots (LDS-DMA, padded layouts, transposing reads).
; denominator is range-checked; when it leaves the safe range the tile is redone against the true row max
; and O and l are rescaled (L_stub*, L_rare*).
; counters that head 0 clears at the start of the launch (d_debug carries that announcement), and summed in
; fp32 by whichever wave claims the next piece. Head 0 also picks, by a race of scalar loads, the half of the
; scratch page that answers faster; either choice gives the same result.
; L_pad*: never-taken branches in the first line of each 4 KiB code page, visited once with EXEC = 0 while the
; first loads are in flight so that those lines are in the instruction cache.
"""

def add_pads(main):
    import subprocess, tempfile, os
    i0, i1 = main.index("L_main:"), main.index("L_done:")
    with tempfile.TemporaryDirectory() as d:
        labels = sorted({x for t in main for x in re.findall(r"\bL_\w+", t)} - {t[:-1] for t in main[i0:i1] if t.endswith(":")})
        open(d + "/a.s", "w").write('.amdgcn_target "amdgcn-amd-amdhsa--gfx950"\n.text\n' + "\n".join(main[i0:i1]) + "\n" + "".join(x + ":\n" for x in labels))
        subprocess.run(["clang", "-x", "assembler", "-target", "amdgcn-amd-amdhsa", "-mcpu=gfx950", "-c", d + "/a.s", "-o", d + "/a.o"], check=True)
        dis = subprocess.run(["llvm-objdump", "-d", d + "/a.o"], capture_output=True, text=True).stdout
    addr = [int(x, 16) for x in re.findall(r"// ([0-9A-F]{12}):", dis)]
    body = [k for k in range(i0, i1) if not main[k].endswith(":")]
    assert len(addr) == len(body)
    where, shift, page = [], 0, 1
    for n, k in enumerate(body):
        a = addr[n] + shift
        if a < page * 4096:
            continue
        free = main[k - 1].startswith("v_mfma") and not main[k].startswith(("s_", "buffer_"))
        nxt = addr[n + 1] + shift if n + 1 < len(body) else a + 64
        if free or nxt > page * 4096 + 56:
            where.append(k)
            shift += 4
            page += 1
    out, n = [], 0
    for k, t in enumerate(main):
        if n < len(where) and k == where[n]:
            out += [f"L_pad{n}:", "s_cbranch_execz " + (f"L_pad{n+4}" if n + 4 < len(where) else "L_main")]
            n += 1
        out.append(t)
    return out, len(where)

def emit(c, path):
    main, stats, probs = build_main(c)
    if c.thin:
        out, m = [], 0
        for t in main:
            if t.startswith("v_mfma"):
                m += 1
                for lo, hi, every in c.thin:
                    if lo <= m < hi and m % every == 0:
                        out.append("s_nop 7")
            out.append(t)
        main = out
    if c.pads:
        main, stats["pads"] = add_pads(main)
    K1 = NAME + "_kernel"
    ref = open("cdna_kernels/" + NAME + ".s.ref").read().split("\n")
    s = "\n".join(ref[:14]) + "\n" + HEADER + "; @launch grid=(256,1,1) block=(256,1,1) lds=163840\n"
    s += '.amdgcn_target "amdgcn-amd-amdhsa--gfx950"\n.text\n'
    s += f".globl {K1}\n.p2align 8\n.type {K1},@function\n{K1}:\n"
    s += "\n".join(x if x.endswith(":") else "    " + " ".join(x.split()) for x in main) + "\n"
    if c.code_pf:
        s += ".fill 2048, 4, 0xbf810000\n"
    s += f""".section .rodata,"a"
.p2align 6
.amdhsa_kernel {K1}
  .amdhsa_next_free_vgpr 512
  .amdhsa_next_free_sgpr 102
  .amdhsa_accum_offset 256
  .amdhsa_group_segment_fixed_size 0
  .amdhsa_kernarg_size 104
  .amdhsa_user_sgpr_count 2
  .amdhsa_user_sgpr_kernarg_segment_ptr 1
  .amdhsa_system_sgpr_workgroup_id_x 1
  .amdhsa_float_denorm_mode_32 3
.end_amdhsa_kernel
"""
    open(path, "w").write(s)
    if c.code_pf:
        import subprocess, tempfile
        with tempfile.TemporaryDirectory() as d:
            open(d + "/a.s", "w").write(s.replace(".p2align 12", ""))
            subprocess.run(["clang", "-x", "assembler", "-target", "amdgcn-amd-amdhsa", "-mcpu=gfx950", "-c", d + "/a.s", "-o", d + "/a.o"], check=True)
            hdr = subprocess.run(["llvm-objdump", "-h", d + "/a.o"], capture_output=True, text=True).stdout
        size = int(re.search(r"\.text\s+([0-9a-f]+)", hdr).group(1), 16)
        assert size >= 32 * 2304 + 512, "prefetched range runs past the code"
    return stats, probs

if __name__ == "__main__":
    c = Cfg()
    if "R1" in sys.argv:
        sys.argv.remove("R1")
        c.rot, c.nx, c.pro_order, c.nW = 1, 3, "X0 S0 S1 X1 X2 S2", 2
        c.x_issue = {3: 0.6, 4: 2.3, 5: 3.62, 6: 4.62}
        c.x_read = {1: 1.2, 2: 1.56, 3: 3.25, 4: 4.25, 5: 5.25, 6: 6.25}
        c.kv_early = [5.7, 6.9, 8.1, 9.3, 10.7, 11.8, 12.9]
    if "R2" in sys.argv:
        sys.argv.remove("R2")
        c.rot, c.nx, c.pro_order, c.nW = 1, 3, "X0 S0 S1 X1 X2 S2", 2
        c.x_issue = {3: 0.6, 4: 2.0, 5: 2.5, 6: 3.1}
        c.x_read = {1: 1.15, 2: 1.5, 3: 2.15, 4: 3.3, 5: 3.65, 6: 4.3}
        c.kv_early = [4.8, 6.2, 7.6, 9.0, 10.6, 11.8, 13.0]
        c.kv_step, c.st_pace, c.flag_delay, c.wo_rot = 14, 16, 60, 2
        c.early, c.load_gap, c.flags = (3.7, 5.1), 12, (0, 1, 2, 4, 5)
    if "R3" in sys.argv:
        sys.argv.remove("R3")
        c.rot, c.nx, c.pro_order, c.nW = 1, 3, "X0 S0 S1 X1 X2 S2", 2
        c.x_issue = {3: 0.6, 4: 2.3, 5: 3.62, 6: 4.62}
        c.x_read = {1: 1.2, 2: 1.56, 3: 3.25, 4: 4.25, 5: 5.25, 6: 6.25}
        c.kv_early = [5.7, 6.9, 8.1, 9.3, 10.7, 11.8, 12.9]
        c.kv_step, c.st_pace, c.flag_delay, c.wo_rot = 12, 16, 60, 2
        c.early, c.load_gap, c.flags = (3.7, 5.1), 12, (0, 1, 2, 4, 5)
    if "R7" in sys.argv:
        sys.argv[sys.argv.index("R7")] = "R6"
        c.clump = (1.0, 6.5, 5)
    if "Z1" in sys.argv:
        sys.argv.remove("Z1")
        c.staged = [(5.0, 20, 168), (6.5, 39, 0), (8.0, 19, 48)]
        c.kv_early = [3.5, 9.7, 10.8, 11.9, 13.0, 12.0, 13.1]
        c.kv_knee = (35, 30.4)
        c.wo_at = [43.0, 43.55, 44.1, 44.65, 45.3, 45.8, 46.3, 47.7, 48.2, 49.7, 50.2, 51.7, 52.2, 53.7]
        c.kv_step, c.st_pace, c.flag_delay, c.wo_rot = 14, 16, 60, 2
        c.early, c.load_gap, c.flags = (3.7, 5.1), 12, (0, 1, 2, 4, 5)
        c.conv_level, c.sm_level = 16, [(12, 200)]
    if "Z2" in sys.argv:
        sys.argv.remove("Z2")
        c.x_issue = {2: 0.5, 3: 2.2, 4: 3.7, 5: 5.3, 6: 6.8}
        c.x_read = {1: 1.25, 2: 2.8, 3: 4.4, 4: 5.9, 5: 7.6, 6: 9.1}
        c.x_step = 9
        c.staged = [(5.6, 39, 0)]
        c.kv_early = [3.0, 8.7, 9.7, 10.7, 11.6, 12.4, 13.2]
        c.kv_slow = {14: 28, 39: 28}
        c.kv_knee = (35, 30.4)
        c.wo_at = [43.0, 43.55, 44.1, 44.65, 45.3, 45.8, 46.3, 47.7, 48.2, 49.7, 50.2, 51.7, 52.2, 53.7]
        c.kv_step, c.st_pace, c.flag_delay, c.wo_rot = 10, 16, 60, 2
        c.early, c.load_gap, c.flags = (3.7, 5.1), 12, (0, 1, 2, 4, 5)
        c.conv_level, c.sm_level, c.pair_rd = 16, [(12, 200)], [(0, 13.6)]
    if "R6" in sys.argv:
        sys.argv[sys.argv.index("R6")] = "R5"
        c.sm_level = [(12, 200)]
    if "R5" in sys.argv:
        sys.argv[sys.argv.index("R5")] = "R4"
        c.pair_rd, c.pack_dma, c.conv_level = [(1, 13.6)], [(1, 11)], 16
    if "R4" in sys.argv:
        sys.argv.remove("R4")
        c.rot, c.nx, c.pro_order, c.nW, c.pro_setup = 1, 3, "X0 S0 S1 X1 X2 S2", 2, True
        c.x_issue = {3: 0.6, 4: 2.3, 5: 3.62, 6: 4.62}
        c.x_read = {1: 1.2, 2: 1.56, 3: 3.25, 4: 4.25, 5: 5.25, 6: 6.25}
        c.staged = [(5.0, 39, 0)]
        c.kv_early = [6.1, 7.2, 8.3, 9.4, 10.7, 11.8, 12.9]
        c.kv_knee = (35, 30.4)
        c.wo_at = [43.0, 43.55, 44.1, 44.65, 45.3, 45.8, 46.3, 47.7, 48.2, 49.7, 50.2, 51.7, 52.2, 53.7]
        c.kv_step, c.st_pace, c.flag_delay, c.wo_rot = 12, 16, 60, 2
        c.early, c.load_gap, c.flags = (3.7, 5.1), 12, (0, 1, 2, 4, 5)
    for kv in sys.argv[2:]:
        k, v = kv.split("=", 1)
        setattr(c, k, eval(v))
    stats, probs = emit(c, sys.argv[1])
    print(stats, "total cost", sum(stats["cost"]))
    for p in probs[:30]:
        print("  nop", p)
```
